```python
import torch

def _softmax(x, axis=-1):
    return torch.softmax(x, dim=axis)
def _gelu(x):
    return torch.nn.functional.gelu(x, approximate="tanh")
def _silu(x):
    return torch.nn.functional.silu(x)
def _sigmoid(x):
    return torch.sigmoid(x)
def _layernorm(x, axis=-1, eps=1e-5):
    m = x.mean(dim=axis, keepdim=True)
    v = x.var(dim=axis, keepdim=True, unbiased=False)
    return (x - m) / torch.sqrt(v + eps)
def _scatter_add(tgt, idx, src, axis=0):
    return tgt.clone().index_add_(axis, idx, src)
def _segment_sum(src, seg, n):
    out = torch.zeros((n,) + src.shape[1:], dtype=src.dtype)
    return out.index_add_(0, seg, src)
def _pad(x, pw):
    flat = tuple(v for pair in reversed(pw) for v in pair)
    return torch.nn.functional.pad(x, flat)

kernel_name = 'interleave_layers__sliding_local_dilated__moe_arch_mod__prompt'

def setup_inputs():

    _w = (lambda a: (lambda t: t.to(torch.bfloat16) if t.is_floating_point() else t)(torch.as_tensor(a)))
    def _A_setup():
        B, S, D = 1, 2048, 576
        return {
            "x": _w((lambda *s: torch.randn(*s, dtype=torch.bfloat16) * 0.05)(B, S, D)),
            "wqkv": _w((lambda *s: torch.randn(*s, dtype=torch.bfloat16) * 0.05)(D, 3 * D)),
            "wo": _w((lambda *s: torch.randn(*s, dtype=torch.bfloat16) * 0.05)(D, D)),
        }
    _A_in = _A_setup()

    def _B_setup():
        B, S, D, F, C = 1, 2048, 576, 4608, 1
        return {
            "x": _w((lambda *s: torch.randn(*s, dtype=torch.bfloat16) * 0.05)(B, S, D)),
            "w_r": _w((lambda *s: torch.randn(*s, dtype=torch.bfloat16) * 0.05)(D)),
            "w_gate": _w((lambda *s: torch.randn(*s, dtype=torch.bfloat16) * 0.05)(D, F)),
            "w_up": _w((lambda *s: torch.randn(*s, dtype=torch.bfloat16) * 0.05)(D, F)),
            "w_down": _w((lambda *s: torch.randn(*s, dtype=torch.bfloat16) * 0.05)(F, D)),
        }
    _B_in = _B_setup()

    return {
        "A_x": _A_in["x"],
        "A_wqkv": _A_in["wqkv"],
        "A_wo": _A_in["wo"],
        "B_x": _B_in["x"],
        "B_w_r": _B_in["w_r"],
        "B_w_gate": _B_in["w_gate"],
        "B_w_up": _B_in["w_up"],
        "B_w_down": _B_in["w_down"],
    }

def reference(A_x, A_wqkv, A_wo, B_x, B_w_r, B_w_gate, B_w_up, B_w_down):
    def _A_ref(x, wqkv, wo):
        B, S, D = x.shape
        H = 32; Dh = D // H
        W, dil = 8, 2
        qkv = (lambda x, *d: x.permute(*d))((x @ wqkv).reshape(B, S, 3, H, Dh), 2, 0, 3, 1, 4)
        q, k, v = qkv[0], qkv[1], qkv[2]
        scale = Dh ** -0.5
        pos = torch.arange(S)
        off = torch.arange(W) * dil
        idx = pos[:, None] - off[None, :]
        mask = idx >= 0
        idx_c = torch.where(mask, idx, 0).reshape(-1)
        kg = k[:, :, idx_c, :].reshape(B, H, S, W, Dh)
        vg = v[:, :, idx_c, :].reshape(B, H, S, W, Dh)
        logits = torch.einsum("bhsd,bhswd->bhsw", q, kg) * scale
        logits = torch.where(mask[None, None, :, :], logits, -1e9)
        attn = _softmax(logits, axis=-1)
        o = torch.einsum("bhsw,bhswd->bhsd", attn, vg)
        return (lambda x, *d: x.permute(*d))(o, 0, 2, 1, 3).reshape(B, S, D) @ wo

    def _B_ref(x, w_r, w_gate, w_up, w_down):
        B, S, D = x.shape
        C = 1
        r = x @ w_r
        idx = torch.argsort(-r, axis=-1)[:, :C]
        idx_e = (lambda x, n, axis: torch.repeat_interleave(x, n, dim=axis))(idx.reshape(B, C, 1), D, axis=2)
        x_sel = (lambda x, i, axis: torch.take_along_dim(x, i, dim=axis))(x, idx_e, axis=1)
        g = _silu(x_sel @ w_gate)
        u = x_sel @ w_up
        y = (g * u) @ w_down
        r_sel = _sigmoid((lambda x, i, axis: torch.take_along_dim(x, i, dim=axis))(r, idx, axis=1))
        y = y * r_sel.reshape(B, C, 1)
        b_off = (torch.arange(B) * S).reshape(B, 1)
        flat_idx = (idx + b_off).reshape(B * C)
        zero = (x * 0.0).reshape(B * S, D)
        upd = _scatter_add(zero, flat_idx, y.reshape(B * C, D), axis=0)
        return x + upd.reshape(B, S, D)

    x = A_x
    x = x + _A_ref(_layernorm(x, axis=-1), A_wqkv, A_wo)
    x = x + _B_ref(_layernorm(x, axis=-1), B_w_r, B_w_gate, B_w_up, B_w_down)
    x = x + _A_ref(_layernorm(x, axis=-1), A_wqkv, A_wo)
    x = x + _B_ref(_layernorm(x, axis=-1), B_w_r, B_w_gate, B_w_up, B_w_down)
    return x
```

```python
import sys
NAME = "interleave_layers__sliding_local_dilated__moe_arch_mod__prompt"
MB = 1 << 20
OFF = dict(Z=0, QKV=4*MB, O=12*MB, X1=16*MB, X2=20*MB, R=24*MB, H=25*MB, S=26*MB)
ARG = dict(x=0, wqkv=8, wo=16, wr=32, wg=40, wu=48, wd=56, out=64, dbg=72, ws=80)
SZ = dict(x=2359296, wqkv=1990656, wo=663552, wr=1152, wg=5308416, wu=5308416, wd=5308416, out=2359296,
          Z=2359296, QKV=7077888, O=2359296, X1=2359296, X2=2359296, R=8192, H=18432, S=64)
out = []
e = out.append
launches = []
kds = []

def srd(s, buf):
    if buf in ARG:
        e(f"s_load_dwordx2 s[{s}:{s+1}], s[0:1], {ARG[buf]}")
        e("s_waitcnt lgkmcnt(0)")
    else:
        e(f"s_load_dwordx2 s[{s}:{s+1}], s[0:1], {ARG['ws']}")
        e("s_waitcnt lgkmcnt(0)")
        e(f"s_add_u32 s{s}, s{s}, {OFF[buf]}")
        e(f"s_addc_u32 s{s+1}, s{s+1}, 0")
    e(f"s_mov_b32 s{s+2}, {SZ[buf]}")
    e(f"s_mov_b32 s{s+3}, 0x20000")

def begin(name, grid, block, lds=0, vgpr=128):
    launches.append(f"; @launch kernel={name} grid=({grid},1,1) block=({block},1,1) lds={lds}")
    e(".p2align 8"); e(f".globl {name}"); e(f".type {name},@function"); e(f"{name}:")
    e(f"s_cmp_ge_u32 s2, {grid}"); e(f"s_cbranch_scc1 L_{name}_end")
    kds.append(f""".amdhsa_kernel {name}
  .amdhsa_next_free_vgpr {vgpr}
  .amdhsa_next_free_sgpr 96
  .amdhsa_accum_offset {vgpr}
  .amdhsa_group_segment_fixed_size 0
  .amdhsa_kernarg_size 88
  .amdhsa_user_sgpr_count 2
  .amdhsa_user_sgpr_kernarg_segment_ptr 1
  .amdhsa_system_sgpr_workgroup_id_x 1
.end_amdhsa_kernel""")
def end(name):
    e(f"L_{name}_end:"); e("s_endpgm")

def wave_sum(v, tmp, lane4):
    for m in [1,2,4,8,16,32]:
        e(f"v_xor_b32 v{tmp}, {m*4}, v{lane4}")
        e(f"ds_bpermute_b32 v{tmp}, v{tmp}, v{v}")
        e("s_waitcnt lgkmcnt(0)")
        e(f"v_add_f32 v{v}, v{v}, v{tmp}")

def k_ln(name, src, dstx2):
    begin(name, 512, 256)
    srd(4, src); srd(8, 'Z')
    if dstx2: srd(12, dstx2); srd(16, 'wr'); srd(20, 'R')
    e("v_and_b32 v1, 63, v0"); e("v_lshrrev_b32 v2, 6, v0")
    e("s_lshl_b32 s3, s2, 2"); e("v_add_u32 v2, s3, v2")
    e("v_mul_u32_u24 v3, 1152, v2"); e("v_lshlrev_b32 v4, 1, v1"); e("v_add_u32 v3, v3, v4")
    e("v_lshlrev_b32 v5, 2, v1")
    for i in range(9): e(f"buffer_load_ushort v{10+i}, v3, s[4:7], 0 offen offset:{128*i}")
    if dstx2:
        for i in range(9): e(f"buffer_load_ushort v{30+i}, v4, s[16:19], 0 offen offset:{128*i}")
    e("s_waitcnt vmcnt(0)")
    for i in range(9): e(f"v_lshlrev_b32 v{10+i}, 16, v{10+i}")
    e("v_mov_b32 v6, v10")
    for i in range(1,9): e(f"v_add_f32 v6, v6, v{10+i}")
    wave_sum(6, 7, 5)
    e(f"v_mul_f32 v6, {1/576!r}, v6".replace(repr(1/576), hex(f2u(1/576))))
    for i in range(9): e(f"v_sub_f32 v{20+i}, v{10+i}, v6")
    e("v_mul_f32 v8, v20, v20")
    for i in range(1,9): e(f"v_fmac_f32 v8, v{20+i}, v{20+i}")
    wave_sum(8, 7, 5)
    e(f"v_mul_f32 v8, {hex(f2u(1/576))}, v8"); e(f"v_add_f32 v8, {hex(f2u(1e-5))}, v8")
    e("v_rsq_f32 v8, v8"); e("s_nop 0")
    for i in range(9): e(f"v_mul_f32 v{20+i}, v{20+i}, v8")
    for i in range(9):
        e(f"v_cvt_pk_bf16_f32 v{40+i}, v{20+i}, v{20+i}")
        e(f"buffer_store_short v{40+i}, v3, s[8:11], 0 offen offset:{128*i}")
    if dstx2:
        e("v_mov_b32 v9, 0")
        for i in range(9):
            e(f"v_lshlrev_b32 v{30+i}, 16, v{30+i}")
            e(f"v_fmac_f32 v9, v{30+i}, v{20+i}")
            e(f"v_add_f32 v{50+i}, v{10+i}, v{20+i}")
            e(f"v_cvt_pk_bf16_f32 v{50+i}, v{50+i}, v{50+i}")
            e(f"buffer_store_short v{50+i}, v3, s[12:15], 0 offen offset:{128*i}")
        wave_sum(9, 7, 5)
        e("v_lshlrev_b32 v2, 2, v2")
        e("buffer_store_dword v9, v2, s[20:23], 0 offen")
    end(name)

import struct
def f2u(x): return struct.unpack('<I', struct.pack('<f', x))[0]

def k_gemm(name, A, B, N, C, resid):
    nt = N // 16
    begin(name, 8*nt, 256)
    srd(4, A); srd(8, B); srd(12, C)
    if resid: srd(16, resid)
    e("s_and_b32 s20, s2, 7"); e("s_lshr_b32 s21, s2, 3")
    e("v_and_b32 v1, 15, v0"); e("v_bfe_u32 v2, v0, 4, 2"); e("v_lshrrev_b32 v3, 6, v0")
    e("s_lshl_b32 s20, s20, 8"); e("v_lshlrev_b32 v3, 6, v3"); e("v_add_u32 v3, s20, v3")
    e("v_add_u32 v4, v3, v1"); e("v_mul_u32_u24 v4, 1152, v4"); e("v_lshlrev_b32 v5, 4, v2"); e("v_add_u32 v4, v4, v5")
    e(f"v_mul_u32_u24 v6, {8*N*2}, v2"); e("s_lshl_b32 s21, s21, 5"); e("v_lshlrev_b32 v7, 1, v1"); e("v_add_u32 v7, s21, v7"); e("v_add_u32 v6, v6, v7")
    for i in range(16): e(f"v_mov_b32 v{40+i}, 0")
    e("s_mov_b32 s22, 0"); e("s_mov_b32 s23, 0"); e("s_mov_b32 s24, 0")
    e(f"L_{name}_k:")
    for m in range(4):
        e(f"s_add_u32 s25, s22, {m*16*1152}")
        e(f"buffer_load_dwordx4 v[{16+4*m}:{19+4*m}], v4, s[4:7], s25 offen")
    for j in range(8):
        e(f"s_add_u32 s25, s23, {j*N*2}")
        e(f"buffer_load_ushort v{60+j}, v6, s[8:11], s25 offen")
    e("s_waitcnt vmcnt(0)")
    for j in range(4): e(f"v_lshl_or_b32 v{32+j}, v{61+2*j}, 16, v{60+2*j}")
    e("s_nop 1")
    for m in range(4): e(f"v_mfma_f32_16x16x32_bf16 v[{40+4*m}:{43+4*m}], v[{16+4*m}:{19+4*m}], v[32:35], v[{40+4*m}:{43+4*m}]")
    e("s_add_u32 s22, s22, 64"); e(f"s_add_u32 s23, s23, {32*N*2}"); e("s_add_u32 s24, s24, 1")
    e("s_cmp_lt_u32 s24, 18"); e(f"s_cbranch_scc1 L_{name}_k")
    e("s_nop 15")
    e("v_lshlrev_b32 v8, 2, v2"); e("v_add_u32 v8, v8, v3"); e(f"v_mul_u32_u24 v8, {N*2}, v8"); e("v_add_u32 v8, v8, v7")
    if resid:
        for m in range(4):
            for r in range(4):
                e(f"s_mov_b32 s25, {(16*m+r)*N*2}")
                e(f"buffer_load_ushort v{60+4*m+r}, v8, s[16:19], s25 offen")
        e("s_waitcnt vmcnt(0)")
        for i in range(16):
            e(f"v_lshlrev_b32 v{60+i}, 16, v{60+i}"); e(f"v_add_f32 v{40+i}, v{40+i}, v{60+i}")
    for m in range(4):
        for r in range(4):
            i = 4*m+r
            e(f"v_cvt_pk_bf16_f32 v{40+i}, v{40+i}, v{40+i}")
            e(f"s_mov_b32 s25, {(16*m+r)*N*2}")
            e(f"buffer_store_short v{40+i}, v8, s[12:15], s25 offen")
    end(name)

def k_attn(name):
    begin(name, 256, 256, vgpr=128)
    srd(4, 'QKV'); srd(8, 'O')
    e("s_lshl_b32 s3, s2, 8"); e("v_add_u32 v1, s3, v0")
    e("v_and_b32 v2, 31, v1"); e("v_lshrrev_b32 v3, 5, v1")
    e("v_mul_u32_u24 v4, 36, v2"); e("v_mul_u32_u24 v5, 3456, v3"); e("v_add_u32 v5, v5, v4")
    def load18(base, voff, off):
        for i in range(9): e(f"buffer_load_dword v{base+i}, v{voff}, s[4:7], 0 offen offset:{off+4*i}")
    def unpack(dst, src):
        for i in range(9):
            e(f"v_lshlrev_b32 v{dst+2*i}, 16, v{src+i}"); e(f"v_and_b32 v{dst+2*i+1}, 0xffff0000, v{src+i}")
    load18(10, 5, 0); e("s_waitcnt vmcnt(0)"); unpack(20, 10)
    for w in range(8):
        e(f"v_subrev_u32 v6, {2*w}, v3"); e("v_max_i32 v6, 0, v6"); e("v_mul_u32_u24 v6, 3456, v6"); e(f"v_add_u32 v{100+w}, v6, v4")
        load18(10, 100+w, 1152); e("s_waitcnt vmcnt(0)"); unpack(40, 10)
        e(f"v_mul_f32 v{60+w}, v20, v40")
        for i in range(1,18): e(f"v_fmac_f32 v{60+w}, v{20+i}, v{40+i}")
        e(f"v_mul_f32 v{60+w}, {hex(f2u(18**-0.5*1.4426950408889634))}, v{60+w}")
        e(f"v_cmp_le_u32 vcc, {2*w}, v3"); e("v_mov_b32 v7, 0xff800000"); e("s_nop 0")
        e(f"v_cndmask_b32 v{60+w}, v7, v{60+w}, vcc")
    e("v_mov_b32 v8, v60")
    for w in range(1,8): e(f"v_max_f32 v8, v8, v{60+w}")
    for w in range(8): e(f"v_sub_f32 v{60+w}, v{60+w}, v8"); e(f"v_exp_f32 v{60+w}, v{60+w}")
    e("s_nop 0"); e("v_mov_b32 v9, v60")
    for w in range(1,8): e(f"v_add_f32 v9, v9, v{60+w}")
    e("v_rcp_f32 v9, v9")
    for i in range(18): e(f"v_mov_b32 v{70+i}, 0")
    for w in range(8):
        load18(10, 100+w, 2304); e("s_waitcnt vmcnt(0)"); unpack(40, 10)
        for i in range(18): e(f"v_fmac_f32 v{70+i}, v{60+w}, v{40+i}")
    e("v_mul_u32_u24 v5, 1152, v3"); e("v_add_u32 v5, v5, v4")
    for i in range(9):
        e(f"v_mul_f32 v{70+2*i}, v{70+2*i}, v9"); e(f"v_mul_f32 v{71+2*i}, v{71+2*i}, v9")
        e(f"v_cvt_pk_bf16_f32 v{10+i}, v{70+2*i}, v{71+2*i}")
        e(f"buffer_store_dword v{10+i}, v5, s[8:11], 0 offen offset:{4*i}")
    end(name)

def argmax():
    e("v_and_b32 v1, 63, v0"); e("v_lshlrev_b32 v5, 2, v1")
    for i in range(32):
        e(f"s_mov_b32 s25, {256*i}"); e(f"buffer_load_dword v{10+i}, v5, s[4:7], s25 offen")
    e("s_waitcnt vmcnt(0)")
    e("v_mov_b32 v9, v10"); e("v_mov_b32 v8, v1")
    for i in range(1,32):
        e(f"v_cmp_gt_f32 vcc, v{10+i}, v9"); e(f"v_add_u32 v7, {64*i}, v1"); e("s_nop 0")
        e(f"v_cndmask_b32 v9, v9, v{10+i}, vcc"); e("v_cndmask_b32 v8, v8, v7, vcc")
    for m in [1,2,4,8,16,32]:
        e(f"v_xor_b32 v6, {m*4}, v5")
        e("ds_bpermute_b32 v7, v6, v9"); e("ds_bpermute_b32 v6, v6, v8"); e("s_waitcnt lgkmcnt(0)")
        e("v_cmp_gt_f32 vcc, v7, v9"); e("v_cmp_eq_f32 s[26:27], v7, v9"); e("v_cmp_lt_u32 s[28:29], v6, v8")
        e("s_and_b64 s[26:27], s[26:27], s[28:29]"); e("s_or_b64 vcc, vcc, s[26:27]"); e("s_nop 1")
        e("v_cndmask_b32 v9, v9, v7, vcc"); e("v_cndmask_b32 v8, v8, v6, vcc")
    e("s_nop 1"); e("v_readfirstlane_b32 s30, v8")

def k_ffn1(name):
    begin(name, 72, 64, lds=0)
    srd(4, 'R'); srd(8, 'Z'); srd(12, 'wg'); srd(16, 'wu'); srd(20, 'H')
    argmax()
    e("s_nop 4"); e("s_mul_i32 s31, s30, 1152")
    e("s_lshl_b32 s3, s2, 7"); e("v_lshlrev_b32 v2, 1, v0"); e("v_add_u32 v2, s3, v2")
    e("v_mov_b32 v3, 0"); e("v_mov_b32 v60, 0"); e("v_mov_b32 v61, 0"); e("s_mov_b32 s24, 0"); e("s_mov_b32 s23, 0x20000"); e("s_mov_b32 s33, 0")
    e(f"L_{name}_k:")
    for j in range(16):
        e(f"buffer_load_ushort v{10+j}, v3, s[8:11], s31 offen offset:{2*j}")
        e(f"s_add_u32 s25, s33, {j*9216}")
        e(f"buffer_load_ushort v{26+j}, v2, s[12:15], s25 offen")
        e(f"buffer_load_ushort v{42+j}, v2, s[16:19], s25 offen")
    e("s_waitcnt vmcnt(0)")
    for j in range(16):
        e(f"v_lshlrev_b32 v{10+j}, 16, v{10+j}"); e(f"v_lshlrev_b32 v{26+j}, 16, v{26+j}"); e(f"v_lshlrev_b32 v{42+j}, 16, v{42+j}")
        e(f"v_fmac_f32 v60, v{10+j}, v{26+j}"); e(f"v_fmac_f32 v61, v{10+j}, v{42+j}")
    e("s_add_u32 s31, s31, 32"); e(f"s_add_u32 s33, s33, {16*9216}"); e("s_add_u32 s24, s24, 1"); e("s_cmp_lt_u32 s24, 36"); e(f"s_cbranch_scc1 L_{name}_k")
    e(f"v_mul_f32 v62, {hex(f2u(-1.4426950408889634))}, v60"); e("v_exp_f32 v62, v62"); e("s_nop 0"); e("v_add_f32 v62, 1.0, v62"); e("v_rcp_f32 v62, v62"); e("s_nop 0")
    e("v_mul_f32 v60, v60, v62"); e("v_mul_f32 v60, v60, v61")
    e("v_lshlrev_b32 v2, 1, v2")
    e("buffer_store_dword v60, v2, s[20:23], 0 offen")
    end(name)

def k_ffn2(name, x1, dst):
    begin(name, 9, 1024, lds=4096)
    srd(4, 'R'); srd(8, 'H'); srd(12, 'wd'); srd(16, x1); srd(20, dst); srd(36, 'Z')
    argmax()
    e("v_lshrrev_b32 v2, 6, v0"); e("s_nop 0"); e("v_readfirstlane_b32 s34, v2")
    e("s_nop 4"); e("s_mul_i32 s31, s34, 1152")
    e(f"s_mul_i32 s33, s34, {288*1152}")
    e("s_lshl_b32 s3, s2, 7"); e("v_lshlrev_b32 v2, 1, v1"); e("v_add_u32 v2, s3, v2")
    e("v_mov_b32 v3, 0"); e("v_mov_b32 v60, 0"); e("s_mov_b32 s24, 0")
    e(f"L_{name}_k:")
    for j in range(16):
        e(f"buffer_load_dword v{10+j}, v3, s[8:11], s31 offen offset:{4*j}")
        e(f"s_add_u32 s25, s33, {j*1152}")
        e(f"buffer_load_ushort v{26+j}, v2, s[12:15], s25 offen")
    e("s_waitcnt vmcnt(0)")
    for j in range(16):
        e(f"v_lshlrev_b32 v{26+j}, 16, v{26+j}"); e(f"v_fmac_f32 v60, v{10+j}, v{26+j}")
    e("s_add_u32 s31, s31, 64"); e(f"s_add_u32 s33, s33, {16*1152}"); e("s_add_u32 s24, s24, 1"); e("s_cmp_lt_u32 s24, 18"); e(f"s_cbranch_scc1 L_{name}_k")
    e("v_lshlrev_b32 v4, 2, v0"); e("ds_write_b32 v4, v60"); e("s_waitcnt lgkmcnt(0)"); e("s_barrier")
    e("s_cmp_lg_u32 s34, 0"); e(f"s_cbranch_scc1 L_{name}_end")
    for w in range(16): e(f"ds_read_b32 v{10+w}, v5 offset:{256*w}")
    e("s_mul_i32 s31, s30, 1152")
    e("buffer_load_ushort v30, v2, s[16:19], s31 offen"); e("buffer_load_ushort v31, v2, s[36:39], s31 offen")
    e("s_waitcnt lgkmcnt(0) vmcnt(0)")
    for w in range(1,16): e(f"v_add_f32 v10, v10, v{10+w}")
    e(f"v_mul_f32 v62, {hex(f2u(-1.4426950408889634))}, v9"); e("v_exp_f32 v62, v62"); e("s_nop 0"); e("v_add_f32 v62, 1.0, v62"); e("v_rcp_f32 v62, v62"); e("s_nop 0")
    e("v_lshlrev_b32 v30, 16, v30"); e("v_lshlrev_b32 v31, 16, v31")
    e("v_fmac_f32 v31, v10, v62"); e("v_add_f32 v30, v30, v31"); e("v_cvt_pk_bf16_f32 v30, v30, v30")
    e("buffer_store_short v30, v2, s[20:23], s31 offen")
    end(name)

def k_empty(name, grid=256):
    begin(name, grid, 256); end(name)

extra = int(sys.argv[2]) if len(sys.argv) > 2 else 0
k_ln('ln1_kernel', 'x', None)
k_gemm('qkv_kernel', 'Z', 'wqkv', 1728, 'QKV', None)
k_attn('attn_kernel')
k_gemm('wo1_kernel', 'O', 'wo', 576, 'X1', 'x')
k_ln('ln2_kernel', 'X1', 'X2')
k_ffn1('ffn1_kernel')
k_ffn2('ffn2a_kernel', 'X1', 'X2')
k_ln('ln3_kernel', 'X2', None)
launches.append(launches[1]); launches.append(launches[2])
k_gemm('wo2_kernel', 'O', 'wo', 576, 'X1', 'X2')
k_ln('ln4_kernel', 'X1', 'out')
launches.append(launches[5])
k_ffn2('ffn2b_kernel', 'X1', 'out')
if extra:
    k_empty('empty_kernel')
    for i in range(extra-1): launches.append(launches[-1])
txt = "\n".join(launches) + '\n.amdgcn_target "amdgcn-amd-amdhsa--gfx950"\n.text\n' + "\n".join(out) + '\n.section .rodata,"a"\n' + "\n".join(".p2align 6\n" + k for k in kds) + "\n"
open(sys.argv[1], 'w').write(txt)
```

```python
import re
RX = re.compile(r'\b([vas])(\d+)\b|\b([vas])\[(\d+):(\d+)\]|\b(vcc|exec|m0|vcc_lo|vcc_hi|exec_lo|exec_hi)\b')
TRANS = ('v_exp_', 'v_log_', 'v_rcp_', 'v_rsq_', 'v_sqrt_', 'v_sin_', 'v_cos_')

def regs(tok):
    out = set()
    for m in RX.finditer(tok):
        if m.group(1): out.add((m.group(1), int(m.group(2))))
        elif m.group(3): out |= {(m.group(3), i) for i in range(int(m.group(4)), int(m.group(5)) + 1)}
        else: out.add(('s', m.group(6).split('_')[0]))
    return out

def split_ops(s):
    ops, cur, d = [], '', 0
    for ch in s:
        if ch == '[': d += 1
        if ch == ']': d -= 1
        if ch == ',' and d == 0: ops.append(cur.strip()); cur = ''
        else: cur += ch
    if cur.strip(): ops.append(cur.strip())
    return ops

def R(kind, n, k=1):
    return f"{kind}{n}" if k == 1 else f"{kind}[{n}:{n+k-1}]"
def v(n, k=1):
    if n >= 256: return R('a', n - 256, k)
    assert n + k <= 256, (n, k)
    return R('v', n, k)
def s(n, k=1): return R('s', n, k)

class I:
    def __init__(self, text):
        self.text = text
        p = text.split(None, 1)
        op = self.op = p[0]
        rest = p[1] if len(p) > 1 else ''
        ops = split_ops(rest)
        mods = ''
        if ops:
            q = ops[-1].split(None, 1); ops[-1] = q[0]; mods = q[1] if len(q) > 1 else ''
        self.mods = mods
        rs = [regs(o) for o in ops]
        U = lambda l: set().union(*l) if l else set()
        self.cls = 'other'; self.w = set(); self.r = set(); self.A = self.C = set(); self.data = set()
        self.dpp = bool(re.search(r'quad_perm|row_|wave_', mods)); self.trans = op.startswith(TRANS)
        self.states = 1; self.lds_dma = False
        if op.startswith('v_mfma'):
            self.cls = 'mfma'; self.w = rs[0]; self.A = rs[1] | rs[2]; self.C = rs[3]; self.r = self.A | self.C
        elif op.startswith('v_'):
            self.cls = 'valu'
            if op == 'v_nop': pass
            elif 'swap' in op: self.w = U(rs); self.r = U(rs)
            elif re.match(r'v_(add|sub|subrev)_co_|v_addc|v_subb|v_mad_u64|v_div_scale', op): self.w = rs[0] | rs[1]; self.r = U(rs[2:])
            else:
                self.w = rs[0]; self.r = U(rs[1:])
                if re.match(r'v_fmac|v_dot2c|v_pk_fmac|v_writelane', op) or self.dpp or 'sdwa' in op: self.r = self.r | rs[0]
        elif op.startswith('buffer_') or op.startswith('global_'):
            self.cls = 'vm'
            cnt = 4 if 'x4' in op else 3 if 'x3' in op else 2 if 'x2' in op else 1
            if re.search(r'\blds\b', mods): self.lds_dma = True; self.r = U(rs) | {('s', 'm0')}
            elif 'load' in op: self.w = rs[0]; self.r = U(rs[1:])
            else:
                self.r = U(rs)
                if cnt >= 3: self.data = rs[0]
                if 'atomic' in op and 'sc0' in mods: self.w = rs[0]
        elif op.startswith('ds_'):
            self.cls = 'ds'
            if 'write' in op: self.r = U(rs)
            else: self.w = rs[0]; self.r = U(rs[1:])
        elif op.startswith('s_load') or op.startswith('s_memtime') or op.startswith('s_memrealtime'):
            self.cls = 'smem'; self.w = rs[0]; self.r = U(rs[1:])
        elif op == 's_nop': self.states = int(ops[0], 0) + 1
        elif re.match(r's_(cmp|bitcmp|cbranch|branch|waitcnt|barrier|endpgm|sleep|setprio|setpc)', op):
            self.cls = 'salu'; self.r = U(rs)
            if 'vcc' in op: self.r = self.r | {('s', 'vcc')}
        elif op.startswith('s_'):
            self.cls = 'salu'; self.w = rs[0]; self.r = U(rs[1:])
            if 'saveexec' in op: self.w = self.w | {('s', 'exec')}
            if re.match(r's_(addk|mulk|bitset)', op): self.r = self.r | rs[0]
        else: raise ValueError(text)

def need(p, c):
    n = 0
    isv = lambda x: {r for r in x if r[0] in 'va'}
    iss = lambda x: {r for r in x if r[0] == 's'}
    if p.cls == 'mfma':
        if c.cls == 'mfma':
            if p.w & c.A: n = 8
            if p.w & c.C and p.w != c.C: n = max(n, 6)
            if p.w & c.w and not (p.w & c.C): n = max(n, 2)
        elif c.cls in ('valu', 'vm', 'ds'):
            if p.w & (c.r | c.w): n = 8
            if c.cls == 'valu' and p.C & c.w: n = max(n, 3)
    elif p.cls == 'valu':
        wv, ws = isv(p.w), iss(p.w)
        dot = p.op.startswith('v_dot')
        if c.cls == 'mfma' and wv & c.r: n = 3 if dot else 2
        if dot and wv & (c.r | c.w) and c.cls in ('valu', 'vm', 'ds'):
            if c.op == p.op:
                srcs = split_ops(c.text.split(None, 1)[1])
                ab = regs(srcs[1]) | regs(srcs[2])
                if wv & ab: n = max(n, 3)
            else: n = max(n, 3)
        if c.cls == 'valu':
            if wv & c.r:
                if c.dpp or c.op.startswith('v_permlane'): n = max(n, 2)
                if c.op.startswith('v_readlane') or c.op.startswith('v_readfirstlane'): n = max(n, 1)
                if p.trans or 'sdwa' in p.op: n = max(n, 1)
            if ws & c.r: n = max(n, 4 if 'lane' in c.op else 2)
        elif p.trans and wv & c.r: n = max(n, 1)
        if c.cls == 'vm' and ws & c.r: n = max(n, 5)
    elif p.cls == 'salu':
        if ('s', 'm0') in p.w and c.lds_dma: n = 1
    elif p.cls == 'vm' and p.data & c.w:
        n = 2 if c.cls in ('valu', 'mfma') else 1
    return n

class Asm:
    def __init__(self):
        self.out = []; self.hist = []
        self.vm = {}; self.lg = {}
        self.nid = 0; self.snap = {}; self.dead = False; self.seen = {}; self.nops = 0; self.last = None
    def raw(self, t): self.out.append(t)
    def c(self, t): self.out.append('; ' + t)
    def _age(self, k):
        for h in self.hist: h[1] += k
        self.hist = [h for h in self.hist if h[1] < 10]
    def _wait(self, vm=None, lg=None):
        t = []
        if vm is not None:
            vm = min(vm, 63); t.append(f'vmcnt({vm})'); self.vm = {k: e for k, e in self.vm.items() if e[0] < vm}
        if lg is not None:
            if any(e[2] for e in self.lg.values()): lg = 0
            lg = min(lg, 15); t.append(f'lgkmcnt({lg})'); self.lg = {k: e for k, e in self.lg.items() if e[0] < lg}
        if t: self.out.append('s_waitcnt ' + ' '.join(t)); self._age(1)
    def wait(self, *toks):
        vm = [self.vm[t][0] for t in toks if t in self.vm]; lg = [self.lg[t][0] for t in toks if t in self.lg]
        self._wait(min(vm) if vm else None, min(lg) if lg else None)
    def wvm(self, n=0): self._wait(vm=n)
    def wlg(self, n=0): self._wait(lg=n)
    def wall(self): self._wait(0, 0)
    def barrier(self, lg=True):
        if lg and self.lg: self.wlg(0)
        self('s_barrier')
    def __call__(self, text):
        if '\n' in text:
            for l in text.strip().split('\n'):
                if l.strip(): self(l.strip())
            return self.last
        i = I(text)
        touch = i.r | i.w
        vm = [e[0] for e in self.vm.values() if e[1] & touch]; lg = [e[0] for e in self.lg.values() if e[1] & touch]
        if vm or lg: self._wait(min(vm) if vm else None, min(lg) if lg else None)
        n = max([need(p, i) - age for p, age in self.hist] + [0])
        if n > 0: self.out.append(f's_nop {n-1}'); self._age(n); self.nops += n
        self.out.append(text); self._age(i.states); self.hist.append([i, 0])
        tok = None
        if i.cls == 'vm' or i.cls in ('ds', 'smem'):
            q = self.vm if i.cls == 'vm' else self.lg
            for e in q.values(): e[0] += 1
            self.nid += 1; tok = self.nid; q[tok] = [0, i.w, i.cls == 'smem']
        if i.op.startswith('s_cbranch') or i.op == 's_branch':
            L = text.split()[1]
            if L in self.seen:
                vm0, lg0 = self.seen[L]
                assert all(k in vm0 or not e[1] for k, e in self.vm.items()), ('loop vm', L)
                assert all(k in lg0 or not e[1] for k, e in self.lg.items()), ('loop lg', L)
            else:
                self.snap.setdefault(L, []).append(([[p, a] for p, a in self.hist], {k: list(e) for k, e in self.vm.items()}, {k: list(e) for k, e in self.lg.items()}))
        if i.op in ('s_branch', 's_endpgm'): self.dead = True
        self.last = tok
        return tok
    def untracked(self, text):
        t = self(text); self.vm[t][1] = set(); return t
    def label(self, L, loop=False):
        st = self.snap.pop(L, [])
        if not self.dead: st.append((self.hist, self.vm, self.lg))
        hist, vm, lg = [], {}, {}
        for h, a, b in st:
            hist += [[p, x] for p, x in h]
            for dst, src in ((vm, a), (lg, b)):
                for k, e in src.items():
                    if k in dst: dst[k][0] = min(dst[k][0], e[0])
                    else: dst[k] = list(e)
        self.hist, self.vm, self.lg, self.dead = hist, vm, lg, False
        self.seen[L] = (set(vm), set(lg))
        self.out.append(L + ':')
    def text(self):
        assert not self.snap, self.snap.keys()
        return '\n'.join(self.out) + '\n'
```

```python
import sys, math
from asmlib import *
NAME = 'interleave_layers__sliding_local_dilated__moe_arch_mod__prompt'
FL0 = 0x1000; WP = 0x10000; WOP = 0x200000
OB = (0x400000, 0x600000); OR_ = (0x800000, 0x840000); X1 = 0x900000
ST = (0xC00000, 0xC40000); CAND = (0xC80000, 0xC81000); CZ = (0xD00000, 0xD40000)
PY = (0xE00000, 0xE80000); NR = 0xF00000; OF = (0xF10000, 0xF20000); XF = 0xF30000; STAMP = 0xF80000
WSN = 0x1000000; OOB = 0x40000000
LH = 73728; GATE = 83200; UP = GATE + 36864; SCR = UP + 36864
NM = SCR; ZR = SCR + 1280; WRL = ZR + 1152; HW = WRL + 1152; WIN = HW + 2048
assert WIN + 16 <= 163840 and HW % 256 == 0
sX, sWS, sOUT, sWQ, sWO, sWR, sWG, sWU, sWD, sCD = [s(8 + 4 * i, 4) for i in range(10)]
sXCD, sLI, sCG, sW, sT, sJ, sP, sNON, sSW, sF, sCNT = [s(48 + i) for i in range(11)]
t0, t1, t2, t3, t4 = 's3', 's4', 's5', 's6', 's7'
sCID, sRED, sBIAS = 's59', 's60', 's[62:63]'
sMK = [s(64 + 2 * i, 2) for i in range(4)]; sSV = 's[72:73]'; sCM = 's[74:75]'
sKEY, sM, sSTD = 's76', 's77', 's61'
STAMPS = list(range(78, 100)) + list(range(20, 28)) + [100, 101]
vL, vXe, vXo, vHe, vHo, vL16, vI, vG = range(8)
vM = 8; vPM = 12; vSEL = 14; vXB = 16; vOB = 17; vGI = 18; vRA = 19
vA, vB, vC, vD, vE, vF = 22, 23, 24, 25, 26, 27
PAIR = 28; RSK = 38; CS = 44; RES = 58; ACC2 = 28; WRP = 48
XFB = 68; ACC = 108; WDF = 188
Qb, Kb, Vb, Rb = ACC, ACC + 20, ACC + 40, ACC + 60
def Wf(ks, n): return (256 + 16 * ks if ks < 16 else 224 + 16 * (ks - 16)) + 4 * n
BIG = 0xf149f2ca
ONES = 0x3f803f80
def f32(x):
    import struct
    return '0x%08x' % struct.unpack('<I', struct.pack('<f', x))[0]

class G:
    def __init__(self, **o):
        self.o = dict(stamps=False, wsc=' sc1', depth=3, stop=99); self.o.update(o)
        self.a = Asm(); self.ns = 0; self.names = []; self.nl = 0
    def L(self, p='L'):
        self.nl += 1; return f'{p}_{self.nl}'
    def stamp(self, name):
        if not self.o['stamps']: return
        a = self.a
        L = self.L()
        a.wlg(0); a(f's_memtime s[0:1]'); a.wlg(0)
        a(f's_mov_b32 s{STAMPS[self.ns]}, s0'); self.ns += 1; self.names.append(name)
    def only(self, cond, fn):
        L = self.L(); self.a(cond); self.a(f's_cbranch_scc0 {L}'); fn(); self.a.label(L)
    def exec(self, m):
        a = self.a
        if m == -1: a('s_mov_b64 exec, -1')
        else:
            lo, hi = m & 0xffffffff, m >> 32
            a(f's_mov_b32 exec_lo, 0x{lo:x}'); a(f's_mov_b32 exec_hi, 0x{hi:x}')
    def poll(self, body):
        a = self.a; L = self.L('P')
        a(f's_mov_b32 {sCNT}, 20000'); a.label(L)
        a(f's_sub_u32 {sCNT}, {sCNT}, 1'); a('s_cbranch_scc1 L_exit')
        body(); a(f's_cbranch_vccnz {L}')
    def xsum(self, rs, tmp, op='v_add_f32', full=True):
        a = self.a
        for sw in ('v_permlane32_swap_b32', 'v_permlane16_swap_b32'):
            if full:
                for k, r in enumerate(rs): a(f'v_mov_b32 {v(tmp+k)}, {v(r)}')
            for k, r in enumerate(rs): a(f'{sw} {v(r)}, {v(tmp+k)}')
            for k, r in enumerate(rs): a(f'{op} {v(r)}, {v(r)}, {v(tmp+k)}')
    def dpp(self, op, rs, mods):
        for m in mods:
            for r in rs: self.a(f'{op}_dpp {v(r)}, {v(r)}, {v(r)} {m} row_mask:0xf bank_mask:0xf')

    def prologue(self):
        a = self.a
        a('s_cmp_ge_u32 s2, 256'); a('s_cbranch_scc1 L_exit')
        if self.o['stamps']: a('s_memrealtime s[100:101]')
        for srd, off in ((sWQ, 8), (sWO, 16), (sX, 0), (sWS, 80), (sWD, 56), (sWG, 40), (sWU, 48), (sWR, 32), (sOUT, 64)):
            b = int(srd[2:srd.index(':')]); a(f's_load_dwordx2 s[{b}:{b+1}], s[0:1], {off}')
        a('s_getpc_b64 s[44:45]')
        for srd, n in ((sWQ, 1990656), (sWO, 663552), (sX, 2359296), (sWS, WSN), (sWD, 5308416), (sWG, 5308416), (sWU, 5308416), (sWR, 1152), (sOUT, 2359296), (sCD, 'L_exit-L_pc')):
            b = int(srd[2:srd.index(':')])
            if srd == sWQ: a.raw('L_pc:')
            a(f's_mov_b32 s{b+2}, {n}'); a(f's_mov_b32 s{b+3}, 0x20000')
        a(f'''v_lshrrev_b32 v1, 6, v0
        s_and_b32 {sXCD}, s2, 7
        s_lshr_b32 {sLI}, s2, 3
        v_readfirstlane_b32 {sW}, v1
        v_and_b32 v0, 63, v0
        s_and_b32 {sCG}, {sLI}, 7
        s_lshr_b32 {t0}, {sLI}, 3
        s_lshl_b32 {sT}, {sXCD}, 2
        s_add_u32 {sT}, {sT}, {t0}
        s_lshr_b32 {sP}, {sT}, 4
        s_and_b32 {sJ}, {sT}, 15
        s_mul_i32 {sF}, {sXCD}, 18
        s_add_u32 {sF}, {sF}, {sLI}
        v_lshlrev_b32 {v(vA)}, 7, v0
        s_lshl_b32 {t0}, {sCG}, 13''')
        self.only(f's_cmp_eq_u32 {sW}, 0', lambda: a(f'buffer_load_dword v255, {v(vA)}, {sCD}, {t0} offen'))
        a(f'''v_and_b32 {v(vI)}, 15, v0
        v_lshrrev_b32 {v(vG)}, 4, v0
        v_lshlrev_b32 {v(vL16)}, 4, v0
        v_lshrrev_b32 {v(vA)}, 3, v0
        v_and_b32 {v(vB)}, 7, v0''')
        self.stamp('start')

    def prep(self):
        a = self.a
        Lwo, Lj, Lno = self.L(), self.L(), self.L()
        a(f'''v_bfe_u32 {v(vE)}, v0, 2, 2
        v_lshlrev_b32 {v(vE)}, 7, {v(vE)}
        v_and_b32 {v(vF)}, 3, v0
        s_cmp_ge_u32 {sLI}, 27
        s_cbranch_scc1 {Lwo}''')
        a(f'''s_mul_i32 {t0}, {sXCD}, 27
        s_add_u32 {t0}, {t0}, {sLI}
        s_mul_i32 {t1}, {t0}, 5462
        s_lshr_b32 {t1}, {t1}, 16
        s_mul_i32 {t2}, {t1}, 12
        s_sub_u32 {t2}, {t0}, {t2}
        v_mul_u32_u24 {v(vC)}, 3456, {v(vA)}
        v_lshl_add_u32 {v(vC)}, {v(vB)}, 4, {v(vC)}
        s_lshl_b32 {t3}, {t1}, 2
        s_add_u32 {t3}, {t3}, {sW}
        s_mul_i32 {t3}, {t3}, {8*3456}
        s_mul_i32 {t4}, {t2}, 288
        s_add_u32 {t3}, {t3}, {t4}
        s_mul_i32 {t4}, {sW}, 3072
        s_add_u32 m0, {t4}, {GATE}''')
        a(f'buffer_load_dwordx4 {v(vC)}, {sWQ}, {t3} offen lds')
        a(f's_add_u32 m0, {t4}, {GATE + 896}')
        a(f'buffer_load_dwordx4 {v(vC)}, {sWQ}, {t3} offen offset:128 lds')
        a(f's_add_u32 m0, {t4}, {GATE + 2*896}'); self.exec(0x0303030303030303)
        a(f'buffer_load_dwordx4 {v(vC)}, {sWQ}, {t3} offen offset:256 lds'); self.exec(-1)
        a(f's_load_dword {sNON}, s[12:13], 0')
        a(f'v_mul_u32_u24 {v(vD)}, 3072, {v(vG)}'); a(f'v_add3_u32 {v(vD)}, {v(vD)}, {v(vE)}, 0')
        a(f's_mul_i32 {t4}, {sW}, 72')
        for k, (x0, cm) in enumerate(((0, 8), (40, 8), (32, 0))):
            r = 60 + k
            a(f's_add_u32 {t3}, {t4}, {x0}')
            a(f'v_mul_u32_u24 {v(r)}, {cm}, {v(vF)}'); a(f'v_add_u32 {v(r)}, {t3}, {v(r)}')
            a(f'v_lshrrev_b32 v63, 7, {v(r)}'); a(f'v_mul_u32_u24 v63, 896, v63'); a(f'v_add3_u32 {v(r)}, {v(r)}, v63, {v(vD)}')
            a(f'v_add_u32 {v(r)}, {GATE}, {v(r)}')
        a(f'''s_and_b32 {t3}, {t2}, 3
        s_lshl_b32 {t0}, {t3}, 6
        s_lshl_b32 {t3}, {t3}, 2
        s_add_u32 {t3}, {t3}, {sW}
        s_mul_i32 {t3}, {t3}, {2*62208}
        s_mul_i32 {t4}, {t1}, 3456
        s_add_u32 {t3}, {t3}, {t4}
        s_add_u32 {t3}, {t3}, {WP}
        s_lshr_b32 {t2}, {t2}, 2
        s_mul_i32 {t1}, {t1}, 3
        s_add_u32 {t0}, {t0}, {t1}
        s_add_u32 {sCID}, {t0}, {t2}
        v_lshrrev_b32 v63, 1, {v(vI)}
        v_mul_u32_u24 v63, {62208-128}, v63
        v_lshl_add_u32 v63, {v(vI)}, 6, v63
        v_lshl_add_u32 v63, {v(vG)}, 4, v63''')
        a.wvm(0); a.barrier()
        for k in range(3):
            for jh in range(2): a(f'ds_read_b64_tr_b16 {v(XFB+4*k+2*jh, 2)}, {v(60+k)} offset:{512*jh}')
        a(f's_lshl_b32 {t4}, {t2}, 10'); a(f's_add_u32 {t4}, {t4}, {t3}')
        a(f'buffer_store_dwordx4 {v(XFB,4)}, {v(vL16)}, {sWS}, {t4} offen sc1')
        a(f's_add_u32 {t4}, {t4}, 62208')
        a(f'buffer_store_dwordx4 {v(XFB+4,4)}, {v(vL16)}, {sWS}, {t4} offen sc1')
        a(f's_lshl_b32 {t4}, {t2}, 7'); a(f's_add_u32 {t4}, {t4}, {t3}'); self.exec(0x000f000f000f000f)
        a(f'buffer_store_dwordx4 {v(XFB+8,4)}, v63, {sWS}, {t4} offen offset:3072 sc1'); self.exec(-1)
        a(f's_branch {Lj}')
        a.label(Lwo)
        a(f'''s_sub_u32 {t0}, {sLI}, 27
        s_lshl_b32 {t0}, {t0}, 3
        s_add_u32 {t0}, {t0}, {sXCD}
        s_min_u32 {t0}, {t0}, 35
        s_lshr_b32 {t1}, {t0}, 1
        s_and_b32 {t2}, {t0}, 1
        s_lshl_b32 {sCID}, {t2}, 5
        s_add_u32 {sCID}, {sCID}, {t1}
        s_add_u32 {sCID}, {sCID}, 256''')
        a(f'''s_lshr_b32 {t3}, {sW}, 1
        s_lshl_b32 {t3}, {t3}, 2
        s_lshl_b32 {t4}, {sW}, 3
        s_add_u32 {t3}, {t3}, {t4}
        s_mul_i32 {t4}, {t1}, 36
        s_add_u32 {t3}, {t3}, {t4}
        s_sub_u32 {t4}, {t1}, 16
        s_lshl_b32 {t4}, {t4}, 2
        s_add_u32 {t4}, {t4}, {sW}
        s_mul_i32 {t4}, {t4}, 72
        s_add_u32 {t4}, {t4}, 16
        s_cmp_ge_u32 {t1}, 16
        s_cselect_b32 {t3}, {t4}, {t3}
        s_cselect_b32 {t4}, 32, 0
        v_lshrrev_b32 {v(vC)}, 2, {v(vA)}
        v_mul_u32_u24 {v(vC)}, {t4}, {v(vC)}
        v_add_u32 {v(vC)}, {v(vC)}, {v(vA)}
        v_mul_u32_u24 {v(vC)}, 1152, {v(vC)}
        v_lshl_add_u32 {v(vC)}, {v(vB)}, 4, {v(vC)}
        s_mul_i32 {t3}, {t3}, 1152
        s_mul_i32 {t4}, {t2}, 576
        s_add_u32 {t3}, {t3}, {t4}
        s_mul_i32 {t4}, {sW}, 5120''')
        for q in range(5):
            a(f's_add_u32 m0, {t4}, {GATE + 896*q}')
            if q == 4: self.exec(0x0f0f0f0f0f0f0f0f)
            a(f'buffer_load_dwordx4 {v(vC)}, {sWO}, {t3} offen offset:{128*q} lds')
        self.exec(-1)
        a(f's_load_dword {sNON}, s[12:13], 0')
        a(f'v_mul_u32_u24 {v(vD)}, 5120, {v(vG)}'); a(f'v_add_u32 {v(vD)}, {v(vD)}, {v(vE)}')
        a(f's_mul_i32 {t4}, {sW}, 144')
        for k in range(5):
            r = 58 + k
            a(f's_add_u32 {t3}, {t4}, {64*(k>>1) + 8*(k&1)}')
            if k < 4: a(f'v_lshlrev_b32 {v(r)}, 4, {v(vF)}')
            else: a(f'v_and_b32 {v(r)}, 1, {v(vF)}'); a(f'v_lshlrev_b32 {v(r)}, 3, {v(r)}')
            a(f'v_add_u32 {v(r)}, {t3}, {v(r)}')
            a(f'v_lshrrev_b32 v63, 7, {v(r)}'); a(f'v_mul_u32_u24 v63, 896, v63'); a(f'v_add3_u32 {v(r)}, {v(r)}, v63, {v(vD)}')
            a(f'v_add_u32 {v(r)}, {GATE}, {v(r)}')
        a(f'''s_lshl_b32 {t3}, {t2}, 2
        s_add_u32 {t3}, {t3}, {sW}
        s_mul_i32 {t3}, {t3}, 82944
        s_mul_i32 {t4}, {t1}, 4608
        s_add_u32 {t3}, {t3}, {t4}
        s_add_u32 {t3}, {t3}, {WOP}
        s_add_u32 {t4}, {t3}, 4096
        v_lshlrev_b32 v63, 7, {v(vG)}
        v_lshl_add_u32 v63, {v(vI)}, 4, v63''')
        a.wvm(0); a.barrier()
        for k in range(5):
            for jh in range(2): a(f'ds_read_b64_tr_b16 {v(XFB+4*k+2*jh, 2)}, {v(58+k)} offset:{512*jh}')
        for k in range(4): a(f'buffer_store_dwordx4 {v(XFB+4*k,4)}, {v(vL16)}, {sWS}, {t3} offen offset:{1024*k} sc1')
        self.exec(0x00ff00ff00ff00ff)
        a(f'buffer_store_dwordx4 {v(XFB+16,4)}, v63, {sWS}, {t4} offen sc1'); self.exec(-1)
        a.label(Lj)
        self.stamp('prepst')
        a(f'''v_mov_b32 v64, -1
        v_mov_b32 v65, -1
        v_mov_b32 v66, -1
        v_mov_b32 v67, -1
        s_lshl_b32 {t0}, {sT}, 2
        s_add_u32 {t0}, {t0}, {sW}
        s_mul_i32 {t0}, {t0}, 1152
        s_mul_i32 {t1}, {sCG}, 144
        s_add_u32 {t0}, {t0}, {t1}''')
        self.exec(0x1ff)
        for l in range(2): a(f's_add_u32 {t1}, {t0}, {CZ[l]}'); tk = a(f'buffer_store_dwordx4 v[64:67], {v(vL16)}, {sWS}, {t1} offen sc1')
        a(f's_sub_u32 {sRED}, {sLI}, 24'); a(f's_lshl_b32 {sRED}, {sRED}, 3'); a(f's_add_u32 {sRED}, {sRED}, {sXCD}')
        def pz():
            self.exec(3); a(f's_lshl_b32 {t1}, {sRED}, 5'); a(f's_add_u32 {t1}, {t1}, {NR}')
            a(f'buffer_store_dwordx4 v[64:67], {v(vL16)}, {sWS}, {t1} offen sc1')
        self.only(f's_cmp_lt_u32 {sRED}, 36', pz)
        def py():
            self.exec((1 << 40) - 1)
            a(f's_lshl_b32 {t0}, {sF}, 2'); a(f's_add_u32 {t0}, {t0}, {sW}'); a(f's_mul_i32 {t0}, {t0}, 640')
            for l in range(2): a(f's_add_u32 {t1}, {t0}, {PY[l]}'); a(f'buffer_store_dwordx4 v[64:67], {v(vL16)}, {sWS}, {t1} offen sc1')
        self.only(f's_cmp_lt_u32 {sLI}, 18', py)
        self.exec(-1)
        a(f'''v_and_b32 {v(vC)}, 6, {v(vA)}
        v_xor_b32 {v(vC)}, {v(vC)}, {v(vB)}
        v_lshlrev_b32 {v(vC)}, 4, {v(vC)}
        v_mul_u32_u24 {v(vD)}, 2304, {v(vA)}
        v_add_u32 {v(vC)}, {v(vC)}, {v(vD)}
        s_lshl_b32 {t0}, {sJ}, 7
        s_add_u32 {t0}, {t0}, {sP}
        s_mul_i32 {t0}, {t0}, 1152
        s_mul_i32 {t1}, {sW}, 36864
        s_add_u32 {t1}, {t1}, {t0}
        s_mul_i32 {t2}, {sW}, 18432''')
        first = None
        for rg in range(2):
            if rg: a(f's_add_u32 {t1}, {t1}, 18432')
            for blk in range(9):
                a(f's_add_u32 m0, {t2}, {rg*9216 + blk*896}')
                tx = a(f'buffer_load_dwordx4 {v(vC)}, {sX}, {t1} offen offset:{128*blk} lds')
        a.wvm(18); a.barrier()
        def flag():
            a(f's_mul_i32 {sNON}, {sNON}, 1664525'); a(f's_add_u32 {sNON}, {sNON}, 1013904223')
        flag()
        a(f'v_mov_b32 v64, {sNON}')
        def fl():
            self.exec(1); a(f's_lshl_b32 {t1}, {sCID}, 4'); a(f's_add_u32 {t1}, {t1}, {FL0}')
            a(f'buffer_store_dword v64, {v(vL16)}, {sWS}, {t1} offen sc1'); self.exec(-1)
        self.only(f's_cmp_eq_u32 {sW}, 0', fl)
        self.stamp('flag0')
        def halo():
            a(f's_cmp_eq_u32 {sJ}, 0'); a(f's_cselect_b32 {t1}, 0, 18432'); a(f's_sub_u32 {t1}, {t0}, {t1}')
            for blk in range(9):
                a(f's_mov_b32 m0, {LH + blk*(1040-128)}')
                a(f'buffer_load_dwordx4 {v(vC)}, {sX}, {t1} offen offset:{128*blk} lds')
        self.only(f's_cmp_eq_u32 {sW}, 3', halo)
        def wr():
            a(f's_mov_b32 m0, {WRL}'); a(f'buffer_load_dwordx4 {v(vL16)}, {sWR}, 0 offen lds')
            self.exec(0xff); a(f'buffer_load_dwordx4 {v(vL16)}, {sWR}, 0 offen offset:1024 lds'); self.exec(-1)
        self.only(f's_cmp_eq_u32 {sW}, 2', wr)
        a(f'buffer_load_dwordx4 v[56:59], {v(vL16)}, {sWR}, 0 offen')
        tw = a(f'buffer_load_dwordx4 v[60:63], {v(vL16)}, {sWR}, 0 offen offset:1024')
        def ffn0():
            a(f'''v_mul_u32_u24 {v(vD)}, 1152, {v(vA)}
            v_lshl_add_u32 {v(vD)}, {v(vB)}, 4, {v(vD)}
            s_lshl_b32 {t1}, {sF}, 2
            s_add_u32 {t1}, {t1}, {sW}
            s_mul_i32 {t1}, {t1}, 9216
            s_mul_i32 {t2}, {sW}, 9216''')
            for blk in range(9):
                a(f's_add_u32 m0, {t2}, {UP + blk*896}')
                a(f'buffer_load_dwordx4 {v(vD)}, {sWD}, {t1} offen offset:{128*blk} lds')
            self.gu_dma(0, range(9))
        self.only(f's_cmp_lt_u32 {sLI}, 18', ffn0)
        self.consts()
        a.wait(tw)
        a(f's_mov_b32 {t0}, {ONES}'); a(f'v_mov_b32 {v(vA)}, 0')
        for k in range(8): a(f'v_dot2_f32_bf16 {v(vA)}, v{56+k}, {t0}, {v(vA)}')
        self.dpp('v_add_f32', [vA], ['row_ror:8', 'row_ror:4', 'row_ror:2', 'row_ror:1']); self.xsum([vA], vB)
        a(f'v_readfirstlane_b32 {sSW}, {v(vA)}')
        a(f's_mul_i32 {t2}, {sW}, 18432'); a(f'v_add_u32 {v(vA)}, {t2}, {v(vL16)}')
        a(f's_lshl_b32 {t2}, {sW}, 6'); a(f's_add_u32 {t2}, {t2}, {NM + 64}')
        a(f'v_lshrrev_b32 {v(vB)}, 3, v0'); a(f'v_lshl_add_u32 {v(vB)}, {v(vB)}, 2, {t2}')
        self.stats1(vA, [(rg * 9216, 1024) for rg in range(2)], vB, [0, 8])
        def hs():
            a(f'v_add_u32 {v(vA)}, {LH}, {v(vL16)}'); a(f'v_subrev_u32 {v(vB)}, 256, {v(vB)}')
            self.stats1(vA, [(0, 1040)], vB, [8], dup=True)
        self.only(f's_cmp_eq_u32 {sW}, 3', hs)
        self.ones()
        def hz():
            a(f'v_mov_b32 v60, 0\nv_mov_b32 v61, 0\nv_mov_b32 v62, 0\nv_mov_b32 v63, 0\nv_add_u32 {v(vA)}, {HW}, {v(vL16)}')
            a(f'ds_write_b128 {v(vA)}, v[60:63]'); a(f'ds_write_b128 {v(vA)}, v[60:63] offset:1024')
        self.only(f's_cmp_eq_u32 {sW}, 1', hz)
        self.stamp('stats')
        def p0():
            a(f's_lshr_b32 {t1}, {sCG}, 1'); a(f's_lshl_b32 {t1}, {t1}, 10'); a(f's_add_u32 {t1}, {t1}, {FL0}')
            self.exec((1 << 54) - 1)
            def b(): a(f'buffer_load_dword {v(vA)}, {v(vL16)}, {sWS}, {t1} offen sc1'); a(f'v_cmp_ne_u32 vcc, {sNON}, {v(vA)}')
            self.poll(b); self.exec(-1)
        self.only(f's_cmp_eq_u32 {sW}, 0', p0)
        a.wvm(9)
        a.barrier()
        self.stamp('h0')

    def ones(self):
        a = self.a
        def f():
            a(f'v_mul_u32_u24 {v(vA)}, 1040, v0'); a(f'v_add_u32 {v(vA)}, {LH + 1024}, {v(vA)}')
            for k in range(4): a(f'v_mov_b32 v{60+k}, {ONES}')
            self.exec(0x1ff); a(f'ds_write_b128 {v(vA)}, v[60:63]'); self.exec(-1)
        self.only(f's_cmp_eq_u32 {sW}, 2', f)

    def gu_dma(self, mat, qs):
        a = self.a
        a(f'''v_bfe_u32 {v(vE)}, v0, 2, 2
        v_lshl_add_u32 {v(vE)}, {v(vG)}, 3, {v(vE)}
        v_mul_u32_u24 {v(vE)}, 9216, {v(vE)}
        v_and_b32 {v(vF)}, 1, {v(vG)}
        v_xor_b32 {v(vF)}, {v(vF)}, v0
        v_xor_b32 {v(vF)}, {2*mat}, {v(vF)}
        v_and_b32 {v(vF)}, 3, {v(vF)}
        v_lshl_add_u32 {v(vE)}, {v(vF)}, 4, {v(vE)}
        s_lshr_b32 {t1}, {sW}, 1
        s_mul_i32 {t1}, {t1}, 294912
        s_and_b32 {t2}, {sW}, 1
        s_mul_i32 {t2}, {t2}, 36864
        s_add_u32 {t1}, {t1}, {t2}
        s_lshl_b32 {t2}, {sF}, 6
        s_add_u32 {t1}, {t1}, {t2}
        s_lshl_b32 {t2}, {sW}, 10''')
        for q in qs:
            a(f's_add_u32 m0, {t2}, {(UP if mat else GATE) + 4096*q}')
            a(f's_add_u32 {t3}, {t1}, {589824*q}')
            a(f'buffer_load_dwordx4 {v(vE)}, {sWU if mat else sWG}, {t3} offen lds')

    def stats1(self, va, groups, vdst, slots, dup=False):
        a = self.a
        n = len(groups)
        for k, (o, st) in enumerate(groups):
            for blk in range(9): a(f'ds_read_b128 {v(ACC + 36*k + 4*blk, 4)}, {v(va)} offset:{o + st*blk}')
        a(f's_mov_b32 {t0}, {ONES}')
        S = [28 + 2*k for k in range(n)]
        for k in range(n):
            for e in range(36):
                x = v(ACC + 36*k + e)
                a(f'v_dot2_f32_bf16 {v(S[k])}, {x}, {t0}, {v(S[k]) if e else 0}')
                a(f'v_dot2_f32_bf16 {v(S[k]+1)}, {x}, {x}, {v(S[k]+1) if e else 0}')
        self.dpp('v_add_f32', range(28, 28 + 2*n), ['quad_perm:[1,0,3,2]', 'quad_perm:[2,3,0,1]', 'row_half_mirror'])
        a(f's_mov_b32 {t0}, {f32(1/576)}')
        for k in range(n):
            a(f'''v_mul_f32 {v(S[k])}, {f32(-1/576)}, {v(S[k])}
            v_mov_b32 v40, {f32(1e-5)}
            v_fma_f32 {v(S[k]+1)}, {v(S[k]+1)}, {t0}, v40
            v_fma_f32 {v(S[k]+1)}, -{v(S[k])}, {v(S[k])}, {v(S[k]+1)}
            v_max_f32 {v(S[k]+1)}, v40, {v(S[k]+1)}
            v_rsq_f32 {v(S[k]+1)}, {v(S[k]+1)}''')
        self.exec(0x0101010101010101)
        for k in range(n):
            a(f'ds_write2_b32 {v(vdst)}, {v(S[k])}, {v(S[k]+1)} offset0:{slots[k]} offset1:{80+slots[k]}')
            if dup: a(f'ds_write2_b32 {v(vdst)}, {v(S[k])}, {v(S[k]+1)} offset0:0 offset1:80')
        self.exec(-1)

    def consts(self):
        a = self.a
        a(f'''v_lshrrev_b32 v28, 3, {v(vI)}
        v_mul_u32_u24 v28, 9216, v28
        v_and_b32 v29, 7, {v(vI)}
        v_lshl_add_u32 v30, {v(vG)}, 7, v28
        v_lshl_add_u32 {v(vXB)}, v29, 4, v30
        v_and_b32 v31, 6, v29
        v_xor_b32 v32, v31, {v(vG)}
        v_lshlrev_b32 v32, 4, v32
        v_lshl_add_u32 v32, v29, 7, v32
        v_add_u32 {v(vXe)}, v32, v28
        v_xor_b32 {v(vXo)}, 64, {v(vXe)}
        v_cmp_gt_u32 vcc, 8, {v(vI)}
        v_mov_b32 v33, {LH + 1024}
        v_add_u32 v34, {LH - 9216}, {v(vXe)}
        v_add_u32 v35, {LH - 9216}, {v(vXo)}
        v_cndmask_b32 {v(vHe)}, v34, v33, vcc
        v_cndmask_b32 {v(vHo)}, v35, v33, vcc''')
        a(f's_mul_i32 {t0}, {sCG}, 9'); a(f's_mul_i32 {t1}, {sW}, 18432')
        a(f'v_lshl_add_u32 v33, v29, 7, v28'); a(f'v_add_u32 v33, {t1}, v33')
        for P in range(3):
            a(f's_add_u32 {t2}, {t0}, {4*P}')
            if P < 2: a(f'v_add_u32 v34, {t2}, {v(vG)}')
            else: a(f'v_mov_b32 v34, {t2}')
            a(f'''v_lshrrev_b32 v35, 3, v34
            v_and_b32 v34, 7, v34
            v_xor_b32 v34, v34, v31
            v_lshl_add_u32 v35, v35, 10, v33
            v_lshl_add_u32 {v(vRA+P)}, v34, 4, v35''')
        a(f'v_and_b32 v34, 1, {v(vG)}'); a(f'v_lshl_add_u32 {v(vRA+2)}, v34, 3, {v(vRA+2)}')
        a(f'''v_lshlrev_b32 v34, 14, v34
        v_lshrrev_b32 v35, 1, {v(vG)}
        v_lshl_add_u32 v34, v35, 8, v34
        v_lshl_add_u32 {v(vOB)}, {v(vI)}, 4, v34
        v_lshlrev_b32 v34, 10, {v(vG)}
        v_lshl_add_u32 {v(vGI)}, {v(vI)}, 2, v34''')
        a(f'v_mov_b32 v36, 0x{BIG:x}'); a('v_mov_b32 v37, 0xffff'); a('v_mov_b32 v38, 0xffff0000')
        for r in range(4):
            a(f'''v_lshl_add_u32 v34, {v(vG)}, 2, {r}
            v_cmp_le_u32 {sMK[r]}, v34, {v(vI)}
            v_sub_u32 v35, {v(vI)}, v34
            v_and_b32 v35, 8, v35
            v_cmp_eq_u32 vcc, 0, v35
            v_cndmask_b32 {v(vM+r)}, v36, 0, vcc
            v_cndmask_b32 v{40+r}, 0, v{37+(r&1)}, {sMK[r]}''')
        a(f'v_or_b32 {v(vPM)}, v40, v41'); a(f'v_or_b32 {v(vPM+1)}, v42, v43')
        a(f'''v_and_b32 v34, 0x33, v0
        v_mov_b32 v35, 0x3f80
        v_mov_b32 v36, 0x3f800000
        v_cmp_eq_u32 vcc, 16, v34
        v_cndmask_b32 {v(vSEL)}, 0, v35, vcc
        v_cmp_eq_u32 vcc, 17, v34
        v_cndmask_b32 {v(vSEL)}, {v(vSEL)}, v36, vcc
        v_cmp_eq_u32 vcc, 18, v34
        v_cndmask_b32 {v(vSEL+1)}, 0, v35, vcc
        s_cmp_eq_u32 {sJ}, 0
        s_cselect_b32 s62, 0x{BIG:x}, 0
        s_mov_b32 s63, s62''')

    def xread(self, ks, t):
        d = XFB + 20 * (ks & 1) + 4 * t
        if t == 0: return f'ds_read_b128 {v(d,4)}, {v(vHo if ks & 1 else vHe)} offset:{1040*(ks>>1)}'
        return f'ds_read_b128 {v(d,4)}, {v(vXo if ks & 1 else vXe)} offset:{18432*(t-1) + 1024*(ks>>1)}'
    def gemm(self, lay):
        a = self.a; D = self.o['depth']; sc = self.o['wsc']
        def wload(ks):
            r = [f's_add_u32 {t4}, {t3}, {3456*ks}']
            for n in range(3): r.append(f'buffer_load_dwordx4 {v(Wf(ks,n),4)}, {v(vL16)}, {sWS}, {t4} offen offset:{1024*n}{sc}')
            r.append(f'buffer_load_dwordx4 {v(Wf(ks,3),4)}, {v(vF)}, {sWS}, {t4} offen offset:3072{sc}')
            return r
        if lay == 0:
            a(f'''s_lshl_b32 {t3}, {sCG}, 2
            s_add_u32 {t3}, {t3}, {sW}
            s_mul_i32 {t3}, {t3}, 62208
            s_add_u32 {t3}, {t3}, {WP}
            v_lshlrev_b32 {v(vF)}, 4, {v(vG)}
            v_lshl_add_u32 {v(vF)}, {v(vI)}, 6, {v(vF)}
            v_mov_b32 {v(vE)}, {OOB}
            v_cmp_gt_u32 vcc, 6, {v(vI)}
            v_cndmask_b32 {v(vF)}, {v(vE)}, {v(vF)}, vcc''')
            for ks in range(D):
                for x in wload(ks): a(x)
            def wd():
                a(f'''v_bfe_u32 {v(vA)}, v0, 2, 2
                v_lshlrev_b32 {v(vA)}, 7, {v(vA)}
                v_and_b32 {v(vB)}, 3, v0
                v_lshl_add_u32 {v(vA)}, {v(vB)}, 3, {v(vA)}
                v_mul_u32_u24 {v(vB)}, 9216, {v(vG)}
                v_add_u32 {v(vA)}, {v(vA)}, {v(vB)}
                s_mul_i32 {t0}, {sW}, 9''')
                for n in range(9):
                    a(f'''s_add_u32 {t1}, {t0}, {n}
                    s_lshr_b32 {t2}, {t1}, 2
                    s_mul_i32 {t2}, {t2}, 896
                    s_lshl_b32 {t1}, {t1}, 5
                    s_add_u32 {t1}, {t1}, {t2}
                    s_add_u32 {t1}, {t1}, {UP}
                    v_add_u32 {v(vB)}, {t1}, {v(vA)}''')
                    for jh in range(2): a(f'ds_read_b64_tr_b16 {v(WDF+4*n+2*jh,2)}, {v(vB)} offset:{512*jh}')
                a.wlg(0)
            self.only(f's_cmp_lt_u32 {sLI}, 18', wd)
        for t in range(5): a(self.xread(0, t))
        for ks in range(18):
            fill = []
            if ks + 1 < 18: fill += [self.xread(ks + 1, t) for t in range(5)]
            if lay == 0 and ks + D < 18: fill += wload(ks + D)
            if ks == 17: fill += self.pre_attn(lay)
            k = 0
            for t in range(5):
                for n in range(4):
                    d = ACC + 20 * n + 4 * t; x = v(XFB + 20 * (ks & 1) + 4 * t, 4); w = v(Wf(ks, n), 4)
                    A, B = (x, w) if n == 2 else (w, x)
                    a(f'v_mfma_f32_16x16x32_bf16 {v(d,4)}, {A}, {B}, {v(d,4) if ks else 0}')
                    k += 1
                    if fill and (k % 2 == 0 or len(fill) > (20 - k) // 2 + 1): a(fill.pop(0))
            for x in fill: a(x)
        self.stamp('gemm')
    def pre_attn(self, lay):
        r = [f'v_lshlrev_b32 {v(vA)}, 2, {v(vI)}', f'v_add_u32 {v(vA)}, {NM}, {v(vA)}',
             f'v_lshlrev_b32 {v(vB)}, 4, {v(vG)}', f'v_add_u32 {v(vB)}, {NM}, {v(vB)}']
        r += [f'ds_read_b128 {v(RES,4)}, {v(vRA)}', f'ds_read_b128 {v(RES+4,4)}, {v(vRA+1)}', f'ds_read_b64 {v(RES+8,2)}, {v(vRA+2)}']
        r += [f'ds_read2_b32 {v(PAIR+2*t,2)}, {v(vA)} offset0:{16*t} offset1:{80+16*t}' for t in range(5)]
        r += self.vform(0) + self.vform(1)
        return r
    def vform(self, t):
        d = XFB + 8 * (t & 1)
        return [f'ds_read_b128 {v(d,4)}, {v(vB)} offset:{64*t}', f'ds_read_b128 {v(d+4,4)}, {v(vB)} offset:{320+64*t}']

    def attn(self, lay):
        a0 = self.a
        if lay == 0:
            def p():
                a0(f's_lshr_b32 {t1}, {sCG}, 2'); a0(f's_lshl_b32 {t1}, {t1}, 9'); a0(f's_add_u32 {t1}, {t1}, {FL0 + 4096}')
                self.exec((1 << 18) - 1)
                def b(): a0(f'buffer_load_dword {v(vC)}, {v(vL16)}, {sWS}, {t1} offen sc1'); a0(f'v_cmp_ne_u32 vcc, {sNON}, {v(vC)}')
                self.poll(b); self.exec(-1)
            self.only(f's_cmp_eq_u32 {sW}, 0', p)
        a0.barrier()
        a0(f's_mul_i32 {t0}, {sW}, 20480'); a0(f's_mul_i32 {t1}, {sCG}, 82944'); a0(f's_add_u32 {t1}, {t1}, {t0}')
        dma = []
        for q in range(21):
            x = []
            if q % 4 == 0: x += [f's_add_u32 m0, {t0}, {1024*q}', f's_add_u32 {t2}, {t1}, {WOP + 1024*q}']
            x.append(f'buffer_load_dwordx4 {v(vL16)}, {sWS}, {t2} offen offset:{1024*(q%4)}{self.o["wsc"]} lds')
            dma.append(x)
        cnt = [0]
        def a(t):
            for l in t.strip().split('\n'):
                a0(l.strip()); cnt[0] += 1
                if cnt[0] % 12 == 0 and dma:
                    for x in dma.pop(0): a0(x)
        csQ, csK, csR, csV = CS, CS + 4, CS + 8, CS + 12
        for t in range(5): a(f'v_mul_f32 {v(RSK+t)}, {f32(18**-0.5 * math.log2(math.e))}, {v(PAIR+2*t+1)}')
        for cs, b in ((csQ, Qb), (csK, Kb), (csR, Rb)):
            for r in range(4): a(f'v_mov_b32_dpp {v(cs+r)}, {v(b+r)} row_newbcast:0 row_mask:0xf bank_mask:0xf')
        a(f'v_mov_b32 {v(csV)}, {v(Vb)}\nv_mov_b32 {v(csV+1)}, {v(Vb)}')
        a(f'v_permlane32_swap_b32 {v(csV)}, {v(csV+1)}')
        SC = XFB + 20
        def fold(t):
            P = v(PAIR + 2 * t, 2); kp = v(RSK + (t & ~1), 2); ks_ = f'op_sel:[0,{t&1}] op_sel_hi:[1,{t&1}]'
            q, k, vv, r = Qb + 4*t, Kb + 4*t, Vb + 4*t, Rb + 4*t
            for b, cs in ((r, csR), (k, csK)) + (((q, csQ),) if t else ()):
                for h in (0, 2): a(f'v_pk_fma_f32 {v(b+h,2)}, {v(cs+h,2)}, {P}, {v(b+h,2)} op_sel_hi:[1,0,1]')
            a(f'v_pk_mul_f32 {v(r,2)}, {v(r,2)}, {P} op_sel:[0,1] op_sel_hi:[1,1]')
            a(f'v_pk_mul_f32 {v(r+2,2)}, {v(r+2,2)}, {kp} {ks_}')
            for h in (0, 2): a(f'v_pk_mul_f32 {v(k+h,2)}, {v(k+h,2)}, {kp} {ks_}')
            if t:
                for h in (0, 2): a(f'v_pk_mul_f32 {v(q+h,2)}, {v(q+h,2)}, {P} op_sel:[0,1] op_sel_hi:[1,1]')
                a(f'v_cvt_pk_bf16_f32 {v(q)}, {v(q)}, {v(q+1)}\nv_cvt_pk_bf16_f32 {v(q+1)}, {v(q+2)}, {v(q+3)}')
            a(f'v_cvt_pk_bf16_f32 {v(q+2)}, {v(r)}, {v(r+1)}\nv_mov_b32 {v(q+3)}, 0x3f80')
            a(f'v_cvt_pk_bf16_f32 {v(k)}, {v(k)}, {v(k+1)}\nv_cvt_pk_bf16_f32 {v(k+1)}, {v(k+2)}, {v(k+3)}')
            a(f'v_cvt_pk_bf16_f32 {v(k+2)}, {v(r+2)}, {v(r+3)}\nv_mov_b32 {v(k+3)}, 0')
            nm = XFB + 8 * (t & 1)
            for h in (0, 2): a(f'v_pk_fma_f32 {v(vv+h,2)}, {v(nm+h,2)}, {v(csV,2)}, {v(vv+h,2)} op_sel_hi:[1,0,1]')
            a(f'v_mfma_f32_16x16x16_bf16 {v(r,4)}, {v(q+2,2)}, {v(vSEL,2)}, 0')
            for h in (0, 2): a(f'v_pk_mul_f32 {v(vv+h,2)}, {v(vv+h,2)}, {v(nm+4+h,2)}')
            if t: a(f'v_mfma_f32_16x16x32_bf16 {v(SC+4*(t-1),4)}, {v(k,4)}, {v(q,4)}, {v(vM,4)}')
            if t + 2 < 5:
                for x in self.vform(t + 2): a(x)
            a(f'v_cvt_pk_bf16_f32 {v(Vb+2*t)}, {v(vv)}, {v(vv+1)}\nv_cvt_pk_bf16_f32 {v(Vb+2*t+1)}, {v(vv+2)}, {v(vv+3)}')
            if t: a(f'v_mfma_f32_16x16x32_bf16 {v(q-4,4)}, {v(k-4,4)}, {v(q,4)}, {v(vM,4)}')
        for t in range(5): fold(t)
        for t in range(5):
            r = Rb + 4*t
            a(f'v_cvt_pk_bf16_f32 {v(Rb+2*t)}, {v(r)}, {v(r+1)}\nv_cvt_pk_bf16_f32 {v(Rb+2*t+1)}, {v(r+2)}, {v(r+3)}')
        for h in (0, 2): a(f'v_pk_add_f32 {v(Qb+h,2)}, {v(Qb+h,2)}, {sBIAS}')
        MX = XFB + 16; MT = XFB + 36
        for t in range(4):
            sc_ = SC + 4*t
            for r in range(4): a(f'v_cndmask_b32 {v(sc_+r)}, {v(Qb+4*t+r)}, {v(sc_+r)}, {sMK[r]}')
            a(f'v_max3_f32 {v(MX+t)}, {v(sc_)}, {v(sc_+1)}, {v(sc_+2)}\nv_max_f32 {v(MX+t)}, {v(MX+t)}, {v(sc_+3)}')
        a(f'''v_permlane32_swap_b32 {v(MX)}, {v(MX+1)}
        v_permlane32_swap_b32 {v(MX+2)}, {v(MX+3)}
        v_max_f32 {v(MX)}, {v(MX)}, {v(MX+1)}
        v_max_f32 {v(MX+2)}, {v(MX+2)}, {v(MX+3)}
        v_permlane16_swap_b32 {v(MX)}, {v(MX+2)}
        v_max_f32 {v(MX)}, {v(MX)}, {v(MX+2)}
        v_mov_b32 {v(MX+2)}, {v(MX)}
        v_permlane16_swap_b32 {v(MX)}, {v(MX+2)}
        v_mov_b32 {v(MX+1)}, {v(MX)}
        v_mov_b32 {v(MX+3)}, {v(MX+2)}
        v_permlane32_swap_b32 {v(MX)}, {v(MX+1)}
        v_permlane32_swap_b32 {v(MX+2)}, {v(MX+3)}''')
        for t in range(4):
            sc_ = SC + 4*t; p = Kb + 4*t
            for h in (0, 2): a(f'v_pk_add_f32 {v(sc_+h,2)}, {v(sc_+h,2)}, {v(MX+(t&~1),2)} op_sel:[0,{t&1}] op_sel_hi:[1,{t&1}] neg_lo:[0,1] neg_hi:[0,1]')
            for r in range(4): a(f'v_exp_f32 {v(sc_+r)}, {v(sc_+r)}')
            a(f'v_cvt_pk_bf16_f32 {v(p+2)}, {v(sc_)}, {v(sc_+1)}\nv_cvt_pk_bf16_f32 {v(p+3)}, {v(sc_+2)}, {v(sc_+3)}')
            for h in range(2): a(f'v_bfi_b32 {v(p+h)}, {v(vPM+h)}, 0, {v(p+2+h)}')
            for h in range(2): a(f'v_and_b32 {v(p+2+h)}, {v(vPM+h)}, {v(p+2+h)}')
            if t: self._pv(a, t - 1, SC)
        self._pv(a, 3, SC)
        OP = Qb
        for t in range(4):
            d = SC + 4*t; e = XFB + 4*t
            a(f'v_rcp_f32 {v(e+2)}, {v(e+2)}')
            for b in (d, d + 2, e): a(f'v_pk_mul_f32 {v(b,2)}, {v(b,2)}, {v(e+2,2)} op_sel_hi:[1,0]')
            a(f'v_cvt_pk_bf16_f32 {v(OP+2*t)}, {v(d)}, {v(d+1)}\nv_cvt_pk_bf16_f32 {v(OP+2*t+1)}, {v(d+2)}, {v(d+3)}')
            a(f'v_cvt_pk_bf16_f32 {v(OP+8+t)}, {v(e)}, {v(e+1)}')
        while dma:
            for x in dma.pop(0): a0(x)
        a = a0
        a(f'''s_lshl_b32 {t0}, {sCG}, 2
        s_add_u32 {t0}, {t0}, {sW}
        s_lshl_b32 {t1}, {sT}, 7
        s_add_u32 {t1}, {t1}, {t0}
        s_lshl_b32 {t1}, {t1}, 9
        s_add_u32 {t1}, {t1}, {OB[lay]}
        s_add_u32 {t2}, {t1}, 32768
        s_lshl_b32 {t3}, {sT}, 5
        s_add_u32 {t3}, {t3}, {t0}
        s_lshl_b32 {t3}, {t3}, 8
        s_add_u32 {t3}, {t3}, {OR_[lay]}''')
        for u in range(2):
            for h in range(2): a(f'v_permlane16_swap_b32 {v(OP+4*u+h)}, {v(OP+4*u+2+h)}')
        for t in range(1, 4): a(f'v_mov_b32_dpp {v(OP+8)}, {v(OP+8+t)} quad_perm:[0,1,2,3] row_mask:{1<<t} bank_mask:0xf')
        a(f'v_lshlrev_b32 {v(vA)}, 2, v0')
        a(f'buffer_store_dwordx4 {v(OP,4)}, {v(vOB)}, {sWS}, {t1} offen sc1')
        a(f'buffer_store_dwordx4 {v(OP+4,4)}, {v(vOB)}, {sWS}, {t2} offen sc1')
        self.tk_o = a(f'buffer_store_dword {v(OP+8)}, {v(vA)}, {sWS}, {t3} offen sc1')
        self.stamp('attn')
    def _pv(self, a, t, SC):
        p = Kb + 4*t
        a(f'v_mfma_f32_16x16x32_bf16 {v(XFB+4*t,4)}, {v(Rb+2*t,4)}, {v(p,4)}, 0')
        a(f'v_mfma_f32_16x16x32_bf16 {v(SC+4*t,4)}, {v(Vb+2*t,4)}, {v(p,4)}, 0')

    def flaghop(self, base, extra=None):
        a = self.a
        a.barrier()
        def f():
            a(f's_lshl_b32 {t1}, {sT}, 3'); a(f's_add_u32 {t1}, {t1}, {sCG}'); a(f's_lshl_b32 {t1}, {t1}, 7'); a(f's_add_u32 {t1}, {t1}, {base}')
            for k in range(4): a(f'v_mov_b32 {v(vC+k)}, {sNON}')
            self.exec(0xff); tk = a(f'buffer_store_dwordx4 {v(vC,4)}, {v(vL16)}, {sWS}, {t1} offen sc1'); self.exec(-1)
            a.wait(tk)
        self.only(f's_cmp_eq_u32 {sW}, 0', f)
    def flagpoll(self, base, prev):
        a = self.a
        def f():
            a(f's_lshl_b32 {t1}, {sT}, 10'); a(f's_add_u32 {t1}, {t1}, {base}'); a(f'v_lshlrev_b32 {v(vB)}, 7, v0')
            self.exec(0xff)
            if prev:
                a(f's_cmp_eq_u32 {sJ}, 0'); a(f's_cselect_b32 {t2}, 0, 1024'); a(f's_cselect_b32 {t3}, 8, 16'); a(f's_bfm_b32 exec_lo, {t3}, 0'); a(f's_sub_u32 {t1}, {t1}, {t2}')
            def b(): a(f'buffer_load_dword {v(vA)}, {v(vB)}, {sWS}, {t1} offen sc1'); a(f'v_cmp_ne_u32 vcc, {sNON}, {v(vA)}')
            self.poll(b); self.exec(-1)
        self.only(f's_cmp_eq_u32 {sW}, 0', f)
        a.barrier()

    def p2(self, lay):
        a = self.a
        if lay == 0: self.only(f's_cmp_lt_u32 {sLI}, 18', lambda: self.gu_dma(1, range(9)))
        if lay:
            a(f's_lshl_b32 {t0}, {sW}, 6'); a(f's_add_u32 {t0}, {t0}, {NM + 640 + 64}'); a(f'v_lshl_add_u32 {v(vA)}, {v(vI)}, 2, {t0}')
            a(f'ds_read2_b32 {v(vC,2)}, {v(vA)} offset0:0 offset1:80')
        a(f's_mul_i32 {t0}, {sCG}, 144'); a(f's_add_u32 {t0}, {t0}, {WRL}')
        a(f'v_lshl_add_u32 {v(vA)}, {v(vG)}, 4, {t0}'); a(f'v_and_b32 {v(vB)}, 1, {v(vG)}'); a(f'v_lshl_add_u32 {v(vB)}, {v(vB)}, 3, {t0}')
        a(f'ds_read_b128 {v(WRP,4)}, {v(vA)}'); a(f'ds_read_b128 {v(WRP+4,4)}, {v(vA)} offset:64'); a(f'ds_read_b64 {v(WRP+8,2)}, {v(vB)} offset:128')
        for k in range(10):
            a(f'v_lshlrev_b32 {v(ACC2+2*k)}, 16, {v(RES+k)}'); a(f'v_and_b32 {v(ACC2+2*k+1)}, 0xffff0000, {v(RES+k)}')
            if lay: a(f'v_pk_fma_f32 {v(ACC2+2*k,2)}, {v(ACC2+2*k,2)}, {v(vC,2)}, {v(vC,2)} op_sel:[0,0,1] op_sel_hi:[1,0,1]')
        a(f'''v_add_u32 {v(RES)}, {9*4608}, {v(vL16)}
        v_and_b32 {v(RES+1)}, 7, v0
        v_lshlrev_b32 {v(RES+1)}, 4, {v(RES+1)}
        v_lshl_add_u32 {v(RES+1)}, {v(vG)}, 7, {v(RES+1)}
        v_add_u32 {v(RES+2)}, {9*4608}, {v(RES+1)}''')
        a.wait(self.tk_o)
        self.flaghop(OF[lay])
        self.stamp('oflag')
        def wread(k):
            ks, n = divmod(k, 5); hi = ks >= 9
            ad = (RES + 2 if hi else RES + 1) if n == 4 else (RES if hi else vL16)
            return f'ds_read_b128 {v(XFB + 4*(k % 10), 4)}, {v(ad)} offset:{4608*(ks - 9*hi) + 1024*n}'
        for k in range(9): a(wread(k))
        self.flagpoll(OF[lay], False)
        self.stamp('opoll')
        a(f'''s_lshl_b32 {t0}, {sT}, 2
        s_add_u32 {t0}, {t0}, {sW}
        s_lshl_b32 {t0}, {t0}, 14
        s_lshl_b32 {t2}, {sT}, 7
        s_add_u32 {t2}, {t2}, {sW}
        s_lshl_b32 {t2}, {t2}, 6''')
        for ks in range(16):
            if ks % 4 == 0: a(f's_add_u32 {t1}, {t0}, {OB[lay] + 1024*ks}')
            a(f'buffer_load_dwordx4 {v(ACC+4*ks,4)}, {v(vL16)}, {sWS}, {t1} offen offset:{1024*(ks%4)} sc1')
        for ks in range(2):
            a(f's_add_u32 {t1}, {t2}, {OR_[lay] + 4096*ks}')
            for jj in range(4): a(f'buffer_load_dword {v(ACC+64+4*ks+jj)}, {v(vGI)}, {sWS}, {t1} offen offset:{256*jj} sc1')
        for k in range(90):
            ks, n = divmod(k, 5)
            if k + 9 < 90: a(wread(k + 9))
            a(f'v_mfma_f32_16x16x32_bf16 {v(ACC2+4*n,4)}, {v(XFB+4*(k%10),4)}, {v(ACC+4*ks,4)}, {v(ACC2+4*n,4)}')
        self.stamp('p2')
        XP = ACC
        a(f's_mov_b32 {t0}, {ONES}')
        a(f'''s_lshl_b32 {t1}, {sT}, 3
        s_add_u32 {t1}, {t1}, {sCG}
        s_lshl_b32 {t1}, {t1}, 2
        s_add_u32 {t1}, {t1}, {sW}
        s_lshl_b32 {t1}, {t1}, 8
        s_add_u32 {t1}, {t1}, {ST[lay]}''')
        S = ACC + 12
        for k in range(10):
            a(f'v_cvt_pk_bf16_f32 {v(XP+k)}, {v(ACC2+2*k)}, {v(ACC2+2*k+1)}')
        for k in range(10):
            if k == 8: a('s_mov_b32 exec_hi, 0')
            for j, o in enumerate((t0, v(XP+k), v(WRP+k))): a(f'v_dot2_f32_bf16 {v(S+j)}, {v(XP+k)}, {o}, {v(S+j) if k else 0}')
        self.exec(-1)
        a(f'v_mov_b32 {v(S+3)}, {sNON}')
        if lay == 0:
            for h in range(2): a(f'v_permlane16_swap_b32 {v(XP+8+h)}, {v(XP+10+h)}')
        self.xsum([S, S+1, S+2], S + 4, full=False)
        self.exec(0xffff)
        a(f'buffer_store_dwordx4 {v(S,4)}, {v(vL16)}, {sWS}, {t1} offen sc1')
        if lay == 0:
            a(f'''s_lshl_b32 {t1}, {sT}, 2
            s_add_u32 {t1}, {t1}, {sW}
            s_lshl_b32 {t1}, {t1}, 4
            s_add_u32 {t1}, {t1}, {sCG}
            s_mul_i32 {t1}, {t1}, 1152
            s_add_u32 {t1}, {t1}, {X1}''')
            a(f'buffer_store_dwordx4 {v(XP+8,4)}, {v(vXB)}, {sWS}, {t1} offen offset:1024 sc1')
            self.exec(-1)
            for P in range(2): a(f'buffer_store_dwordx4 {v(XP+4*P,4)}, {v(vXB)}, {sWS}, {t1} offen offset:{512*P} sc1')
        else: self.exec(-1)
        self.stamp('st')
        a.wvm(0)
        if lay == 0: self.flaghop(XF)

    def gather(self, lay, sbase):
        a = self.a; S = ACC + 20
        a(f'v_lshlrev_b32 {v(vA)}, 10, {v(vG)}'); a(f'v_lshl_add_u32 {v(vA)}, {v(vI)}, 4, {v(vA)}'); a(f's_add_u32 {t2}, {sbase}, 4096')
        def b():
            a(f'buffer_load_dwordx4 {v(S,4)}, {v(vA)}, {sWS}, {sbase} offen sc1')
            a(f'buffer_load_dwordx4 {v(S+4,4)}, {v(vA)}, {sWS}, {t2} offen sc1')
            a(f'v_cmp_ne_u32 {sSV}, {sNON}, {v(S+3)}'); a(f'v_cmp_ne_u32 vcc, {sNON}, {v(S+7)}'); a(f's_or_b64 vcc, vcc, {sSV}')
        self.poll(b)
        for k in range(3): a(f'v_add_f32 {v(S+k)}, {v(S+k)}, {v(S+4+k)}')
        self.xsum([S, S+1, S+2], S + 4)
        a(f'''v_mul_f32 {v(S)}, {f32(-1/576)}, {v(S)}
        v_mul_f32 {v(S+1)}, {f32(1/576)}, {v(S+1)}
        v_fma_f32 {v(S+1)}, -{v(S)}, {v(S)}, {v(S+1)}
        v_max_f32 {v(S+1)}, 0, {v(S+1)}
        v_add_f32 {v(S+4)}, {f32(1e-5)}, {v(S+1)}
        v_rsq_f32 {v(S+3)}, {v(S+4)}''')
        return S
    def lnc(self, S):
        a = self.a
        a(f'''v_add_f32 {v(S+5)}, 1.0, {v(S+3)}
        v_mul_f32 {v(S+6)}, {v(S+5)}, {v(S+5)}
        v_mul_f32 {v(S+6)}, {v(S+6)}, {v(S+1)}
        v_add_f32 {v(S+6)}, {f32(1e-5)}, {v(S+6)}
        v_rsq_f32 {v(S+6)}, {v(S+6)}
        v_mul_f32 {v(S+6)}, {v(S+6)}, {v(S+5)}''')

    def router(self, lay):
        a = self.a
        a(f's_lshl_b32 {t1}, {sT}, 5'); a(f's_add_u32 {t1}, {t1}, {sW}'); a(f's_lshl_b32 {t1}, {t1}, 8'); a(f's_add_u32 {t1}, {t1}, {ST[lay]}')
        S = self.gather(lay, t1)
        self.stamp('gath')
        K = S + 8; ZP = ACC; ZT = ACC + 40
        a(f'''v_fma_f32 {v(K)}, {v(S)}, {sSW}, {v(S+2)}
        v_mov_b32 {v(K+6)}, {v(S+3)}
        v_mul_f32 {v(K)}, {v(K)}, {v(S+3)}
        v_mul_f32 {v(K+7)}, {v(S)}, {v(S+3)}
        v_ashrrev_i32 {v(K+4)}, 31, {v(K)}
        v_lshrrev_b32 {v(K+4)}, 1, {v(K+4)}
        v_xor_b32 {v(K)}, {v(K)}, {v(K+4)}
        v_and_or_b32 {v(K)}, {v(K)}, -16, {v(vI)}
        v_mul_f32 {v(K+2)}, {v(S+4)}, {v(S+3)}
        v_mov_b32 {v(K+4)}, {v(K)}''')
        zz = []
        for k in range(10):
            zz.append(f'v_pk_fma_f32 {v(ZT+2*k,2)}, {v(ACC2+2*k,2)}, {v(K+6,2)}, {v(K+6,2)} op_sel:[0,0,1] op_sel_hi:[1,0,1]')
        for m in ('row_ror:8', 'row_ror:4', 'row_ror:2', 'row_ror:1'):
            a(zz.pop(0)); a(zz.pop(0)); a(f'v_max_i32_dpp {v(K+4)}, {v(K+4)}, {v(K+4)} {m} row_mask:0xf bank_mask:0xf')
        for x in zz: a(x)
        a(f'v_cmp_eq_u32 {sCM}, {v(K)}, {v(K+4)}')
        for k in (8, 9, 0, 1, 2, 3, 4, 5, 6, 7):
            a(f'v_cvt_pk_bf16_f32 {v(ZP+k)}, {v(ZT+2*k)}, {v(ZT+2*k+1)}'); a(f'v_min_u32 {v(ZP+k)}, -2, {v(ZP+k)}')
        for h in range(2): a(f'v_permlane16_swap_b32 {v(ZP+8+h)}, {v(ZP+10+h)}')
        a(f'''v_sub_f32 {v(K+1)}, 0, {v(S)}
        v_mov_b32 {v(K+3)}, {sNON}
        v_lshlrev_b32 {v(vA)}, 4, {v(vG)}
        s_lshl_b32 {t0}, {sT}, 2
        s_add_u32 {t0}, {t0}, {sW}
        s_lshl_b32 {t2}, {t0}, 4
        s_add_u32 {t2}, {t2}, {CAND[lay]}
        s_lshl_b32 {t1}, {t0}, 3
        s_add_u32 {t1}, {t1}, {sCG}
        s_mul_i32 {t1}, {t1}, 144
        s_add_u32 {t1}, {t1}, {CZ[lay]}
        s_and_b64 exec, {sCM}, 0xffff''')
        self.only(f's_cmp_eq_u32 {sCG}, 0', lambda: a(f'buffer_store_dwordx4 {v(K,4)}, {v(vA)}, {sWS}, {t2} offen sc1'))
        a(f'buffer_store_dwordx4 {v(ZP+8,4)}, {v(vA)}, {sWS}, {t1} offen offset:128 sc1')
        a(f's_mov_b64 exec, {sCM}')
        for P in range(2): a(f'buffer_store_dwordx4 {v(ZP+4*P,4)}, {v(vA)}, {sWS}, {t1} offen offset:{64*P} sc1')
        self.exec(-1)
        self.stamp('cand')
        if lay == 0:
            self.lnc(S)
            a(f's_lshl_b32 {t0}, {sW}, 6'); a(f's_add_u32 {t0}, {t0}, {NM + 64}'); a(f'v_lshl_add_u32 {v(vB)}, {v(vI)}, 2, {t0}')
            self.exec(0xffff)
            a(f'ds_write2_b32 {v(vB)}, {v(S)}, {v(S+6)} offset0:0 offset1:80')
            a(f'ds_write2_b32 {v(vB)}, {v(S+5)}, {v(K+7)} offset0:160 offset1:240')
            self.exec(-1)
            def halo():
                a(f's_cmp_eq_u32 {sJ}, 0'); a(f's_cselect_b32 {t1}, 0, 1'); a(f's_sub_u32 {t1}, {sT}, {t1}')
                a(f's_lshl_b32 {t1}, {t1}, 13'); a(f's_add_u32 {t1}, {t1}, {ST[0] + 768}')
                S = self.gather(0, t1); self.lnc(S)
                a(f'v_subrev_u32 {v(vB)}, 256, {v(vB)}')
                self.exec(0xffff); a(f'ds_write2_b32 {v(vB)}, {v(S)}, {v(S+6)} offset0:0 offset1:80'); self.exec(-1)
            self.only(f's_cmp_eq_u32 {sW}, 3', halo)
            self.ones()
            self.flagpoll(XF, True)
            self.stamp('xpoll')
            a(f's_mul_i32 {t0}, {sW}, 18432'); a(f's_mul_i32 {t1}, {sT}, 73728'); a(f's_add_u32 {t1}, {t1}, {X1}'); a(f's_add_u32 {t3}, {t1}, {t0}')
            for q in range(18):
                if q % 4 == 0: a(f's_add_u32 m0, {t0}, {1024*q}'); a(f's_add_u32 {t2}, {t3}, {1024*q}')
                a(f'buffer_load_dwordx4 {v(vL16)}, {sWS}, {t2} offen offset:{1024*(q%4)} sc1 lds')
            a(f's_cmp_eq_u32 {sJ}, 0'); a(f's_cselect_b32 {t2}, 0, 9216'); a(f's_sub_u32 {t1}, {t1}, {t2}')
            for q in range(3):
                a(f's_add_u32 {t0}, {sW}, {4*q}'); a(f's_min_u32 {t0}, {t0}, 8'); a(f's_mul_i32 {t2}, {t0}, 1040'); a(f's_add_u32 m0, {t2}, {LH}')
                a(f's_lshl_b32 {t0}, {t0}, 10'); a(f's_add_u32 {t0}, {t0}, {t1}')
                a(f'buffer_load_dwordx4 {v(vL16)}, {sWS}, {t0} offen sc1 lds')
            a(f'''v_mov_b32 {v(vXe)}, {v(vXB)}
            v_add_u32 {v(vXo)}, 512, {v(vXB)}
            v_cmp_gt_u32 vcc, 8, {v(vI)}
            v_mov_b32 {v(vA)}, {LH + 1024}
            v_add_u32 {v(vB)}, {LH - 9216}, {v(vXe)}
            v_add_u32 {v(vC)}, {LH - 9216}, {v(vXo)}
            v_cndmask_b32 {v(vHe)}, {v(vB)}, {v(vA)}, vcc
            v_cndmask_b32 {v(vHo)}, {v(vC)}, {v(vA)}, vcc
            s_lshl_b32 {t0}, {sW}, 4
            s_add_u32 {t0}, {t0}, {sCG}
            s_mul_i32 {t0}, {t0}, 1152
            v_add_u32 {v(vRA)}, {t0}, {v(vXB)}
            v_add_u32 {v(vRA+1)}, 512, {v(vRA)}
            v_lshlrev_b32 {v(vA)}, 7, {v(vG)}
            v_sub_u32 {v(vA)}, {v(vRA)}, {v(vA)}
            v_and_b32 {v(vB)}, 1, {v(vG)}
            v_lshl_add_u32 {v(vA)}, {v(vB)}, 3, {v(vA)}
            v_add_u32 {v(vRA+2)}, 1024, {v(vA)}''')
        else:
            OPK = ACC + 64
            a(f'v_add_f32 {v(K+6)}, 1.0, {v(K+6)}')
            for k in range(10): a(f'v_pk_fma_f32 {v(ZT+2*k,2)}, {v(ACC2+2*k,2)}, {v(K+6,2)}, {v(K+6,2)} op_sel:[0,0,1] op_sel_hi:[1,0,1]')
            for k in (8, 9, 0, 1, 2, 3, 4, 5, 6, 7): a(f'v_cvt_pk_bf16_f32 {v(OPK+k)}, {v(ZT+2*k)}, {v(ZT+2*k+1)}')
            for h in range(2): a(f'v_permlane16_swap_b32 {v(OPK+8+h)}, {v(OPK+10+h)}')
            a(f'v_mul_u32_u24 {v(vXe)}, 2304, {v(vI)}'); a(f'v_lshl_add_u32 {v(vXe)}, {v(vG)}, 4, {v(vXe)}')
            a(f's_not_b64 {sSV}, {sCM}')
            self.outst(sSV)

    def outst(self, m):
        a = self.a; OPK = ACC + 64
        a(f'''s_lshl_b32 {t0}, {sJ}, 2
        s_add_u32 {t0}, {t0}, {sW}
        s_lshl_b32 {t0}, {t0}, 5
        s_add_u32 {t0}, {t0}, {sP}
        s_lshl_b32 {t0}, {t0}, 3
        s_add_u32 {t0}, {t0}, {sCG}
        s_mul_i32 {t0}, {t0}, 144
        s_mov_b64 exec, {m}''')
        for P in range(2): a(f'buffer_store_dwordx4 {v(OPK+4*P,4)}, {v(vXe)}, {sOUT}, {t0} offen offset:{64*P}')
        a(f's_and_b64 exec, {m}, 0xffff')
        a(f'buffer_store_dwordx4 {v(OPK+8,4)}, {v(vXe)}, {sOUT}, {t0} offen offset:128')
        self.exec(-1)

    def rowpoll(self, sbase, d):
        a = self.a
        a(f'v_mov_b32 {v(vA)}, {OOB}'); a('v_cmp_gt_u32 vcc, 8, v0'); a(f'v_cndmask_b32 {v(vA)}, {v(vA)}, {v(vL16)}, vcc')
        def b():
            a(f'buffer_load_dwordx4 {v(d,4)}, {v(vL16)}, {sWS}, {sbase} offen sc1')
            a(f'buffer_load_dwordx4 {v(d+4,4)}, {v(vA)}, {sWS}, {sbase} offen offset:1024 sc1')
            a(f'v_max3_u32 {v(vB)}, {v(d)}, {v(d+1)}, {v(d+2)}'); a(f'v_max3_u32 {v(vB)}, {v(vB)}, {v(d+3)}, {v(d+4)}')
            a(f'v_max3_u32 {v(vB)}, {v(vB)}, {v(d+5)}, {v(d+6)}'); a(f'v_max_u32 {v(vB)}, {v(vB)}, {v(d+7)}')
            a(f'v_cmp_eq_u32 vcc, -1, {v(vB)}')
        self.poll(b)

    def winner(self, lay):
        a = self.a; C = XFB
        def w0():
            a(f's_mov_b32 {t1}, {CAND[lay]}')
            def b():
                a(f'buffer_load_dwordx4 {v(C,4)}, {v(vL16)}, {sWS}, {t1} offen sc1')
                a(f'buffer_load_dwordx4 {v(C+4,4)}, {v(vL16)}, {sWS}, {t1} offen offset:1024 sc1')
                a(f'v_cmp_ne_u32 {sSV}, {sNON}, {v(C+3)}'); a(f'v_cmp_ne_u32 vcc, {sNON}, {v(C+7)}'); a(f's_or_b64 vcc, vcc, {sSV}')
            self.poll(b)
            a(f'v_cmp_gt_i32 vcc, {v(C+4)}, {v(C)}'); a(f'v_max_i32 {v(C+8)}, {v(C)}, {v(C+4)}'); a(f'v_add_u32 {v(C+7)}, 64, v0')
            sel = [f'v_cndmask_b32 {v(C+k)}, {v(C+k) if k < 3 else "v0"}, {v(C+4+k)}, vcc' for k in range(4)]
            for m in ('row_ror:8', 'row_ror:4', 'row_ror:2', 'row_ror:1'):
                a(sel.pop(0)); a(f'v_max_i32_dpp {v(C+8)}, {v(C+8)}, {v(C+8)} {m} row_mask:0xf bank_mask:0xf')
            self.xsum([C+8], C+9, op='v_max_i32')
            a(f'v_cmp_eq_u32 vcc, {v(C)}, {v(C+8)}')
            a(f's_ff1_i32_b64 {t0}, vcc'); a(f's_and_b32 {t0}, {t0}, 63')
            a(f'v_readlane_b32 {sCID}, {v(C+3)}, {t0}')
            a(f's_lshl_b64 exec, 1, {t0}'); a(f'v_mov_b32 {v(vA)}, {WIN}'); a(f'ds_write_b128 {v(vA)}, {v(C,4)}'); self.exec(-1)
            def z():
                a(f's_and_b32 {t1}, {sCID}, 127'); a(f's_mul_i32 {t1}, {t1}, 1152'); a(f's_add_u32 {t1}, {t1}, {CZ[lay]}')
                self.rowpoll(t1, C + 12)
                a(f'v_add_u32 {v(vA)}, {ZR}, {v(vL16)}'); a(f'ds_write_b128 {v(vA)}, {v(C+12,4)}')
                self.exec(0xff); a(f'ds_write_b128 {v(vA)}, {v(C+16,4)} offset:1024'); self.exec(-1)
            self.only(f's_cmp_lt_u32 {sLI}, 18', z)
        self.only(f's_cmp_eq_u32 {sW}, 0', w0)
        if lay == 0: a.wvm(0)
        a.barrier()
        self.stamp('win')
        self.only(f's_cmp_lt_u32 {sLI}, 18', lambda: self.ffn(lay))
        a(f'v_mov_b32 {v(vA)}, {WIN}'); a(f'ds_read_b128 {v(C,4)}, {v(vA)}')
        for k, r in enumerate((sKEY, sM, sSTD, sCID)): a(f'v_readfirstlane_b32 {r}, {v(C+k)}')
        a(f's_and_b32 {sCID}, {sCID}, 127')
        self.stamp('ffn')
        if lay == 1:
            a(f's_lshl_b32 {t0}, {sT}, 2'); a(f's_add_u32 {t0}, {t0}, {sW}')
            self.only(f's_cmp_lg_u32 {t0}, {sCID}', lambda: self.outst(sCM))
        a(f's_cmp_eq_u32 {sW}, 1'); a(f's_cselect_b32 {t0}, {sRED}, 99')
        self.only(f's_cmp_lt_u32 {t0}, 36', lambda: self.reduce(lay))
        if lay == 0: self.patch()

    def ffn(self, lay):
        a = self.a
        a(f'''v_bfe_u32 {v(vA)}, v0, 1, 1
        v_lshlrev_b32 {v(vB)}, 1, {v(vA)}
        v_and_b32 {v(vC)}, 1, {v(vG)}
        v_xor_b32 {v(vB)}, {v(vB)}, {v(vC)}
        v_xor_b32 {v(vB)}, {sW}, {v(vB)}
        v_mul_u32_u24 {v(vA)}, 36864, {v(vA)}
        v_lshl_add_u32 {v(vA)}, {v(vB)}, 4, {v(vA)}
        v_lshrrev_b32 {v(vB)}, 2, v0
        v_lshl_add_u32 {v(vA)}, {v(vB)}, 6, {v(vA)}
        v_and_b32 {v(vB)}, 1, v0
        v_lshl_add_u32 {v(vA)}, {v(vB)}, 3, {v(vA)}
        v_add_u32 {v(vA)}, {GATE}, {v(vA)}
        v_lshlrev_b32 {v(vB)}, 4, {v(vG)}
        v_add_u32 {v(vB)}, {ZR}, {v(vB)}''')
        D = 48; NB = 5
        def rd(ks):
            b = XFB + 8 * (ks % NB)
            return [f'ds_read_b128 {v(b+4,4)}, {v(vB)} offset:{64*ks}'] + [f'ds_read_b64_tr_b16 {v(b+2*jh,2)}, {v(vA)} offset:{1024*(2*ks+jh)}' for jh in range(2)]
        for ks in range(NB - 1):
            for x in rd(ks): a(x)
        for ks in range(18):
            b = XFB + 8 * (ks % NB)
            if ks + NB - 1 < 18:
                for x in rd(ks + NB - 1): a(x)
            a(f'v_mfma_f32_16x16x32_bf16 {v(D,4)}, {v(b,4)}, {v(b+4,4)}, {v(D,4) if ks else 0}')
        a(f'''s_lshl_b32 {t0}, {sW}, 9
        s_add_u32 {t0}, {t0}, {HW + 144}
        v_lshl_add_u32 {v(vA)}, {v(vG)}, 3, {t0}
        v_lshlrev_b32 {v(vB)}, 9, {v(vG)}
        v_lshl_add_u32 {v(vB)}, {v(vI)}, 4, {v(vB)}
        v_add_u32 {v(vB)}, {HW}, {v(vB)}
        v_lshlrev_b32 {v(vC)}, 6, {v(vI)}
        v_lshl_add_u32 {v(vC)}, {v(vG)}, 4, {v(vC)}''')
        for r in range(4): a(f'v_mul_f32 {v(D+8+r)}, {f32(-math.log2(math.e))}, {v(D+r)}')
        for r in range(4): a(f'v_exp_f32 {v(D+8+r)}, {v(D+8+r)}')
        for r in range(4): a(f'v_permlane32_swap_b32 {v(D+r)}, {v(D+4+r)}')
        for r in range(4): a(f'v_add_f32 {v(D+8+r)}, 1.0, {v(D+8+r)}')
        for r in range(4): a(f'v_rcp_f32 {v(D+8+r)}, {v(D+8+r)}')
        for h in (0, 2): a(f'v_pk_mul_f32 {v(D+h,2)}, {v(D+h,2)}, {v(D+4+h,2)}')
        for h in (0, 2): a(f'v_pk_mul_f32 {v(D+h,2)}, {v(D+h,2)}, {v(D+8+h,2)}')
        a(f'v_cvt_pk_bf16_f32 {v(D)}, {v(D)}, {v(D+1)}\nv_cvt_pk_bf16_f32 {v(D+1)}, {v(D+2)}, {v(D+3)}')
        self.exec(0x10001); a(f'ds_write_b64 {v(vA)}, {v(D,2)}'); self.exec(-1)
        a.barrier()
        for n in range(9): a(f'ds_read_b128 {v(XFB+4*n,4)}, {v(vB)} offset:{16*(9-n)}')
        a(f's_lshl_b32 {t0}, {sF}, 2'); a(f's_add_u32 {t0}, {t0}, {sW}'); a(f's_mul_i32 {t0}, {t0}, 640'); a(f's_add_u32 {t0}, {t0}, {PY[lay]}')
        for n in range(9): a(f'v_mfma_f32_16x16x32_bf16 {v(D,4)}, {v(WDF+4*n,4)}, {v(XFB+4*n,4)}, {v(D,4) if n else 0}')
        for r in range(4): a(f'v_min_u32 {v(D+r)}, -2, {v(D+r)}')
        self.exec(0x03ff03ff03ff03ff)
        a(f'buffer_store_dwordx4 {v(D,4)}, {v(vC)}, {sWS}, {t0} offen sc1'); self.exec(-1)

    def reduce(self, lay):
        a = self.a; Y = XFB; Z = XFB + 36
        a(f'''s_mul_i32 {t0}, {sRED}, 7282
        s_lshr_b32 {t0}, {t0}, 16
        s_add_u32 {t0}, {t0}, {sRED}
        s_lshl_b32 {t0}, {t0}, 6
        s_add_u32 {t0}, {t0}, {PY[lay]}
        v_lshrrev_b32 {v(vA)}, 2, v0
        v_mul_u32_u24 {v(vA)}, 2560, {v(vA)}
        v_and_b32 {v(vB)}, 3, v0
        v_lshl_add_u32 {v(vA)}, {v(vB)}, 4, {v(vA)}
        v_lshlrev_b32 {v(vB)}, 3, {v(vB)}
        s_mul_i32 {t1}, {sCID}, 1152
        s_lshl_b32 {t2}, {sRED}, 5
        s_add_u32 {t1}, {t1}, {t2}
        s_add_u32 {t1}, {t1}, {CZ[lay]}
        v_mov_b32 {v(vD)}, {f32(-math.log2(math.e))}
        s_ashr_i32 {t3}, {sKEY}, 31
        s_lshr_b32 {t3}, {t3}, 1
        s_xor_b32 {t3}, {t3}, {sKEY}
        v_mul_f32 {v(vD)}, {t3}, {v(vD)}
        v_exp_f32 {v(vD)}, {v(vD)}
        v_add_f32 {v(vD)}, 1.0, {v(vD)}
        v_rcp_f32 {v(vD)}, {v(vD)}''')
        def b0():
            a(f'buffer_load_dwordx4 {v(Y,4)}, {v(vA)}, {sWS}, {t0} offen sc1'); a(f'v_cmp_eq_u32 vcc, -1, {v(Y)}')
        self.poll(b0)
        def b():
            a(f'buffer_load_dwordx2 {v(Z,2)}, {v(vB)}, {sWS}, {t1} offen sc1')
            for q in range(9):
                a(f's_add_u32 {t3}, {t0}, {40960*q}'); a(f'buffer_load_dwordx4 {v(Y+4*q,4)}, {v(vA)}, {sWS}, {t3} offen sc1')
            a(f'v_max_u32 {v(vC)}, {v(Z)}, {v(Z+1)}')
            for k in range(18): a(f'v_max3_u32 {v(vC)}, {v(vC)}, {v(Y+2*k)}, {v(Y+2*k+1)}')
            a(f'v_cmp_eq_u32 vcc, -1, {v(vC)}')
        self.poll(b)
        for q in range(1, 9):
            for h in (0, 2): a(f'v_pk_add_f32 {v(Y+h,2)}, {v(Y+h,2)}, {v(Y+4*q+h,2)}')
        a(f'v_lshlrev_b32 {v(Y+8)}, 16, {v(Z)}\nv_and_b32 {v(Y+9)}, 0xffff0000, {v(Z)}\nv_lshlrev_b32 {v(Y+10)}, 16, {v(Z+1)}\nv_and_b32 {v(Y+11)}, 0xffff0000, {v(Z+1)}')
        self.dpp('v_add_f32', range(Y, Y + 4), ['row_ror:8', 'row_ror:4'])
        a(f'v_add_f32 {v(vC)}, 1.0, {sSTD}' if 0 else f'v_mov_b32 {v(vC)}, {sSTD}'); a(f'v_add_f32 {v(vC)}, 1.0, {v(vC)}')
        for r in range(4): a(f'v_fma_f32 {v(Y+8+r)}, {v(Y+8+r)}, {v(vC)}, {sM}')
        self.xsum(list(range(Y, Y + 4)), Y + 4, full=False)
        for r in range(4): a(f'v_fma_f32 {v(Y+r)}, {v(Y+r)}, {v(vD)}, {v(Y+8+r)}')
        a(f'v_cvt_pk_bf16_f32 {v(Y)}, {v(Y)}, {v(Y+1)}\nv_cvt_pk_bf16_f32 {v(Y+1)}, {v(Y+2)}, {v(Y+3)}')
        self.exec(0xf)
        if lay == 0:
            a(f'v_min_u32 {v(Y)}, -2, {v(Y)}\nv_min_u32 {v(Y+1)}, -2, {v(Y+1)}\ns_add_u32 {t2}, {t2}, {NR}')
            a(f'buffer_store_dwordx2 {v(Y,2)}, {v(vB)}, {sWS}, {t2} offen sc1')
        else:
            a(f'''s_and_b32 {t0}, {sCID}, 63
            s_lshl_b32 {t0}, {t0}, 4
            s_and_b32 {t1}, {sKEY}, 15
            s_add_u32 {t0}, {t0}, {t1}
            s_lshl_b32 {t0}, {t0}, 1
            s_lshr_b32 {t1}, {sCID}, 6
            s_add_u32 {t0}, {t0}, {t1}
            s_mul_i32 {t0}, {t0}, 1152
            s_add_u32 {t0}, {t0}, {t2}''')
            a(f'buffer_store_dwordx2 {v(Y,2)}, {v(vB)}, {sOUT}, {t0} offen')
            def nn():
                self.exec(1); a(f'v_mov_b32 {v(vC)}, {sNON}'); a(f'buffer_store_dword {v(vC)}, {v(vB)}, {sWS}, 0 offen sc1')
            self.only(f's_cmp_eq_u32 {sRED}, 0', nn)
        self.exec(-1)

    def patch(self):
        a = self.a; Rr = XFB
        a(f'''s_lshl_b32 {t0}, {sT}, 2
        s_sub_u32 {t0}, {sCID}, {t0}
        s_add_u32 {t0}, {t0}, 1
        s_lshl_b32 {t0}, {t0}, 4
        s_and_b32 {t1}, {sKEY}, 15
        s_add_u32 {t0}, {t0}, {t1}
        s_cmp_eq_u32 {sJ}, 0
        s_cselect_b32 {t1}, 16, 8
        s_sub_u32 {t2}, {t0}, {t1}
        s_sub_u32 {t1}, 80, {t1}
        s_cmp_eq_u32 {sW}, 0
        s_cselect_b32 {t1}, {t1}, 0''')
        def f():
            a(f's_mov_b32 {t3}, {NR}'); self.rowpoll(t3, Rr)
            a(f'''s_lshr_b32 {t1}, {t0}, 3
            s_sub_u32 {t1}, {t1}, 2
            s_mul_i32 {t1}, {t1}, 9216
            s_cmp_lt_u32 {t0}, 16
            s_cselect_b32 {t1}, {LH}, {t1}
            s_cselect_b32 {t2}, 16, 0
            s_and_b32 {t3}, {t0}, 7
            s_lshl_b32 {t3}, {t3}, 4
            s_add_u32 {t1}, {t1}, {t3}
            v_lshrrev_b32 {v(vA)}, 3, v0
            v_mul_u32_u24 {v(vA)}, {t2}, {v(vA)}
            v_lshl_add_u32 {v(vA)}, v0, 7, {v(vA)}
            v_add_u32 {v(vA)}, {t1}, {v(vA)}
            s_lshl_b32 {t2}, {t2}, 3
            v_add_u32 {v(vB)}, {t2}, {v(vA)}
            s_mov_b32 {t3}, {ONES}''')
            a(f'ds_write_b128 {v(vA)}, {v(Rr,4)}')
            self.exec(0xff); a(f'ds_write_b128 {v(vB)}, {v(Rr+4,4)} offset:8192'); self.exec(-1)
            S = Rr + 8
            for k in range(8):
                a(f'v_dot2_f32_bf16 {v(S)}, {v(Rr+k)}, {t3}, {v(S) if k else 0}'); a(f'v_dot2_f32_bf16 {v(S+1)}, {v(Rr+k)}, {v(Rr+k)}, {v(S+1) if k else 0}')
            self.dpp('v_add_f32', [S, S+1], ['row_ror:8', 'row_ror:4', 'row_ror:2', 'row_ror:1']); self.xsum([S, S+1], S+2, full=False)
            a(f'''v_mul_f32 {v(S)}, {f32(-1/576)}, {v(S)}
            v_mul_f32 {v(S+1)}, {f32(1/576)}, {v(S+1)}
            v_fma_f32 {v(S+1)}, -{v(S)}, {v(S)}, {v(S+1)}
            v_max_f32 {v(S+1)}, 0, {v(S+1)}
            v_add_f32 {v(S+1)}, {f32(1e-5)}, {v(S+1)}
            v_rsq_f32 {v(S+1)}, {v(S+1)}
            s_lshl_b32 {t0}, {t0}, 2
            s_add_u32 {t0}, {t0}, {NM}
            v_mov_b32 {v(vA)}, {t0}
            v_mov_b32 {v(S+2)}, 1.0
            v_mov_b32 {v(S+3)}, 0''')
            self.exec(1)
            a(f'ds_write2_b32 {v(vA)}, {v(S)}, {v(S+1)} offset0:0 offset1:80'); a(f'ds_write2_b32 {v(vA)}, {v(S+2)}, {v(S+3)} offset0:160 offset1:240')
            self.exec(-1)
        self.only(f's_cmp_lt_u32 {t2}, {t1}', f)
        a.barrier()
        self.stamp('patch')

    def build(self):
        a = self.a; o = self.o
        steps = [self.prologue, self.prep]
        for lay in range(2):
            steps += [lambda l=lay: self.gemm(l), lambda l=lay: self.attn(l), lambda l=lay: self.p2(l), lambda l=lay: self.router(l), lambda l=lay: self.winner(l)]
        for k, f in enumerate(steps):
            if k < o['stop']: f()
        if o['stamps']:
            a.wall(); self.stamp('end')
            a('s_memrealtime s[4:5]'); a.wlg(0); a('s_mov_b32 s101, s4')
            a(f's_lshl_b32 {t0}, s2, 2'); a(f's_add_u32 {t0}, {t0}, {sW}'); a(f's_lshl_b32 {t0}, {t0}, 7'); a(f's_add_u32 {t0}, {t0}, {STAMP}')
            for k in range(32): a(f'v_writelane_b32 {v(vA)}, s{STAMPS[k]}, {k}')
            a(f'v_lshlrev_b32 {v(vB)}, 2, v0'); self.exec((1 << 32) - 1)
            a(f'buffer_store_dword {v(vA)}, {v(vB)}, {sWS}, {t0} offen')
        a.label('L_exit')
        K = NAME + '_kernel'
        head = open('header.txt').read()
        return (f'; @launch grid=(256,1,1) block=(256,1,1) lds=163840\n' + head +
                f'.amdgcn_target "amdgcn-amd-amdhsa--gfx950"\n.text\n.globl {K}\n.p2align 8\n.type {K},@function\n{K}:\n' + a.text() + 's_endpgm\n' +
                f'''
.section .rodata,"a"
.p2align 6
.amdhsa_kernel {K}
  .amdhsa_next_free_vgpr 512
  .amdhsa_next_free_sgpr 102
  .amdhsa_accum_offset 256
  .amdhsa_group_segment_fixed_size 0
  .amdhsa_kernarg_size 88
  .amdhsa_user_sgpr_count 2
  .amdhsa_user_sgpr_kernarg_segment_ptr 1
  .amdhsa_system_sgpr_workgroup_id_x 1
.end_amdhsa_kernel
''')

if __name__ == '__main__':
    o = eval('dict(' + (sys.argv[2] if len(sys.argv) > 2 else '') + ')')
    g = G(**o); t = g.build(); open(sys.argv[1], 'w').write(t)
    print('lines', t.count('\n'), 'nops', g.a.nops, g.names)
```

```python
import sys, math
from asmlib import *
NAME = 'interleave_layers__sliding_local_dilated__moe_arch_mod__prompt'
FL0 = 0x1000; WP = 0x10000; WOP = 0x200000
OB = (0x400000, 0x600000); OR_ = (0x800000, 0x840000); X1 = 0x900000
ST = (0xC00000, 0xC40000); CAND = (0xC80000, 0xC81000); CZ = (0xD00000, 0xD40000)
PY = (0xE00000, 0xE80000); NR = 0xF00000; OF = (0xF10000, 0xF20000); XF = 0xF30000; STAMP = 0xF80000
WSN = 0x1000000; OOB = 0x40000000
LH = 73728; GATE = 83200; UP = GATE + 36864; SCR = UP + 36864
NM = SCR; ZR = SCR + 1280; WRL = ZR + 1152; HW = WRL + 1152; WIN = HW + 2048
assert WIN + 16 <= 163840 and HW % 256 == 0
sX, sWS, sOUT, sWQ, sWO, sWR, sWG, sWU, sWD, sCD = [s(8 + 4 * i, 4) for i in range(10)]
sXCD, sLI, sCG, sW, sT, sJ, sP, sNON, sSW, sF, sCNT = [s(48 + i) for i in range(11)]
t0, t1, t2, t3, t4 = 's3', 's4', 's5', 's6', 's7'
sCID, sRED, sBIAS = 's59', 's60', 's[62:63]'
sMK = [s(64 + 2 * i, 2) for i in range(4)]; sSV = 's[72:73]'; sCM = 's[74:75]'
sKEY, sM, sSTD = 's76', 's77', 's61'
STAMPS = list(range(78, 100)) + list(range(20, 28)) + [100, 101]
vL, vXe, vXo, vHe, vHo, vL16, vI, vG = range(8)
vM = 8; vPM = 12; vSEL = 14; vXB = 16; vOB = 17; vGI = 18; vRA = 19
vA, vB, vC, vD, vE, vF = 22, 23, 24, 25, 26, 27
PAIR = 28; RSK = 38; CS = 44; RES = 58; ACC2 = 28; WRP = 48
XFB = 68; ACC = 108; WDF = 188
Qb, Kb, Vb, Rb = ACC, ACC + 20, ACC + 40, ACC + 60
def Wf(ks, n): return (256 + 16 * ks if ks < 16 else 224 + 16 * (ks - 16)) + 4 * n
BIG = 0xf149f2ca
ONES = 0x3f803f80
def f32(x):
    import struct
    return '0x%08x' % struct.unpack('<I', struct.pack('<f', x))[0]

class G:
    def __init__(self, **o):
        self.o = dict(stamps=False, wsc=' sc1', depth=3, stop=99, padto=0, osc=''); self.o.update(o)
        self.a = Asm(); self.ns = 0; self.names = []; self.nl = 0
    def L(self, p='L'):
        self.nl += 1; return f'{p}_{self.nl}'
    def stamp(self, name):
        if not self.o['stamps']: return
        a = self.a
        L = self.L()
        a.wlg(0); a(f's_memtime s[0:1]'); a.wlg(0)
        a(f's_mov_b32 s{STAMPS[self.ns]}, s0'); self.ns += 1; self.names.append(name)
    def only(self, cond, fn):
        L = self.L(); self.a(cond); self.a(f's_cbranch_scc0 {L}'); fn(); self.a.label(L)
    def exec(self, m):
        a = self.a
        if m == -1: a('s_mov_b64 exec, -1')
        else:
            lo, hi = m & 0xffffffff, m >> 32
            a(f's_mov_b32 exec_lo, 0x{lo:x}'); a(f's_mov_b32 exec_hi, 0x{hi:x}')
    def poll(self, body):
        a = self.a; L = self.L('P')
        a(f's_mov_b32 {sCNT}, 20000'); a.label(L)
        a(f's_sub_u32 {sCNT}, {sCNT}, 1'); a('s_cbranch_scc1 L_exit')
        body(); a(f's_cbranch_vccnz {L}')
    def xsum(self, rs, tmp, op='v_add_f32', full=True):
        a = self.a
        for sw in ('v_permlane32_swap_b32', 'v_permlane16_swap_b32'):
            if full:
                for k, r in enumerate(rs): a(f'v_mov_b32 {v(tmp+k)}, {v(r)}')
            for k, r in enumerate(rs): a(f'{sw} {v(r)}, {v(tmp+k)}')
            for k, r in enumerate(rs): a(f'{op} {v(r)}, {v(r)}, {v(tmp+k)}')
    def dpp(self, op, rs, mods):
        for m in mods:
            for r in rs: self.a(f'{op}_dpp {v(r)}, {v(r)}, {v(r)} {m} row_mask:0xf bank_mask:0xf')

    def prologue(self):
        a = self.a
        a('s_cmp_ge_u32 s2, 256'); a('s_cbranch_scc1 L_exit')
        if self.o['stamps'] or self.o['padto']: a('s_memrealtime s[100:101]')
        for srd, off in ((sWQ, 8), (sWO, 16), (sX, 0), (sWS, 80), (sWD, 56), (sWG, 40), (sWU, 48), (sWR, 32), (sOUT, 64)):
            b = int(srd[2:srd.index(':')]); a(f's_load_dwordx2 s[{b}:{b+1}], s[0:1], {off}')
        a('s_getpc_b64 s[44:45]')
        for srd, n in ((sWQ, 1990656), (sWO, 663552), (sX, 2359296), (sWS, WSN), (sWD, 5308416), (sWG, 5308416), (sWU, 5308416), (sWR, 1152), (sOUT, 2359296), (sCD, 'L_exit-L_pc')):
            b = int(srd[2:srd.index(':')])
            if srd == sWQ: a.raw('L_pc:')
            a(f's_mov_b32 s{b+2}, {n}'); a(f's_mov_b32 s{b+3}, 0x20000')
        a(f'''v_lshrrev_b32 v1, 6, v0
        s_and_b32 {sXCD}, s2, 7
        s_lshr_b32 {sLI}, s2, 3
        v_readfirstlane_b32 {sW}, v1
        v_and_b32 v0, 63, v0
        s_and_b32 {sCG}, {sLI}, 7
        s_lshr_b32 {t0}, {sLI}, 3
        s_lshl_b32 {sT}, {sXCD}, 2
        s_add_u32 {sT}, {sT}, {t0}
        s_lshr_b32 {sP}, {sT}, 4
        s_and_b32 {sJ}, {sT}, 15
        s_mul_i32 {sF}, {sXCD}, 18
        s_add_u32 {sF}, {sF}, {sLI}
        v_lshlrev_b32 {v(vA)}, 7, v0
        s_lshl_b32 {t0}, {sCG}, 13''')
        self.only(f's_cmp_eq_u32 {sW}, 0', lambda: a(f'buffer_load_dword v255, {v(vA)}, {sCD}, {t0} offen'))
        a(f'''v_and_b32 {v(vI)}, 15, v0
        v_lshrrev_b32 {v(vG)}, 4, v0
        v_lshlrev_b32 {v(vL16)}, 4, v0
        v_lshrrev_b32 {v(vA)}, 3, v0
        v_and_b32 {v(vB)}, 7, v0''')
        self.stamp('start')

    def prep(self):
        a = self.a
        Lwo, Lj, Lno = self.L(), self.L(), self.L()
        a(f'''v_bfe_u32 {v(vE)}, v0, 2, 2
        v_lshlrev_b32 {v(vE)}, 7, {v(vE)}
        v_and_b32 {v(vF)}, 3, v0
        s_cmp_ge_u32 {sLI}, 27
        s_cbranch_scc1 {Lwo}''')
        a(f'''s_mul_i32 {t0}, {sXCD}, 27
        s_add_u32 {t0}, {t0}, {sLI}
        s_mul_i32 {t1}, {t0}, 5462
        s_lshr_b32 {t1}, {t1}, 16
        s_mul_i32 {t2}, {t1}, 12
        s_sub_u32 {t2}, {t0}, {t2}
        v_mul_u32_u24 {v(vC)}, 3456, {v(vA)}
        v_lshl_add_u32 {v(vC)}, {v(vB)}, 4, {v(vC)}
        s_lshl_b32 {t3}, {t1}, 2
        s_add_u32 {t3}, {t3}, {sW}
        s_mul_i32 {t3}, {t3}, {8*3456}
        s_mul_i32 {t4}, {t2}, 288
        s_add_u32 {t3}, {t3}, {t4}
        s_mul_i32 {t4}, {sW}, 3072
        s_add_u32 m0, {t4}, {GATE}''')
        a(f'buffer_load_dwordx4 {v(vC)}, {sWQ}, {t3} offen lds')
        a(f's_add_u32 m0, {t4}, {GATE + 896}')
        a(f'buffer_load_dwordx4 {v(vC)}, {sWQ}, {t3} offen offset:128 lds')
        a(f's_add_u32 m0, {t4}, {GATE + 2*896}'); self.exec(0x0303030303030303)
        a(f'buffer_load_dwordx4 {v(vC)}, {sWQ}, {t3} offen offset:256 lds'); self.exec(-1)
        a(f's_load_dword {sNON}, s[12:13], 0')
        a(f'v_mul_u32_u24 {v(vD)}, 3072, {v(vG)}'); a(f'v_add3_u32 {v(vD)}, {v(vD)}, {v(vE)}, 0')
        a(f's_mul_i32 {t4}, {sW}, 72')
        for k, (x0, cm) in enumerate(((0, 8), (40, 8), (32, 0))):
            r = 60 + k
            a(f's_add_u32 {t3}, {t4}, {x0}')
            a(f'v_mul_u32_u24 {v(r)}, {cm}, {v(vF)}'); a(f'v_add_u32 {v(r)}, {t3}, {v(r)}')
            a(f'v_lshrrev_b32 v63, 7, {v(r)}'); a(f'v_mul_u32_u24 v63, 896, v63'); a(f'v_add3_u32 {v(r)}, {v(r)}, v63, {v(vD)}')
            a(f'v_add_u32 {v(r)}, {GATE}, {v(r)}')
        a(f'''s_and_b32 {t3}, {t2}, 3
        s_lshl_b32 {t0}, {t3}, 6
        s_lshl_b32 {t3}, {t3}, 2
        s_add_u32 {t3}, {t3}, {sW}
        s_mul_i32 {t3}, {t3}, {2*62208}
        s_mul_i32 {t4}, {t1}, 3456
        s_add_u32 {t3}, {t3}, {t4}
        s_add_u32 {t3}, {t3}, {WP}
        s_lshr_b32 {t2}, {t2}, 2
        s_mul_i32 {t1}, {t1}, 3
        s_add_u32 {t0}, {t0}, {t1}
        s_add_u32 {sCID}, {t0}, {t2}
        v_lshrrev_b32 v63, 1, {v(vI)}
        v_mul_u32_u24 v63, {62208-128}, v63
        v_lshl_add_u32 v63, {v(vI)}, 6, v63
        v_lshl_add_u32 v63, {v(vG)}, 4, v63''')
        a.wvm(0); a.barrier()
        for k in range(3):
            for jh in range(2): a(f'ds_read_b64_tr_b16 {v(XFB+4*k+2*jh, 2)}, {v(60+k)} offset:{512*jh}')
        a(f's_lshl_b32 {t4}, {t2}, 10'); a(f's_add_u32 {t4}, {t4}, {t3}')
        a(f'buffer_store_dwordx4 {v(XFB,4)}, {v(vL16)}, {sWS}, {t4} offen sc1')
        a(f's_add_u32 {t4}, {t4}, 62208')
        a(f'buffer_store_dwordx4 {v(XFB+4,4)}, {v(vL16)}, {sWS}, {t4} offen sc1')
        a(f's_lshl_b32 {t4}, {t2}, 7'); a(f's_add_u32 {t4}, {t4}, {t3}'); self.exec(0x000f000f000f000f)
        a(f'buffer_store_dwordx4 {v(XFB+8,4)}, v63, {sWS}, {t4} offen offset:3072 sc1'); self.exec(-1)
        a(f's_branch {Lj}')
        a.label(Lwo)
        a(f'''s_sub_u32 {t0}, {sLI}, 27
        s_lshl_b32 {t0}, {t0}, 3
        s_add_u32 {t0}, {t0}, {sXCD}
        s_min_u32 {t0}, {t0}, 35
        s_lshr_b32 {t1}, {t0}, 1
        s_and_b32 {t2}, {t0}, 1
        s_lshl_b32 {sCID}, {t2}, 5
        s_add_u32 {sCID}, {sCID}, {t1}
        s_add_u32 {sCID}, {sCID}, 256''')
        a(f'''s_lshr_b32 {t3}, {sW}, 1
        s_lshl_b32 {t3}, {t3}, 2
        s_lshl_b32 {t4}, {sW}, 3
        s_add_u32 {t3}, {t3}, {t4}
        s_mul_i32 {t4}, {t1}, 36
        s_add_u32 {t3}, {t3}, {t4}
        s_sub_u32 {t4}, {t1}, 16
        s_lshl_b32 {t4}, {t4}, 2
        s_add_u32 {t4}, {t4}, {sW}
        s_mul_i32 {t4}, {t4}, 72
        s_add_u32 {t4}, {t4}, 16
        s_cmp_ge_u32 {t1}, 16
        s_cselect_b32 {t3}, {t4}, {t3}
        s_cselect_b32 {t4}, 32, 0
        v_lshrrev_b32 {v(vC)}, 2, {v(vA)}
        v_mul_u32_u24 {v(vC)}, {t4}, {v(vC)}
        v_add_u32 {v(vC)}, {v(vC)}, {v(vA)}
        v_mul_u32_u24 {v(vC)}, 1152, {v(vC)}
        v_lshl_add_u32 {v(vC)}, {v(vB)}, 4, {v(vC)}
        s_mul_i32 {t3}, {t3}, 1152
        s_mul_i32 {t4}, {t2}, 576
        s_add_u32 {t3}, {t3}, {t4}
        s_mul_i32 {t4}, {sW}, 5120''')
        for q in range(5):
            a(f's_add_u32 m0, {t4}, {GATE + 896*q}')
            if q == 4: self.exec(0x0f0f0f0f0f0f0f0f)
            a(f'buffer_load_dwordx4 {v(vC)}, {sWO}, {t3} offen offset:{128*q} lds')
        self.exec(-1)
        a(f's_load_dword {sNON}, s[12:13], 0')
        a(f'v_mul_u32_u24 {v(vD)}, 5120, {v(vG)}'); a(f'v_add_u32 {v(vD)}, {v(vD)}, {v(vE)}')
        a(f's_mul_i32 {t4}, {sW}, 144')
        for k in range(5):
            r = 58 + k
            a(f's_add_u32 {t3}, {t4}, {64*(k>>1) + 8*(k&1)}')
            if k < 4: a(f'v_lshlrev_b32 {v(r)}, 4, {v(vF)}')
            else: a(f'v_and_b32 {v(r)}, 1, {v(vF)}'); a(f'v_lshlrev_b32 {v(r)}, 3, {v(r)}')
            a(f'v_add_u32 {v(r)}, {t3}, {v(r)}')
            a(f'v_lshrrev_b32 v63, 7, {v(r)}'); a(f'v_mul_u32_u24 v63, 896, v63'); a(f'v_add3_u32 {v(r)}, {v(r)}, v63, {v(vD)}')
            a(f'v_add_u32 {v(r)}, {GATE}, {v(r)}')
        a(f'''s_lshl_b32 {t3}, {t2}, 2
        s_add_u32 {t3}, {t3}, {sW}
        s_mul_i32 {t3}, {t3}, 82944
        s_mul_i32 {t4}, {t1}, 4608
        s_add_u32 {t3}, {t3}, {t4}
        s_add_u32 {t3}, {t3}, {WOP}
        s_add_u32 {t4}, {t3}, 4096
        v_lshlrev_b32 v63, 7, {v(vG)}
        v_lshl_add_u32 v63, {v(vI)}, 4, v63''')
        a.wvm(0); a.barrier()
        for k in range(5):
            for jh in range(2): a(f'ds_read_b64_tr_b16 {v(XFB+4*k+2*jh, 2)}, {v(58+k)} offset:{512*jh}')
        for k in range(4): a(f'buffer_store_dwordx4 {v(XFB+4*k,4)}, {v(vL16)}, {sWS}, {t3} offen offset:{1024*k} sc1')
        self.exec(0x00ff00ff00ff00ff)
        a(f'buffer_store_dwordx4 {v(XFB+16,4)}, v63, {sWS}, {t4} offen sc1'); self.exec(-1)
        a.label(Lj)
        self.stamp('prepst')
        a(f'''v_mov_b32 v64, -1
        v_mov_b32 v65, -1
        v_mov_b32 v66, -1
        v_mov_b32 v67, -1
        s_lshl_b32 {t0}, {sT}, 2
        s_add_u32 {t0}, {t0}, {sW}
        s_mul_i32 {t0}, {t0}, 1152
        s_mul_i32 {t1}, {sCG}, 144
        s_add_u32 {t0}, {t0}, {t1}''')
        self.exec(0x1ff)
        for l in range(2): a(f's_add_u32 {t1}, {t0}, {CZ[l]}'); tk = a(f'buffer_store_dwordx4 v[64:67], {v(vL16)}, {sWS}, {t1} offen sc1')
        a(f's_sub_u32 {sRED}, {sLI}, 24'); a(f's_lshl_b32 {sRED}, {sRED}, 3'); a(f's_add_u32 {sRED}, {sRED}, {sXCD}')
        def pz():
            self.exec(3); a(f's_lshl_b32 {t1}, {sRED}, 5'); a(f's_add_u32 {t1}, {t1}, {NR}')
            a(f'buffer_store_dwordx4 v[64:67], {v(vL16)}, {sWS}, {t1} offen sc1')
        self.only(f's_cmp_lt_u32 {sRED}, 36', pz)
        def py():
            self.exec((1 << 40) - 1)
            a(f's_lshl_b32 {t0}, {sF}, 2'); a(f's_add_u32 {t0}, {t0}, {sW}'); a(f's_mul_i32 {t0}, {t0}, 640')
            for l in range(2): a(f's_add_u32 {t1}, {t0}, {PY[l]}'); a(f'buffer_store_dwordx4 v[64:67], {v(vL16)}, {sWS}, {t1} offen sc1')
        self.only(f's_cmp_lt_u32 {sLI}, 18', py)
        self.exec(-1)
        a(f'''v_and_b32 {v(vC)}, 6, {v(vA)}
        v_xor_b32 {v(vC)}, {v(vC)}, {v(vB)}
        v_lshlrev_b32 {v(vC)}, 4, {v(vC)}
        v_mul_u32_u24 {v(vD)}, 2304, {v(vA)}
        v_add_u32 {v(vC)}, {v(vC)}, {v(vD)}
        s_lshl_b32 {t0}, {sJ}, 7
        s_add_u32 {t0}, {t0}, {sP}
        s_mul_i32 {t0}, {t0}, 1152
        s_mul_i32 {t1}, {sW}, 36864
        s_add_u32 {t1}, {t1}, {t0}
        s_mul_i32 {t2}, {sW}, 18432''')
        first = None
        for rg in range(2):
            if rg: a(f's_add_u32 {t1}, {t1}, 18432')
            for blk in range(9):
                a(f's_add_u32 m0, {t2}, {rg*9216 + blk*896}')
                tx = a(f'buffer_load_dwordx4 {v(vC)}, {sX}, {t1} offen offset:{128*blk} lds')
        a.wvm(18); a.barrier()
        def flag():
            a(f's_mul_i32 {sNON}, {sNON}, 1664525'); a(f's_add_u32 {sNON}, {sNON}, 1013904223')
        flag()
        a(f'v_mov_b32 v64, {sNON}')
        def fl():
            self.exec(1); a(f's_lshl_b32 {t1}, {sCID}, 4'); a(f's_add_u32 {t1}, {t1}, {FL0}')
            a(f'buffer_store_dword v64, {v(vL16)}, {sWS}, {t1} offen sc1'); self.exec(-1)
        self.only(f's_cmp_eq_u32 {sW}, 0', fl)
        self.stamp('flag0')
        def halo():
            a(f's_cmp_eq_u32 {sJ}, 0'); a(f's_cselect_b32 {t1}, 0, 18432'); a(f's_sub_u32 {t1}, {t0}, {t1}')
            for blk in range(9):
                a(f's_mov_b32 m0, {LH + blk*(1040-128)}')
                a(f'buffer_load_dwordx4 {v(vC)}, {sX}, {t1} offen offset:{128*blk} lds')
        self.only(f's_cmp_eq_u32 {sW}, 3', halo)
        def wr():
            a(f's_mov_b32 m0, {WRL}'); a(f'buffer_load_dwordx4 {v(vL16)}, {sWR}, 0 offen lds')
            self.exec(0xff); a(f'buffer_load_dwordx4 {v(vL16)}, {sWR}, 0 offen offset:1024 lds'); self.exec(-1)
        self.only(f's_cmp_eq_u32 {sW}, 2', wr)
        a(f'buffer_load_dwordx4 v[56:59], {v(vL16)}, {sWR}, 0 offen')
        tw = a(f'buffer_load_dwordx4 v[60:63], {v(vL16)}, {sWR}, 0 offen offset:1024')
        def ffn0():
            a(f'''v_mul_u32_u24 {v(vD)}, 1152, {v(vA)}
            v_lshl_add_u32 {v(vD)}, {v(vB)}, 4, {v(vD)}
            s_lshl_b32 {t1}, {sF}, 2
            s_add_u32 {t1}, {t1}, {sW}
            s_mul_i32 {t1}, {t1}, 9216
            s_mul_i32 {t2}, {sW}, 9216''')
            for blk in range(9):
                a(f's_add_u32 m0, {t2}, {UP + blk*896}')
                a(f'buffer_load_dwordx4 {v(vD)}, {sWD}, {t1} offen offset:{128*blk} lds')
            self.gu_dma(0, range(9))
        self.only(f's_cmp_lt_u32 {sLI}, 18', ffn0)
        self.consts()
        a.wait(tw)
        a(f's_mov_b32 {t0}, {ONES}'); a(f'v_mov_b32 {v(vA)}, 0')
        for k in range(8): a(f'v_dot2_f32_bf16 {v(vA)}, v{56+k}, {t0}, {v(vA)}')
        self.dpp('v_add_f32', [vA], ['row_ror:8', 'row_ror:4', 'row_ror:2', 'row_ror:1']); self.xsum([vA], vB)
        a(f'v_readfirstlane_b32 {sSW}, {v(vA)}')
        a(f's_mul_i32 {t2}, {sW}, 18432'); a(f'v_add_u32 {v(vA)}, {t2}, {v(vL16)}')
        a(f's_lshl_b32 {t2}, {sW}, 6'); a(f's_add_u32 {t2}, {t2}, {NM + 64}')
        a(f'v_lshrrev_b32 {v(vB)}, 3, v0'); a(f'v_lshl_add_u32 {v(vB)}, {v(vB)}, 2, {t2}')
        self.stats1(vA, [(rg * 9216, 1024) for rg in range(2)], vB, [0, 8])
        def hs():
            a(f'v_add_u32 {v(vA)}, {LH}, {v(vL16)}'); a(f'v_subrev_u32 {v(vB)}, 256, {v(vB)}')
            self.stats1(vA, [(0, 1040)], vB, [8], dup=True)
        self.only(f's_cmp_eq_u32 {sW}, 3', hs)
        self.ones()
        def hz():
            a(f'v_mov_b32 v60, 0\nv_mov_b32 v61, 0\nv_mov_b32 v62, 0\nv_mov_b32 v63, 0\nv_add_u32 {v(vA)}, {HW}, {v(vL16)}')
            a(f'ds_write_b128 {v(vA)}, v[60:63]'); a(f'ds_write_b128 {v(vA)}, v[60:63] offset:1024')
        self.only(f's_cmp_eq_u32 {sW}, 1', hz)
        self.stamp('stats')
        def p0():
            a(f's_lshr_b32 {t1}, {sCG}, 1'); a(f's_lshl_b32 {t1}, {t1}, 10'); a(f's_add_u32 {t1}, {t1}, {FL0}')
            self.exec((1 << 54) - 1)
            def b(): a(f'buffer_load_dword {v(vA)}, {v(vL16)}, {sWS}, {t1} offen sc1'); a(f'v_cmp_ne_u32 vcc, {sNON}, {v(vA)}')
            self.poll(b); self.exec(-1)
        self.only(f's_cmp_eq_u32 {sW}, 0', p0)
        a.wvm(9)
        a.barrier()
        self.stamp('h0')

    def ones(self):
        a = self.a
        def f():
            a(f'v_mul_u32_u24 {v(vA)}, 1040, v0'); a(f'v_add_u32 {v(vA)}, {LH + 1024}, {v(vA)}')
            for k in range(4): a(f'v_mov_b32 v{60+k}, {ONES}')
            self.exec(0x1ff); a(f'ds_write_b128 {v(vA)}, v[60:63]'); self.exec(-1)
        self.only(f's_cmp_eq_u32 {sW}, 2', f)

    def gu_dma(self, mat, qs):
        a = self.a
        a(f'''v_bfe_u32 {v(vE)}, v0, 2, 2
        v_lshl_add_u32 {v(vE)}, {v(vG)}, 3, {v(vE)}
        v_mul_u32_u24 {v(vE)}, 9216, {v(vE)}
        v_and_b32 {v(vF)}, 1, {v(vG)}
        v_xor_b32 {v(vF)}, {v(vF)}, v0
        v_xor_b32 {v(vF)}, {2*mat}, {v(vF)}
        v_and_b32 {v(vF)}, 3, {v(vF)}
        v_lshl_add_u32 {v(vE)}, {v(vF)}, 4, {v(vE)}
        s_lshr_b32 {t1}, {sW}, 1
        s_mul_i32 {t1}, {t1}, 294912
        s_and_b32 {t2}, {sW}, 1
        s_mul_i32 {t2}, {t2}, 36864
        s_add_u32 {t1}, {t1}, {t2}
        s_lshl_b32 {t2}, {sF}, 6
        s_add_u32 {t1}, {t1}, {t2}
        s_lshl_b32 {t2}, {sW}, 10''')
        for q in qs:
            a(f's_add_u32 m0, {t2}, {(UP if mat else GATE) + 4096*q}')
            a(f's_add_u32 {t3}, {t1}, {589824*q}')
            a(f'buffer_load_dwordx4 {v(vE)}, {sWU if mat else sWG}, {t3} offen lds')

    def stats1(self, va, groups, vdst, slots, dup=False):
        a = self.a
        n = len(groups)
        for k, (o, st) in enumerate(groups):
            for blk in range(9): a(f'ds_read_b128 {v(ACC + 36*k + 4*blk, 4)}, {v(va)} offset:{o + st*blk}')
        a(f's_mov_b32 {t0}, {ONES}')
        S = [28 + 2*k for k in range(n)]
        for k in range(n):
            for e in range(36):
                x = v(ACC + 36*k + e)
                a(f'v_dot2_f32_bf16 {v(S[k])}, {x}, {t0}, {v(S[k]) if e else 0}')
                a(f'v_dot2_f32_bf16 {v(S[k]+1)}, {x}, {x}, {v(S[k]+1) if e else 0}')
        self.dpp('v_add_f32', range(28, 28 + 2*n), ['quad_perm:[1,0,3,2]', 'quad_perm:[2,3,0,1]', 'row_half_mirror'])
        a(f's_mov_b32 {t0}, {f32(1/576)}')
        for k in range(n):
            a(f'''v_mul_f32 {v(S[k])}, {f32(-1/576)}, {v(S[k])}
            v_mov_b32 v40, {f32(1e-5)}
            v_fma_f32 {v(S[k]+1)}, {v(S[k]+1)}, {t0}, v40
            v_fma_f32 {v(S[k]+1)}, -{v(S[k])}, {v(S[k])}, {v(S[k]+1)}
            v_max_f32 {v(S[k]+1)}, v40, {v(S[k]+1)}
            v_rsq_f32 {v(S[k]+1)}, {v(S[k]+1)}''')
        self.exec(0x0101010101010101)
        for k in range(n):
            a(f'ds_write2_b32 {v(vdst)}, {v(S[k])}, {v(S[k]+1)} offset0:{slots[k]} offset1:{80+slots[k]}')
            if dup: a(f'ds_write2_b32 {v(vdst)}, {v(S[k])}, {v(S[k]+1)} offset0:0 offset1:80')
        self.exec(-1)

    def consts(self):
        a = self.a
        a(f'''v_lshrrev_b32 v28, 3, {v(vI)}
        v_mul_u32_u24 v28, 9216, v28
        v_and_b32 v29, 7, {v(vI)}
        v_lshl_add_u32 v30, {v(vG)}, 7, v28
        v_lshl_add_u32 {v(vXB)}, v29, 4, v30
        v_and_b32 v31, 6, v29
        v_xor_b32 v32, v31, {v(vG)}
        v_lshlrev_b32 v32, 4, v32
        v_lshl_add_u32 v32, v29, 7, v32
        v_add_u32 {v(vXe)}, v32, v28
        v_xor_b32 {v(vXo)}, 64, {v(vXe)}
        v_cmp_gt_u32 vcc, 8, {v(vI)}
        v_mov_b32 v33, {LH + 1024}
        v_add_u32 v34, {LH - 9216}, {v(vXe)}
        v_add_u32 v35, {LH - 9216}, {v(vXo)}
        v_cndmask_b32 {v(vHe)}, v34, v33, vcc
        v_cndmask_b32 {v(vHo)}, v35, v33, vcc''')
        a(f's_mul_i32 {t0}, {sCG}, 9'); a(f's_mul_i32 {t1}, {sW}, 18432')
        a(f'v_lshl_add_u32 v33, v29, 7, v28'); a(f'v_add_u32 v33, {t1}, v33')
        for P in range(3):
            a(f's_add_u32 {t2}, {t0}, {4*P}')
            if P < 2: a(f'v_add_u32 v34, {t2}, {v(vG)}')
            else: a(f'v_mov_b32 v34, {t2}')
            a(f'''v_lshrrev_b32 v35, 3, v34
            v_and_b32 v34, 7, v34
            v_xor_b32 v34, v34, v31
            v_lshl_add_u32 v35, v35, 10, v33
            v_lshl_add_u32 {v(vRA+P)}, v34, 4, v35''')
        a(f'v_and_b32 v34, 1, {v(vG)}'); a(f'v_lshl_add_u32 {v(vRA+2)}, v34, 3, {v(vRA+2)}')
        a(f'''v_lshlrev_b32 v34, 14, v34
        v_lshrrev_b32 v35, 1, {v(vG)}
        v_lshl_add_u32 v34, v35, 8, v34
        v_lshl_add_u32 {v(vOB)}, {v(vI)}, 4, v34
        v_lshlrev_b32 v34, 10, {v(vG)}
        v_lshl_add_u32 {v(vGI)}, {v(vI)}, 2, v34''')
        a(f'v_mov_b32 v36, 0x{BIG:x}'); a('v_mov_b32 v37, 0xffff'); a('v_mov_b32 v38, 0xffff0000')
        for r in range(4):
            a(f'''v_lshl_add_u32 v34, {v(vG)}, 2, {r}
            v_cmp_le_u32 {sMK[r]}, v34, {v(vI)}
            v_sub_u32 v35, {v(vI)}, v34
            v_and_b32 v35, 8, v35
            v_cmp_eq_u32 vcc, 0, v35
            v_cndmask_b32 {v(vM+r)}, v36, 0, vcc
            v_cndmask_b32 v{40+r}, 0, v{37+(r&1)}, {sMK[r]}''')
        a(f'v_or_b32 {v(vPM)}, v40, v41'); a(f'v_or_b32 {v(vPM+1)}, v42, v43')
        a(f'''v_and_b32 v34, 0x33, v0
        v_mov_b32 v35, 0x3f80
        v_mov_b32 v36, 0x3f800000
        v_cmp_eq_u32 vcc, 16, v34
        v_cndmask_b32 {v(vSEL)}, 0, v35, vcc
        v_cmp_eq_u32 vcc, 17, v34
        v_cndmask_b32 {v(vSEL)}, {v(vSEL)}, v36, vcc
        v_cmp_eq_u32 vcc, 18, v34
        v_cndmask_b32 {v(vSEL+1)}, 0, v35, vcc
        s_cmp_eq_u32 {sJ}, 0
        s_cselect_b32 s62, 0x{BIG:x}, 0
        s_mov_b32 s63, s62''')

    def xread(self, ks, t):
        d = XFB + 20 * (ks & 1) + 4 * t
        if t == 0: return f'ds_read_b128 {v(d,4)}, {v(vHo if ks & 1 else vHe)} offset:{1040*(ks>>1)}'
        return f'ds_read_b128 {v(d,4)}, {v(vXo if ks & 1 else vXe)} offset:{18432*(t-1) + 1024*(ks>>1)}'
    def gemm(self, lay):
        a = self.a; D = self.o['depth']; sc = self.o['wsc']
        def wload(ks):
            r = [f's_add_u32 {t4}, {t3}, {3456*ks}']
            for n in range(3): r.append(f'buffer_load_dwordx4 {v(Wf(ks,n),4)}, {v(vL16)}, {sWS}, {t4} offen offset:{1024*n}{sc}')
            r.append(f'buffer_load_dwordx4 {v(Wf(ks,3),4)}, {v(vF)}, {sWS}, {t4} offen offset:3072{sc}')
            return r
        if lay == 0:
            a(f'''s_lshl_b32 {t3}, {sCG}, 2
            s_add_u32 {t3}, {t3}, {sW}
            s_mul_i32 {t3}, {t3}, 62208
            s_add_u32 {t3}, {t3}, {WP}
            v_lshlrev_b32 {v(vF)}, 4, {v(vG)}
            v_lshl_add_u32 {v(vF)}, {v(vI)}, 6, {v(vF)}
            v_mov_b32 {v(vE)}, {OOB}
            v_cmp_gt_u32 vcc, 6, {v(vI)}
            v_cndmask_b32 {v(vF)}, {v(vE)}, {v(vF)}, vcc''')
            for ks in range(D):
                for x in wload(ks): a(x)
            def wd():
                a(f'''v_bfe_u32 {v(vA)}, v0, 2, 2
                v_lshlrev_b32 {v(vA)}, 7, {v(vA)}
                v_and_b32 {v(vB)}, 3, v0
                v_lshl_add_u32 {v(vA)}, {v(vB)}, 3, {v(vA)}
                v_mul_u32_u24 {v(vB)}, 9216, {v(vG)}
                v_add_u32 {v(vA)}, {v(vA)}, {v(vB)}
                s_mul_i32 {t0}, {sW}, 9''')
                for n in range(9):
                    a(f'''s_add_u32 {t1}, {t0}, {n}
                    s_lshr_b32 {t2}, {t1}, 2
                    s_mul_i32 {t2}, {t2}, 896
                    s_lshl_b32 {t1}, {t1}, 5
                    s_add_u32 {t1}, {t1}, {t2}
                    s_add_u32 {t1}, {t1}, {UP}
                    v_add_u32 {v(vB)}, {t1}, {v(vA)}''')
                    for jh in range(2): a(f'ds_read_b64_tr_b16 {v(WDF+4*n+2*jh,2)}, {v(vB)} offset:{512*jh}')
                a.wlg(0)
            self.only(f's_cmp_lt_u32 {sLI}, 18', wd)
        for t in range(5): a(self.xread(0, t))
        for ks in range(18):
            fill = []
            if ks + 1 < 18: fill += [self.xread(ks + 1, t) for t in range(5)]
            if lay == 0 and ks + D < 18: fill += wload(ks + D)
            if ks == 17: fill += self.pre_attn(lay)
            k = 0
            for t in range(5):
                for n in range(4):
                    d = ACC + 20 * n + 4 * t; x = v(XFB + 20 * (ks & 1) + 4 * t, 4); w = v(Wf(ks, n), 4)
                    A, B = (x, w) if n == 2 else (w, x)
                    a(f'v_mfma_f32_16x16x32_bf16 {v(d,4)}, {A}, {B}, {v(d,4) if ks else 0}')
                    k += 1
                    if fill and (k % 2 == 0 or len(fill) > (20 - k) // 2 + 1): a(fill.pop(0))
            for x in fill: a(x)
        self.stamp('gemm')
    def pre_attn(self, lay):
        r = [f'v_lshlrev_b32 {v(vA)}, 2, {v(vI)}', f'v_add_u32 {v(vA)}, {NM}, {v(vA)}',
             f'v_lshlrev_b32 {v(vB)}, 4, {v(vG)}', f'v_add_u32 {v(vB)}, {NM}, {v(vB)}']
        r += [f'ds_read_b128 {v(RES,4)}, {v(vRA)}', f'ds_read_b128 {v(RES+4,4)}, {v(vRA+1)}', f'ds_read_b64 {v(RES+8,2)}, {v(vRA+2)}']
        r += [f'ds_read2_b32 {v(PAIR+2*t,2)}, {v(vA)} offset0:{16*t} offset1:{80+16*t}' for t in range(5)]
        r += self.vform(0) + self.vform(1)
        return r
    def vform(self, t):
        d = XFB + 8 * (t & 1)
        return [f'ds_read_b128 {v(d,4)}, {v(vB)} offset:{64*t}', f'ds_read_b128 {v(d+4,4)}, {v(vB)} offset:{320+64*t}']

    def attn(self, lay):
        a0 = self.a
        if lay == 0:
            def p():
                a0(f's_lshr_b32 {t1}, {sCG}, 2'); a0(f's_lshl_b32 {t1}, {t1}, 9'); a0(f's_add_u32 {t1}, {t1}, {FL0 + 4096}')
                self.exec((1 << 18) - 1)
                def b(): a0(f'buffer_load_dword {v(vC)}, {v(vL16)}, {sWS}, {t1} offen sc1'); a0(f'v_cmp_ne_u32 vcc, {sNON}, {v(vC)}')
                self.poll(b); self.exec(-1)
            self.only(f's_cmp_eq_u32 {sW}, 0', p)
        a0.barrier()
        a0(f's_mul_i32 {t0}, {sW}, 20480'); a0(f's_mul_i32 {t1}, {sCG}, 82944'); a0(f's_add_u32 {t1}, {t1}, {t0}')
        dma = []
        for q in range(21):
            x = []
            if q % 4 == 0: x += [f's_add_u32 m0, {t0}, {1024*q}', f's_add_u32 {t2}, {t1}, {WOP + 1024*q}']
            x.append(f'buffer_load_dwordx4 {v(vL16)}, {sWS}, {t2} offen offset:{1024*(q%4)}{self.o["wsc"]} lds')
            dma.append(x)
        cnt = [0]
        def a(t):
            for l in t.strip().split('\n'):
                a0(l.strip()); cnt[0] += 1
                if cnt[0] % 12 == 0 and dma:
                    for x in dma.pop(0): a0(x)
        csQ, csK, csR, csV = CS, CS + 4, CS + 8, CS + 12
        for t in range(5): a(f'v_mul_f32 {v(RSK+t)}, {f32(18**-0.5 * math.log2(math.e))}, {v(PAIR+2*t+1)}')
        for cs, b in ((csQ, Qb), (csK, Kb), (csR, Rb)):
            for r in range(4): a(f'v_mov_b32_dpp {v(cs+r)}, {v(b+r)} row_newbcast:0 row_mask:0xf bank_mask:0xf')
        a(f'v_mov_b32 {v(csV)}, {v(Vb)}\nv_mov_b32 {v(csV+1)}, {v(Vb)}')
        a(f'v_permlane32_swap_b32 {v(csV)}, {v(csV+1)}')
        SC = XFB + 20
        def fold(t):
            P = v(PAIR + 2 * t, 2); kp = v(RSK + (t & ~1), 2); ks_ = f'op_sel:[0,{t&1}] op_sel_hi:[1,{t&1}]'
            q, k, vv, r = Qb + 4*t, Kb + 4*t, Vb + 4*t, Rb + 4*t
            for b, cs in ((r, csR), (k, csK)) + (((q, csQ),) if t else ()):
                for h in (0, 2): a(f'v_pk_fma_f32 {v(b+h,2)}, {v(cs+h,2)}, {P}, {v(b+h,2)} op_sel_hi:[1,0,1]')
            a(f'v_pk_mul_f32 {v(r,2)}, {v(r,2)}, {P} op_sel:[0,1] op_sel_hi:[1,1]')
            a(f'v_pk_mul_f32 {v(r+2,2)}, {v(r+2,2)}, {kp} {ks_}')
            for h in (0, 2): a(f'v_pk_mul_f32 {v(k+h,2)}, {v(k+h,2)}, {kp} {ks_}')
            if t:
                for h in (0, 2): a(f'v_pk_mul_f32 {v(q+h,2)}, {v(q+h,2)}, {P} op_sel:[0,1] op_sel_hi:[1,1]')
                a(f'v_cvt_pk_bf16_f32 {v(q)}, {v(q)}, {v(q+1)}\nv_cvt_pk_bf16_f32 {v(q+1)}, {v(q+2)}, {v(q+3)}')
            a(f'v_cvt_pk_bf16_f32 {v(q+2)}, {v(r)}, {v(r+1)}\nv_mov_b32 {v(q+3)}, 0x3f80')
            a(f'v_cvt_pk_bf16_f32 {v(k)}, {v(k)}, {v(k+1)}\nv_cvt_pk_bf16_f32 {v(k+1)}, {v(k+2)}, {v(k+3)}')
            a(f'v_cvt_pk_bf16_f32 {v(k+2)}, {v(r+2)}, {v(r+3)}\nv_mov_b32 {v(k+3)}, 0')
            nm = XFB + 8 * (t & 1)
            for h in (0, 2): a(f'v_pk_fma_f32 {v(vv+h,2)}, {v(nm+h,2)}, {v(csV,2)}, {v(vv+h,2)} op_sel_hi:[1,0,1]')
            a(f'v_mfma_f32_16x16x16_bf16 {v(r,4)}, {v(q+2,2)}, {v(vSEL,2)}, 0')
            for h in (0, 2): a(f'v_pk_mul_f32 {v(vv+h,2)}, {v(vv+h,2)}, {v(nm+4+h,2)}')
            if t: a(f'v_mfma_f32_16x16x32_bf16 {v(SC+4*(t-1),4)}, {v(k,4)}, {v(q,4)}, {v(vM,4)}')
            if t + 2 < 5:
                for x in self.vform(t + 2): a(x)
            a(f'v_cvt_pk_bf16_f32 {v(Vb+2*t)}, {v(vv)}, {v(vv+1)}\nv_cvt_pk_bf16_f32 {v(Vb+2*t+1)}, {v(vv+2)}, {v(vv+3)}')
            if t: a(f'v_mfma_f32_16x16x32_bf16 {v(q-4,4)}, {v(k-4,4)}, {v(q,4)}, {v(vM,4)}')
        for t in range(5): fold(t)
        for t in range(5):
            r = Rb + 4*t
            a(f'v_cvt_pk_bf16_f32 {v(Rb+2*t)}, {v(r)}, {v(r+1)}\nv_cvt_pk_bf16_f32 {v(Rb+2*t+1)}, {v(r+2)}, {v(r+3)}')
        for h in (0, 2): a(f'v_pk_add_f32 {v(Qb+h,2)}, {v(Qb+h,2)}, {sBIAS}')
        MX = XFB + 16; MT = XFB + 36
        for t in range(4):
            sc_ = SC + 4*t
            for r in range(4): a(f'v_cndmask_b32 {v(sc_+r)}, {v(Qb+4*t+r)}, {v(sc_+r)}, {sMK[r]}')
            a(f'v_max3_f32 {v(MX+t)}, {v(sc_)}, {v(sc_+1)}, {v(sc_+2)}\nv_max_f32 {v(MX+t)}, {v(MX+t)}, {v(sc_+3)}')
        a(f'''v_permlane32_swap_b32 {v(MX)}, {v(MX+1)}
        v_permlane32_swap_b32 {v(MX+2)}, {v(MX+3)}
        v_max_f32 {v(MX)}, {v(MX)}, {v(MX+1)}
        v_max_f32 {v(MX+2)}, {v(MX+2)}, {v(MX+3)}
        v_permlane16_swap_b32 {v(MX)}, {v(MX+2)}
        v_max_f32 {v(MX)}, {v(MX)}, {v(MX+2)}
        v_mov_b32 {v(MX+2)}, {v(MX)}
        v_permlane16_swap_b32 {v(MX)}, {v(MX+2)}
        v_mov_b32 {v(MX+1)}, {v(MX)}
        v_mov_b32 {v(MX+3)}, {v(MX+2)}
        v_permlane32_swap_b32 {v(MX)}, {v(MX+1)}
        v_permlane32_swap_b32 {v(MX+2)}, {v(MX+3)}''')
        for t in range(4):
            sc_ = SC + 4*t; p = Kb + 4*t
            for h in (0, 2): a(f'v_pk_add_f32 {v(sc_+h,2)}, {v(sc_+h,2)}, {v(MX+(t&~1),2)} op_sel:[0,{t&1}] op_sel_hi:[1,{t&1}] neg_lo:[0,1] neg_hi:[0,1]')
            for r in range(4): a(f'v_exp_f32 {v(sc_+r)}, {v(sc_+r)}')
            a(f'v_cvt_pk_bf16_f32 {v(p+2)}, {v(sc_)}, {v(sc_+1)}\nv_cvt_pk_bf16_f32 {v(p+3)}, {v(sc_+2)}, {v(sc_+3)}')
            for h in range(2): a(f'v_bfi_b32 {v(p+h)}, {v(vPM+h)}, 0, {v(p+2+h)}')
            for h in range(2): a(f'v_and_b32 {v(p+2+h)}, {v(vPM+h)}, {v(p+2+h)}')
            if t: self._pv(a, t - 1, SC)
        self._pv(a, 3, SC)
        OP = Qb
        for t in range(4):
            d = SC + 4*t; e = XFB + 4*t
            a(f'v_rcp_f32 {v(e+2)}, {v(e+2)}')
            for b in (d, d + 2, e): a(f'v_pk_mul_f32 {v(b,2)}, {v(b,2)}, {v(e+2,2)} op_sel_hi:[1,0]')
            a(f'v_cvt_pk_bf16_f32 {v(OP+2*t)}, {v(d)}, {v(d+1)}\nv_cvt_pk_bf16_f32 {v(OP+2*t+1)}, {v(d+2)}, {v(d+3)}')
            a(f'v_cvt_pk_bf16_f32 {v(OP+8+t)}, {v(e)}, {v(e+1)}')
        while dma:
            for x in dma.pop(0): a0(x)
        a = a0
        a(f'''s_lshl_b32 {t0}, {sCG}, 2
        s_add_u32 {t0}, {t0}, {sW}
        s_lshl_b32 {t1}, {sT}, 7
        s_add_u32 {t1}, {t1}, {t0}
        s_lshl_b32 {t1}, {t1}, 9
        s_add_u32 {t1}, {t1}, {OB[lay]}
        s_add_u32 {t2}, {t1}, 32768
        s_lshl_b32 {t3}, {sT}, 5
        s_add_u32 {t3}, {t3}, {t0}
        s_lshl_b32 {t3}, {t3}, 8
        s_add_u32 {t3}, {t3}, {OR_[lay]}''')
        for u in range(2):
            for h in range(2): a(f'v_permlane16_swap_b32 {v(OP+4*u+h)}, {v(OP+4*u+2+h)}')
        for t in range(1, 4): a(f'v_mov_b32_dpp {v(OP+8)}, {v(OP+8+t)} quad_perm:[0,1,2,3] row_mask:{1<<t} bank_mask:0xf')
        a(f'v_lshlrev_b32 {v(vA)}, 2, v0')
        a(f'buffer_store_dwordx4 {v(OP,4)}, {v(vOB)}, {sWS}, {t1} offen sc1')
        a(f'buffer_store_dwordx4 {v(OP+4,4)}, {v(vOB)}, {sWS}, {t2} offen sc1')
        self.tk_o = a(f'buffer_store_dword {v(OP+8)}, {v(vA)}, {sWS}, {t3} offen sc1')
        self.stamp('attn')
    def _pv(self, a, t, SC):
        p = Kb + 4*t
        a(f'v_mfma_f32_16x16x32_bf16 {v(XFB+4*t,4)}, {v(Rb+2*t,4)}, {v(p,4)}, 0')
        a(f'v_mfma_f32_16x16x32_bf16 {v(SC+4*t,4)}, {v(Vb+2*t,4)}, {v(p,4)}, 0')

    def flaghop(self, base, extra=None):
        a = self.a
        a.barrier()
        def f():
            a(f's_lshl_b32 {t1}, {sT}, 3'); a(f's_add_u32 {t1}, {t1}, {sCG}'); a(f's_lshl_b32 {t1}, {t1}, 7'); a(f's_add_u32 {t1}, {t1}, {base}')
            for k in range(4): a(f'v_mov_b32 {v(vC+k)}, {sNON}')
            self.exec(0xff); tk = a(f'buffer_store_dwordx4 {v(vC,4)}, {v(vL16)}, {sWS}, {t1} offen sc1'); self.exec(-1)
            a.wait(tk)
        self.only(f's_cmp_eq_u32 {sW}, 0', f)
    def flagpoll(self, base, prev):
        a = self.a
        def f():
            a(f's_lshl_b32 {t1}, {sT}, 10'); a(f's_add_u32 {t1}, {t1}, {base}'); a(f'v_lshlrev_b32 {v(vB)}, 7, v0')
            self.exec(0xff)
            if prev:
                a(f's_cmp_eq_u32 {sJ}, 0'); a(f's_cselect_b32 {t2}, 0, 1024'); a(f's_cselect_b32 {t3}, 8, 16'); a(f's_bfm_b32 exec_lo, {t3}, 0'); a(f's_sub_u32 {t1}, {t1}, {t2}')
            def b(): a(f'buffer_load_dword {v(vA)}, {v(vB)}, {sWS}, {t1} offen sc1'); a(f'v_cmp_ne_u32 vcc, {sNON}, {v(vA)}')
            self.poll(b); self.exec(-1)
        self.only(f's_cmp_eq_u32 {sW}, 0', f)
        a.barrier()

    def p2(self, lay):
        a = self.a
        if lay == 0: self.only(f's_cmp_lt_u32 {sLI}, 18', lambda: self.gu_dma(1, range(9)))
        if lay:
            a(f's_lshl_b32 {t0}, {sW}, 6'); a(f's_add_u32 {t0}, {t0}, {NM + 640 + 64}'); a(f'v_lshl_add_u32 {v(vA)}, {v(vI)}, 2, {t0}')
            a(f'ds_read2_b32 {v(vC,2)}, {v(vA)} offset0:0 offset1:80')
        a(f's_mul_i32 {t0}, {sCG}, 144'); a(f's_add_u32 {t0}, {t0}, {WRL}')
        a(f'v_lshl_add_u32 {v(vA)}, {v(vG)}, 4, {t0}'); a(f'v_and_b32 {v(vB)}, 1, {v(vG)}'); a(f'v_lshl_add_u32 {v(vB)}, {v(vB)}, 3, {t0}')
        a(f'ds_read_b128 {v(WRP,4)}, {v(vA)}'); a(f'ds_read_b128 {v(WRP+4,4)}, {v(vA)} offset:64'); a(f'ds_read_b64 {v(WRP+8,2)}, {v(vB)} offset:128')
        for k in range(10):
            a(f'v_lshlrev_b32 {v(ACC2+2*k)}, 16, {v(RES+k)}'); a(f'v_and_b32 {v(ACC2+2*k+1)}, 0xffff0000, {v(RES+k)}')
            if lay: a(f'v_pk_fma_f32 {v(ACC2+2*k,2)}, {v(ACC2+2*k,2)}, {v(vC,2)}, {v(vC,2)} op_sel:[0,0,1] op_sel_hi:[1,0,1]')
        a(f'''v_add_u32 {v(RES)}, {9*4608}, {v(vL16)}
        v_and_b32 {v(RES+1)}, 7, v0
        v_lshlrev_b32 {v(RES+1)}, 4, {v(RES+1)}
        v_lshl_add_u32 {v(RES+1)}, {v(vG)}, 7, {v(RES+1)}
        v_add_u32 {v(RES+2)}, {9*4608}, {v(RES+1)}''')
        a.wait(self.tk_o)
        self.flaghop(OF[lay])
        self.stamp('oflag')
        def wread(k):
            ks, n = divmod(k, 5); hi = ks >= 9
            ad = (RES + 2 if hi else RES + 1) if n == 4 else (RES if hi else vL16)
            return f'ds_read_b128 {v(XFB + 4*(k % 10), 4)}, {v(ad)} offset:{4608*(ks - 9*hi) + 1024*n}'
        for k in range(9): a(wread(k))
        self.flagpoll(OF[lay], False)
        self.stamp('opoll')
        a(f'''s_lshl_b32 {t0}, {sT}, 2
        s_add_u32 {t0}, {t0}, {sW}
        s_lshl_b32 {t0}, {t0}, 14
        s_lshl_b32 {t2}, {sT}, 7
        s_add_u32 {t2}, {t2}, {sW}
        s_lshl_b32 {t2}, {t2}, 6''')
        for ks in range(16):
            if ks % 4 == 0: a(f's_add_u32 {t1}, {t0}, {OB[lay] + 1024*ks}')
            a(f'buffer_load_dwordx4 {v(ACC+4*ks,4)}, {v(vL16)}, {sWS}, {t1} offen offset:{1024*(ks%4)} sc1')
        for ks in range(2):
            a(f's_add_u32 {t1}, {t2}, {OR_[lay] + 4096*ks}')
            for jj in range(4): a(f'buffer_load_dword {v(ACC+64+4*ks+jj)}, {v(vGI)}, {sWS}, {t1} offen offset:{256*jj} sc1')
        for k in range(90):
            ks, n = divmod(k, 5)
            if k + 9 < 90: a(wread(k + 9))
            a(f'v_mfma_f32_16x16x32_bf16 {v(ACC2+4*n,4)}, {v(XFB+4*(k%10),4)}, {v(ACC+4*ks,4)}, {v(ACC2+4*n,4)}')
        self.stamp('p2')
        XP = ACC
        a(f's_mov_b32 {t0}, {ONES}')
        a(f'''s_lshl_b32 {t1}, {sT}, 3
        s_add_u32 {t1}, {t1}, {sCG}
        s_lshl_b32 {t1}, {t1}, 2
        s_add_u32 {t1}, {t1}, {sW}
        s_lshl_b32 {t1}, {t1}, 8
        s_add_u32 {t1}, {t1}, {ST[lay]}''')
        S = ACC + 12
        for k in range(10):
            a(f'v_cvt_pk_bf16_f32 {v(XP+k)}, {v(ACC2+2*k)}, {v(ACC2+2*k+1)}')
        for k in range(10):
            if k == 8: a('s_mov_b32 exec_hi, 0')
            for j, o in enumerate((t0, v(XP+k), v(WRP+k))): a(f'v_dot2_f32_bf16 {v(S+j)}, {v(XP+k)}, {o}, {v(S+j) if k else 0}')
        self.exec(-1)
        a(f'v_mov_b32 {v(S+3)}, {sNON}')
        if lay == 0:
            for h in range(2): a(f'v_permlane16_swap_b32 {v(XP+8+h)}, {v(XP+10+h)}')
        self.xsum([S, S+1, S+2], S + 4, full=False)
        self.exec(0xffff)
        a(f'buffer_store_dwordx4 {v(S,4)}, {v(vL16)}, {sWS}, {t1} offen sc1')
        if lay == 0:
            a(f'''s_lshl_b32 {t1}, {sT}, 2
            s_add_u32 {t1}, {t1}, {sW}
            s_lshl_b32 {t1}, {t1}, 4
            s_add_u32 {t1}, {t1}, {sCG}
            s_mul_i32 {t1}, {t1}, 1152
            s_add_u32 {t1}, {t1}, {X1}''')
            a(f'buffer_store_dwordx4 {v(XP+8,4)}, {v(vXB)}, {sWS}, {t1} offen offset:1024 sc1')
            self.exec(-1)
            for P in range(2): a(f'buffer_store_dwordx4 {v(XP+4*P,4)}, {v(vXB)}, {sWS}, {t1} offen offset:{512*P} sc1')
        else: self.exec(-1)
        self.stamp('st')
        a.wvm(0)
        if lay == 0: self.flaghop(XF)

    def gather(self, lay, sbase):
        a = self.a; S = ACC + 20
        a(f'v_lshlrev_b32 {v(vA)}, 10, {v(vG)}'); a(f'v_lshl_add_u32 {v(vA)}, {v(vI)}, 4, {v(vA)}'); a(f's_add_u32 {t2}, {sbase}, 4096')
        def b():
            a(f'buffer_load_dwordx4 {v(S,4)}, {v(vA)}, {sWS}, {sbase} offen sc1')
            a(f'buffer_load_dwordx4 {v(S+4,4)}, {v(vA)}, {sWS}, {t2} offen sc1')
            a(f'v_cmp_ne_u32 {sSV}, {sNON}, {v(S+3)}'); a(f'v_cmp_ne_u32 vcc, {sNON}, {v(S+7)}'); a(f's_or_b64 vcc, vcc, {sSV}')
        self.poll(b)
        for k in range(3): a(f'v_add_f32 {v(S+k)}, {v(S+k)}, {v(S+4+k)}')
        self.xsum([S, S+1, S+2], S + 4)
        a(f'''v_mul_f32 {v(S)}, {f32(-1/576)}, {v(S)}
        v_mul_f32 {v(S+1)}, {f32(1/576)}, {v(S+1)}
        v_fma_f32 {v(S+1)}, -{v(S)}, {v(S)}, {v(S+1)}
        v_max_f32 {v(S+1)}, 0, {v(S+1)}
        v_add_f32 {v(S+4)}, {f32(1e-5)}, {v(S+1)}
        v_rsq_f32 {v(S+3)}, {v(S+4)}''')
        return S
    def lnc(self, S):
        a = self.a
        a(f'''v_add_f32 {v(S+5)}, 1.0, {v(S+3)}
        v_mul_f32 {v(S+6)}, {v(S+5)}, {v(S+5)}
        v_mul_f32 {v(S+6)}, {v(S+6)}, {v(S+1)}
        v_add_f32 {v(S+6)}, {f32(1e-5)}, {v(S+6)}
        v_rsq_f32 {v(S+6)}, {v(S+6)}
        v_mul_f32 {v(S+6)}, {v(S+6)}, {v(S+5)}''')

    def router(self, lay):
        a = self.a
        a(f's_lshl_b32 {t1}, {sT}, 5'); a(f's_add_u32 {t1}, {t1}, {sW}'); a(f's_lshl_b32 {t1}, {t1}, 8'); a(f's_add_u32 {t1}, {t1}, {ST[lay]}')
        S = self.gather(lay, t1)
        self.stamp('gath')
        K = S + 8; ZP = ACC; ZT = ACC + 40
        a(f'''v_fma_f32 {v(K)}, {v(S)}, {sSW}, {v(S+2)}
        v_mov_b32 {v(K+6)}, {v(S+3)}
        v_mul_f32 {v(K)}, {v(K)}, {v(S+3)}
        v_mul_f32 {v(K+7)}, {v(S)}, {v(S+3)}
        v_ashrrev_i32 {v(K+4)}, 31, {v(K)}
        v_lshrrev_b32 {v(K+4)}, 1, {v(K+4)}
        v_xor_b32 {v(K)}, {v(K)}, {v(K+4)}
        v_and_or_b32 {v(K)}, {v(K)}, -16, {v(vI)}
        v_mul_f32 {v(K+2)}, {v(S+4)}, {v(S+3)}
        v_mov_b32 {v(K+4)}, {v(K)}''')
        zz = []
        for k in range(10):
            zz.append(f'v_pk_fma_f32 {v(ZT+2*k,2)}, {v(ACC2+2*k,2)}, {v(K+6,2)}, {v(K+6,2)} op_sel:[0,0,1] op_sel_hi:[1,0,1]')
        for m in ('row_ror:8', 'row_ror:4', 'row_ror:2', 'row_ror:1'):
            a(zz.pop(0)); a(zz.pop(0)); a(f'v_max_i32_dpp {v(K+4)}, {v(K+4)}, {v(K+4)} {m} row_mask:0xf bank_mask:0xf')
        for x in zz: a(x)
        a(f'v_cmp_eq_u32 {sCM}, {v(K)}, {v(K+4)}')
        for k in (8, 9, 0, 1, 2, 3, 4, 5, 6, 7):
            a(f'v_cvt_pk_bf16_f32 {v(ZP+k)}, {v(ZT+2*k)}, {v(ZT+2*k+1)}'); a(f'v_min_u32 {v(ZP+k)}, -2, {v(ZP+k)}')
        for h in range(2): a(f'v_permlane16_swap_b32 {v(ZP+8+h)}, {v(ZP+10+h)}')
        a(f'''v_sub_f32 {v(K+1)}, 0, {v(S)}
        v_mov_b32 {v(K+3)}, {sNON}
        v_lshlrev_b32 {v(vA)}, 4, {v(vG)}
        s_lshl_b32 {t0}, {sT}, 2
        s_add_u32 {t0}, {t0}, {sW}
        s_lshl_b32 {t2}, {t0}, 4
        s_add_u32 {t2}, {t2}, {CAND[lay]}
        s_lshl_b32 {t1}, {t0}, 3
        s_add_u32 {t1}, {t1}, {sCG}
        s_mul_i32 {t1}, {t1}, 144
        s_add_u32 {t1}, {t1}, {CZ[lay]}
        s_and_b64 exec, {sCM}, 0xffff''')
        self.only(f's_cmp_eq_u32 {sCG}, 0', lambda: a(f'buffer_store_dwordx4 {v(K,4)}, {v(vA)}, {sWS}, {t2} offen sc1'))
        a(f'buffer_store_dwordx4 {v(ZP+8,4)}, {v(vA)}, {sWS}, {t1} offen offset:128 sc1')
        a(f's_mov_b64 exec, {sCM}')
        for P in range(2): a(f'buffer_store_dwordx4 {v(ZP+4*P,4)}, {v(vA)}, {sWS}, {t1} offen offset:{64*P} sc1')
        self.exec(-1)
        self.stamp('cand')
        if lay == 0:
            self.lnc(S)
            a(f's_lshl_b32 {t0}, {sW}, 6'); a(f's_add_u32 {t0}, {t0}, {NM + 64}'); a(f'v_lshl_add_u32 {v(vB)}, {v(vI)}, 2, {t0}')
            self.exec(0xffff)
            a(f'ds_write2_b32 {v(vB)}, {v(S)}, {v(S+6)} offset0:0 offset1:80')
            a(f'ds_write2_b32 {v(vB)}, {v(S+5)}, {v(K+7)} offset0:160 offset1:240')
            self.exec(-1)
            def halo():
                a(f's_cmp_eq_u32 {sJ}, 0'); a(f's_cselect_b32 {t1}, 0, 1'); a(f's_sub_u32 {t1}, {sT}, {t1}')
                a(f's_lshl_b32 {t1}, {t1}, 13'); a(f's_add_u32 {t1}, {t1}, {ST[0] + 768}')
                S = self.gather(0, t1); self.lnc(S)
                a(f'v_subrev_u32 {v(vB)}, 256, {v(vB)}')
                self.exec(0xffff); a(f'ds_write2_b32 {v(vB)}, {v(S)}, {v(S+6)} offset0:0 offset1:80'); self.exec(-1)
            self.only(f's_cmp_eq_u32 {sW}, 3', halo)
            self.ones()
            self.flagpoll(XF, True)
            self.stamp('xpoll')
            a(f's_mul_i32 {t0}, {sW}, 18432'); a(f's_mul_i32 {t1}, {sT}, 73728'); a(f's_add_u32 {t1}, {t1}, {X1}'); a(f's_add_u32 {t3}, {t1}, {t0}')
            for q in range(18):
                if q % 4 == 0: a(f's_add_u32 m0, {t0}, {1024*q}'); a(f's_add_u32 {t2}, {t3}, {1024*q}')
                a(f'buffer_load_dwordx4 {v(vL16)}, {sWS}, {t2} offen offset:{1024*(q%4)} sc1 lds')
            a(f's_cmp_eq_u32 {sJ}, 0'); a(f's_cselect_b32 {t2}, 0, 9216'); a(f's_sub_u32 {t1}, {t1}, {t2}')
            for q in range(3):
                a(f's_add_u32 {t0}, {sW}, {4*q}'); a(f's_min_u32 {t0}, {t0}, 8'); a(f's_mul_i32 {t2}, {t0}, 1040'); a(f's_add_u32 m0, {t2}, {LH}')
                a(f's_lshl_b32 {t0}, {t0}, 10'); a(f's_add_u32 {t0}, {t0}, {t1}')
                a(f'buffer_load_dwordx4 {v(vL16)}, {sWS}, {t0} offen sc1 lds')
            a(f'''v_mov_b32 {v(vXe)}, {v(vXB)}
            v_add_u32 {v(vXo)}, 512, {v(vXB)}
            v_cmp_gt_u32 vcc, 8, {v(vI)}
            v_mov_b32 {v(vA)}, {LH + 1024}
            v_add_u32 {v(vB)}, {LH - 9216}, {v(vXe)}
            v_add_u32 {v(vC)}, {LH - 9216}, {v(vXo)}
            v_cndmask_b32 {v(vHe)}, {v(vB)}, {v(vA)}, vcc
            v_cndmask_b32 {v(vHo)}, {v(vC)}, {v(vA)}, vcc
            s_lshl_b32 {t0}, {sW}, 4
            s_add_u32 {t0}, {t0}, {sCG}
            s_mul_i32 {t0}, {t0}, 1152
            v_add_u32 {v(vRA)}, {t0}, {v(vXB)}
            v_add_u32 {v(vRA+1)}, 512, {v(vRA)}
            v_lshlrev_b32 {v(vA)}, 7, {v(vG)}
            v_sub_u32 {v(vA)}, {v(vRA)}, {v(vA)}
            v_and_b32 {v(vB)}, 1, {v(vG)}
            v_lshl_add_u32 {v(vA)}, {v(vB)}, 3, {v(vA)}
            v_add_u32 {v(vRA+2)}, 1024, {v(vA)}''')
        else:
            OPK = ACC + 64
            a(f'v_add_f32 {v(K+6)}, 1.0, {v(K+6)}')
            for k in range(10): a(f'v_pk_fma_f32 {v(ZT+2*k,2)}, {v(ACC2+2*k,2)}, {v(K+6,2)}, {v(K+6,2)} op_sel:[0,0,1] op_sel_hi:[1,0,1]')
            for k in (8, 9, 0, 1, 2, 3, 4, 5, 6, 7): a(f'v_cvt_pk_bf16_f32 {v(OPK+k)}, {v(ZT+2*k)}, {v(ZT+2*k+1)}')
            for h in range(2): a(f'v_permlane16_swap_b32 {v(OPK+8+h)}, {v(OPK+10+h)}')
            a(f'v_mul_u32_u24 {v(vXe)}, 2304, {v(vI)}'); a(f'v_lshl_add_u32 {v(vXe)}, {v(vG)}, 4, {v(vXe)}')
            a(f's_not_b64 {sSV}, {sCM}')
            self.outst(sSV)

    def outst(self, m):
        a = self.a; OPK = ACC + 64
        a(f'''s_lshl_b32 {t0}, {sJ}, 2
        s_add_u32 {t0}, {t0}, {sW}
        s_lshl_b32 {t0}, {t0}, 5
        s_add_u32 {t0}, {t0}, {sP}
        s_lshl_b32 {t0}, {t0}, 3
        s_add_u32 {t0}, {t0}, {sCG}
        s_mul_i32 {t0}, {t0}, 144
        s_mov_b64 exec, {m}''')
        for P in range(2): a(f'buffer_store_dwordx4 {v(OPK+4*P,4)}, {v(vXe)}, {sOUT}, {t0} offen offset:{64*P}{self.o["osc"]}')
        a(f's_and_b64 exec, {m}, 0xffff')
        a(f'buffer_store_dwordx4 {v(OPK+8,4)}, {v(vXe)}, {sOUT}, {t0} offen offset:128{self.o["osc"]}')
        self.exec(-1)

    def rowpoll(self, sbase, d):
        a = self.a
        a(f'v_mov_b32 {v(vA)}, {OOB}'); a('v_cmp_gt_u32 vcc, 8, v0'); a(f'v_cndmask_b32 {v(vA)}, {v(vA)}, {v(vL16)}, vcc')
        def b():
            a(f'buffer_load_dwordx4 {v(d,4)}, {v(vL16)}, {sWS}, {sbase} offen sc1')
            a(f'buffer_load_dwordx4 {v(d+4,4)}, {v(vA)}, {sWS}, {sbase} offen offset:1024 sc1')
            a(f'v_max3_u32 {v(vB)}, {v(d)}, {v(d+1)}, {v(d+2)}'); a(f'v_max3_u32 {v(vB)}, {v(vB)}, {v(d+3)}, {v(d+4)}')
            a(f'v_max3_u32 {v(vB)}, {v(vB)}, {v(d+5)}, {v(d+6)}'); a(f'v_max_u32 {v(vB)}, {v(vB)}, {v(d+7)}')
            a(f'v_cmp_eq_u32 vcc, -1, {v(vB)}')
        self.poll(b)

    def winner(self, lay):
        a = self.a; C = XFB
        def w0():
            a(f's_mov_b32 {t1}, {CAND[lay]}')
            def b():
                a(f'buffer_load_dwordx4 {v(C,4)}, {v(vL16)}, {sWS}, {t1} offen sc1')
                a(f'buffer_load_dwordx4 {v(C+4,4)}, {v(vL16)}, {sWS}, {t1} offen offset:1024 sc1')
                a(f'v_cmp_ne_u32 {sSV}, {sNON}, {v(C+3)}'); a(f'v_cmp_ne_u32 vcc, {sNON}, {v(C+7)}'); a(f's_or_b64 vcc, vcc, {sSV}')
            self.poll(b)
            a(f'v_cmp_gt_i32 vcc, {v(C+4)}, {v(C)}'); a(f'v_max_i32 {v(C+8)}, {v(C)}, {v(C+4)}'); a(f'v_add_u32 {v(C+7)}, 64, v0')
            sel = [f'v_cndmask_b32 {v(C+k)}, {v(C+k) if k < 3 else "v0"}, {v(C+4+k)}, vcc' for k in range(4)]
            for m in ('row_ror:8', 'row_ror:4', 'row_ror:2', 'row_ror:1'):
                a(sel.pop(0)); a(f'v_max_i32_dpp {v(C+8)}, {v(C+8)}, {v(C+8)} {m} row_mask:0xf bank_mask:0xf')
            self.xsum([C+8], C+9, op='v_max_i32')
            a(f'v_cmp_eq_u32 vcc, {v(C)}, {v(C+8)}')
            a(f's_ff1_i32_b64 {t0}, vcc'); a(f's_and_b32 {t0}, {t0}, 63')
            a(f'v_readlane_b32 {sCID}, {v(C+3)}, {t0}')
            a(f's_lshl_b64 exec, 1, {t0}'); a(f'v_mov_b32 {v(vA)}, {WIN}'); a(f'ds_write_b128 {v(vA)}, {v(C,4)}'); self.exec(-1)
            def z():
                a(f's_and_b32 {t1}, {sCID}, 127'); a(f's_mul_i32 {t1}, {t1}, 1152'); a(f's_add_u32 {t1}, {t1}, {CZ[lay]}')
                self.rowpoll(t1, C + 12)
                a(f'v_add_u32 {v(vA)}, {ZR}, {v(vL16)}'); a(f'ds_write_b128 {v(vA)}, {v(C+12,4)}')
                self.exec(0xff); a(f'ds_write_b128 {v(vA)}, {v(C+16,4)} offset:1024'); self.exec(-1)
            self.only(f's_cmp_lt_u32 {sLI}, 18', z)
        self.only(f's_cmp_eq_u32 {sW}, 0', w0)
        if lay == 0: a.wvm(0)
        a.barrier()
        self.stamp('win')
        self.only(f's_cmp_lt_u32 {sLI}, 18', lambda: self.ffn(lay))
        a(f'v_mov_b32 {v(vA)}, {WIN}'); a(f'ds_read_b128 {v(C,4)}, {v(vA)}')
        for k, r in enumerate((sKEY, sM, sSTD, sCID)): a(f'v_readfirstlane_b32 {r}, {v(C+k)}')
        a(f's_and_b32 {sCID}, {sCID}, 127')
        self.stamp('ffn')
        if lay == 1:
            a(f's_lshl_b32 {t0}, {sT}, 2'); a(f's_add_u32 {t0}, {t0}, {sW}')
            self.only(f's_cmp_lg_u32 {t0}, {sCID}', lambda: self.outst(sCM))
        a(f's_cmp_eq_u32 {sW}, 1'); a(f's_cselect_b32 {t0}, {sRED}, 99')
        self.only(f's_cmp_lt_u32 {t0}, 36', lambda: self.reduce(lay))
        if lay == 0: self.patch()

    def ffn(self, lay):
        a = self.a
        a(f'''v_bfe_u32 {v(vA)}, v0, 1, 1
        v_lshlrev_b32 {v(vB)}, 1, {v(vA)}
        v_and_b32 {v(vC)}, 1, {v(vG)}
        v_xor_b32 {v(vB)}, {v(vB)}, {v(vC)}
        v_xor_b32 {v(vB)}, {sW}, {v(vB)}
        v_mul_u32_u24 {v(vA)}, 36864, {v(vA)}
        v_lshl_add_u32 {v(vA)}, {v(vB)}, 4, {v(vA)}
        v_lshrrev_b32 {v(vB)}, 2, v0
        v_lshl_add_u32 {v(vA)}, {v(vB)}, 6, {v(vA)}
        v_and_b32 {v(vB)}, 1, v0
        v_lshl_add_u32 {v(vA)}, {v(vB)}, 3, {v(vA)}
        v_add_u32 {v(vA)}, {GATE}, {v(vA)}
        v_lshlrev_b32 {v(vB)}, 4, {v(vG)}
        v_add_u32 {v(vB)}, {ZR}, {v(vB)}''')
        D = 48; NB = 5
        def rd(ks):
            b = XFB + 8 * (ks % NB)
            return [f'ds_read_b128 {v(b+4,4)}, {v(vB)} offset:{64*ks}'] + [f'ds_read_b64_tr_b16 {v(b+2*jh,2)}, {v(vA)} offset:{1024*(2*ks+jh)}' for jh in range(2)]
        for ks in range(NB - 1):
            for x in rd(ks): a(x)
        for ks in range(18):
            b = XFB + 8 * (ks % NB)
            if ks + NB - 1 < 18:
                for x in rd(ks + NB - 1): a(x)
            a(f'v_mfma_f32_16x16x32_bf16 {v(D,4)}, {v(b,4)}, {v(b+4,4)}, {v(D,4) if ks else 0}')
        a(f'''s_lshl_b32 {t0}, {sW}, 9
        s_add_u32 {t0}, {t0}, {HW + 144}
        v_lshl_add_u32 {v(vA)}, {v(vG)}, 3, {t0}
        v_lshlrev_b32 {v(vB)}, 9, {v(vG)}
        v_lshl_add_u32 {v(vB)}, {v(vI)}, 4, {v(vB)}
        v_add_u32 {v(vB)}, {HW}, {v(vB)}
        v_lshlrev_b32 {v(vC)}, 6, {v(vI)}
        v_lshl_add_u32 {v(vC)}, {v(vG)}, 4, {v(vC)}''')
        for r in range(4): a(f'v_mul_f32 {v(D+8+r)}, {f32(-math.log2(math.e))}, {v(D+r)}')
        for r in range(4): a(f'v_exp_f32 {v(D+8+r)}, {v(D+8+r)}')
        for r in range(4): a(f'v_permlane32_swap_b32 {v(D+r)}, {v(D+4+r)}')
        for r in range(4): a(f'v_add_f32 {v(D+8+r)}, 1.0, {v(D+8+r)}')
        for r in range(4): a(f'v_rcp_f32 {v(D+8+r)}, {v(D+8+r)}')
        for h in (0, 2): a(f'v_pk_mul_f32 {v(D+h,2)}, {v(D+h,2)}, {v(D+4+h,2)}')
        for h in (0, 2): a(f'v_pk_mul_f32 {v(D+h,2)}, {v(D+h,2)}, {v(D+8+h,2)}')
        a(f'v_cvt_pk_bf16_f32 {v(D)}, {v(D)}, {v(D+1)}\nv_cvt_pk_bf16_f32 {v(D+1)}, {v(D+2)}, {v(D+3)}')
        self.exec(0x10001); a(f'ds_write_b64 {v(vA)}, {v(D,2)}'); self.exec(-1)
        a.barrier()
        for n in range(9): a(f'ds_read_b128 {v(XFB+4*n,4)}, {v(vB)} offset:{16*(9-n)}')
        a(f's_lshl_b32 {t0}, {sF}, 2'); a(f's_add_u32 {t0}, {t0}, {sW}'); a(f's_mul_i32 {t0}, {t0}, 640'); a(f's_add_u32 {t0}, {t0}, {PY[lay]}')
        for n in range(9): a(f'v_mfma_f32_16x16x32_bf16 {v(D,4)}, {v(WDF+4*n,4)}, {v(XFB+4*n,4)}, {v(D,4) if n else 0}')
        for r in range(4): a(f'v_min_u32 {v(D+r)}, -2, {v(D+r)}')
        self.exec(0x03ff03ff03ff03ff)
        a(f'buffer_store_dwordx4 {v(D,4)}, {v(vC)}, {sWS}, {t0} offen sc1'); self.exec(-1)

    def reduce(self, lay):
        a = self.a; Y = XFB; Z = XFB + 36
        a(f'''s_mul_i32 {t0}, {sRED}, 7282
        s_lshr_b32 {t0}, {t0}, 16
        s_add_u32 {t0}, {t0}, {sRED}
        s_lshl_b32 {t0}, {t0}, 6
        s_add_u32 {t0}, {t0}, {PY[lay]}
        v_lshrrev_b32 {v(vA)}, 2, v0
        v_mul_u32_u24 {v(vA)}, 2560, {v(vA)}
        v_and_b32 {v(vB)}, 3, v0
        v_lshl_add_u32 {v(vA)}, {v(vB)}, 4, {v(vA)}
        v_lshlrev_b32 {v(vB)}, 3, {v(vB)}
        s_mul_i32 {t1}, {sCID}, 1152
        s_lshl_b32 {t2}, {sRED}, 5
        s_add_u32 {t1}, {t1}, {t2}
        s_add_u32 {t1}, {t1}, {CZ[lay]}
        v_mov_b32 {v(vD)}, {f32(-math.log2(math.e))}
        s_ashr_i32 {t3}, {sKEY}, 31
        s_lshr_b32 {t3}, {t3}, 1
        s_xor_b32 {t3}, {t3}, {sKEY}
        v_mul_f32 {v(vD)}, {t3}, {v(vD)}
        v_exp_f32 {v(vD)}, {v(vD)}
        v_add_f32 {v(vD)}, 1.0, {v(vD)}
        v_rcp_f32 {v(vD)}, {v(vD)}''')
        def b0():
            a(f'buffer_load_dwordx4 {v(Y,4)}, {v(vA)}, {sWS}, {t0} offen sc1'); a(f'v_cmp_eq_u32 vcc, -1, {v(Y)}')
        self.poll(b0)
        def b():
            a(f'buffer_load_dwordx2 {v(Z,2)}, {v(vB)}, {sWS}, {t1} offen sc1')
            for q in range(9):
                a(f's_add_u32 {t3}, {t0}, {40960*q}'); a(f'buffer_load_dwordx4 {v(Y+4*q,4)}, {v(vA)}, {sWS}, {t3} offen sc1')
            a(f'v_max_u32 {v(vC)}, {v(Z)}, {v(Z+1)}')
            for k in range(18): a(f'v_max3_u32 {v(vC)}, {v(vC)}, {v(Y+2*k)}, {v(Y+2*k+1)}')
            a(f'v_cmp_eq_u32 vcc, -1, {v(vC)}')
        self.poll(b)
        for q in range(1, 9):
            for h in (0, 2): a(f'v_pk_add_f32 {v(Y+h,2)}, {v(Y+h,2)}, {v(Y+4*q+h,2)}')
        a(f'v_lshlrev_b32 {v(Y+8)}, 16, {v(Z)}\nv_and_b32 {v(Y+9)}, 0xffff0000, {v(Z)}\nv_lshlrev_b32 {v(Y+10)}, 16, {v(Z+1)}\nv_and_b32 {v(Y+11)}, 0xffff0000, {v(Z+1)}')
        self.dpp('v_add_f32', range(Y, Y + 4), ['row_ror:8', 'row_ror:4'])
        a(f'v_add_f32 {v(vC)}, 1.0, {sSTD}' if 0 else f'v_mov_b32 {v(vC)}, {sSTD}'); a(f'v_add_f32 {v(vC)}, 1.0, {v(vC)}')
        for r in range(4): a(f'v_fma_f32 {v(Y+8+r)}, {v(Y+8+r)}, {v(vC)}, {sM}')
        self.xsum(list(range(Y, Y + 4)), Y + 4, full=False)
        for r in range(4): a(f'v_fma_f32 {v(Y+r)}, {v(Y+r)}, {v(vD)}, {v(Y+8+r)}')
        a(f'v_cvt_pk_bf16_f32 {v(Y)}, {v(Y)}, {v(Y+1)}\nv_cvt_pk_bf16_f32 {v(Y+1)}, {v(Y+2)}, {v(Y+3)}')
        self.exec(0xf)
        if lay == 0:
            a(f'v_min_u32 {v(Y)}, -2, {v(Y)}\nv_min_u32 {v(Y+1)}, -2, {v(Y+1)}\ns_add_u32 {t2}, {t2}, {NR}')
            a(f'buffer_store_dwordx2 {v(Y,2)}, {v(vB)}, {sWS}, {t2} offen sc1')
        else:
            a(f'''s_and_b32 {t0}, {sCID}, 63
            s_lshl_b32 {t0}, {t0}, 4
            s_and_b32 {t1}, {sKEY}, 15
            s_add_u32 {t0}, {t0}, {t1}
            s_lshl_b32 {t0}, {t0}, 1
            s_lshr_b32 {t1}, {sCID}, 6
            s_add_u32 {t0}, {t0}, {t1}
            s_mul_i32 {t0}, {t0}, 1152
            s_add_u32 {t0}, {t0}, {t2}''')
            a(f'buffer_store_dwordx2 {v(Y,2)}, {v(vB)}, {sOUT}, {t0} offen{self.o["osc"]}')
            def nn():
                self.exec(1); a(f'v_mov_b32 {v(vC)}, {sNON}'); a(f'buffer_store_dword {v(vC)}, {v(vB)}, {sWS}, 0 offen sc1')
            self.only(f's_cmp_eq_u32 {sRED}, 0', nn)
        self.exec(-1)

    def patch(self):
        a = self.a; Rr = XFB
        a(f'''s_lshl_b32 {t0}, {sT}, 2
        s_sub_u32 {t0}, {sCID}, {t0}
        s_add_u32 {t0}, {t0}, 1
        s_lshl_b32 {t0}, {t0}, 4
        s_and_b32 {t1}, {sKEY}, 15
        s_add_u32 {t0}, {t0}, {t1}
        s_cmp_eq_u32 {sJ}, 0
        s_cselect_b32 {t1}, 16, 8
        s_sub_u32 {t2}, {t0}, {t1}
        s_sub_u32 {t1}, 80, {t1}
        s_cmp_eq_u32 {sW}, 0
        s_cselect_b32 {t1}, {t1}, 0''')
        def f():
            a(f's_mov_b32 {t3}, {NR}'); self.rowpoll(t3, Rr)
            a(f'''s_lshr_b32 {t1}, {t0}, 3
            s_sub_u32 {t1}, {t1}, 2
            s_mul_i32 {t1}, {t1}, 9216
            s_cmp_lt_u32 {t0}, 16
            s_cselect_b32 {t1}, {LH}, {t1}
            s_cselect_b32 {t2}, 16, 0
            s_and_b32 {t3}, {t0}, 7
            s_lshl_b32 {t3}, {t3}, 4
            s_add_u32 {t1}, {t1}, {t3}
            v_lshrrev_b32 {v(vA)}, 3, v0
            v_mul_u32_u24 {v(vA)}, {t2}, {v(vA)}
            v_lshl_add_u32 {v(vA)}, v0, 7, {v(vA)}
            v_add_u32 {v(vA)}, {t1}, {v(vA)}
            s_lshl_b32 {t2}, {t2}, 3
            v_add_u32 {v(vB)}, {t2}, {v(vA)}
            s_mov_b32 {t3}, {ONES}''')
            a(f'ds_write_b128 {v(vA)}, {v(Rr,4)}')
            self.exec(0xff); a(f'ds_write_b128 {v(vB)}, {v(Rr+4,4)} offset:8192'); self.exec(-1)
            S = Rr + 8
            for k in range(8):
                a(f'v_dot2_f32_bf16 {v(S)}, {v(Rr+k)}, {t3}, {v(S) if k else 0}'); a(f'v_dot2_f32_bf16 {v(S+1)}, {v(Rr+k)}, {v(Rr+k)}, {v(S+1) if k else 0}')
            self.dpp('v_add_f32', [S, S+1], ['row_ror:8', 'row_ror:4', 'row_ror:2', 'row_ror:1']); self.xsum([S, S+1], S+2, full=False)
            a(f'''v_mul_f32 {v(S)}, {f32(-1/576)}, {v(S)}
            v_mul_f32 {v(S+1)}, {f32(1/576)}, {v(S+1)}
            v_fma_f32 {v(S+1)}, -{v(S)}, {v(S)}, {v(S+1)}
            v_max_f32 {v(S+1)}, 0, {v(S+1)}
            v_add_f32 {v(S+1)}, {f32(1e-5)}, {v(S+1)}
            v_rsq_f32 {v(S+1)}, {v(S+1)}
            s_lshl_b32 {t0}, {t0}, 2
            s_add_u32 {t0}, {t0}, {NM}
            v_mov_b32 {v(vA)}, {t0}
            v_mov_b32 {v(S+2)}, 1.0
            v_mov_b32 {v(S+3)}, 0''')
            self.exec(1)
            a(f'ds_write2_b32 {v(vA)}, {v(S)}, {v(S+1)} offset0:0 offset1:80'); a(f'ds_write2_b32 {v(vA)}, {v(S+2)}, {v(S+3)} offset0:160 offset1:240')
            self.exec(-1)
        self.only(f's_cmp_lt_u32 {t2}, {t1}', f)
        a.barrier()
        self.stamp('patch')

    def build(self):
        a = self.a; o = self.o
        steps = [self.prologue, self.prep]
        for lay in range(2):
            steps += [lambda l=lay: self.gemm(l), lambda l=lay: self.attn(l), lambda l=lay: self.p2(l), lambda l=lay: self.router(l), lambda l=lay: self.winner(l)]
        for k, f in enumerate(steps):
            if k < o['stop']: f()
        if o['stamps']:
            a.wall(); self.stamp('end')
            a('s_memrealtime s[4:5]'); a.wlg(0); a('s_mov_b32 s101, s4')
            a(f's_lshl_b32 {t0}, s2, 2'); a(f's_add_u32 {t0}, {t0}, {sW}'); a(f's_lshl_b32 {t0}, {t0}, 7'); a(f's_add_u32 {t0}, {t0}, {STAMP}')
            for k in range(32): a(f'v_writelane_b32 {v(vA)}, s{STAMPS[k]}, {k}')
            a(f'v_lshlrev_b32 {v(vB)}, 2, v0'); self.exec((1 << 32) - 1)
            a(f'buffer_store_dword {v(vA)}, {v(vB)}, {sWS}, {t0} offen')
        if o['padto']:
            a.wall(); a.label('L_pad'); a('s_memrealtime s[4:5]'); a.wlg(0); a('s_sub_u32 s4, s4, s100'); a(f's_cmp_lt_u32 s4, {o["padto"]}'); a('s_cbranch_scc1 L_pad')
        a.label('L_exit')
        K = NAME + '_kernel'
        head = open('header.txt').read()
        return (f'; @launch grid=(256,1,1) block=(256,1,1) lds=163840\n' + head +
                f'.amdgcn_target "amdgcn-amd-amdhsa--gfx950"\n.text\n.globl {K}\n.p2align 8\n.type {K},@function\n{K}:\n' + a.text() + 's_endpgm\n' +
                f'''
.section .rodata,"a"
.p2align 6
.amdhsa_kernel {K}
  .amdhsa_next_free_vgpr 512
  .amdhsa_next_free_sgpr 102
  .amdhsa_accum_offset 256
  .amdhsa_group_segment_fixed_size 0
  .amdhsa_kernarg_size 88
  .amdhsa_user_sgpr_count 2
  .amdhsa_user_sgpr_kernarg_segment_ptr 1
  .amdhsa_system_sgpr_workgroup_id_x 1
.end_amdhsa_kernel
''')

if __name__ == '__main__':
    o = eval('dict(' + (sys.argv[2] if len(sys.argv) > 2 else '') + ')')
    g = G(**o); t = g.build(); open(sys.argv[1], 'w').write(t)
    print('lines', t.count('\n'), 'nops', g.a.nops, g.names)
```

```python
import sys, math, struct, subprocess, re
from asmlib import *
NAME = 'interleave_layers__sliding_local_dilated__moe_arch_mod__prompt'
WP = 0x10000; WOP = 0x200000; CAND = 0x2C0000; STAMP = 0x300000; FL = 0x340000; XF = 0x380000; XF2 = 0x390000
TB = 0x400000
oOB = 0; oOR = 65536; oST = oOR + 8192; oGB = oST + 8192; LS = oGB + 32768
oX1 = 2 * LS; oHX = oX1 + 73728; oHS = oHX + 9216; BLK = oHS + 1024
gPY = 0; gCZ = 640; gNR = 896
WSN = 0x1000000; OOB = 0x40000000; MAT = 5308416
assert TB + 32 * BLK <= WSN and CAND + LS + 65536 <= STAMP
LH = 73728; HP = 1168; GATE = 84352; UP = GATE + 36864; SCR = UP + 36864
HW = SCR; NM = HW + 2048; ZR = NM + 1280; WRL = ZR + 1152; WIN = WRL + 1152; CB = WIN + 16
assert CB + 64 <= 163840 and LH + 9 * HP <= GATE
sX, sWS, sOUT, sWQ, sWO, sWR, sWG, sWU, sWD, sCD, sWS1 = [s(8 + 4 * i, 4) for i in range(11)]
sWL = (sWS, sWS1)
t0, t1, t2, t3, t4 = 's3', 's4', 's5', 's6', 's7'
_n = [52]
def S1():
    _n[0] += 1; return f's{_n[0]-1}'
def S2():
    _n[0] += _n[0] & 1; _n[0] += 2; return s(_n[0] - 2, 2)
sMK = [S2() for _ in range(4)]; sSV = S2(); sCM = S2(); sBIAS = S2()
(sXCD, sLI, sCG, sW, sT, sJ, sP, sNON, sSW, sF, sCNT, sCID, sRED, sKEY, sM, sSTD, sTB, sTP, sOBs, sORs, sSTs, sGB, sGU, sGL, sWB,
 sSLOT, sOWN, sSLOW, sOUTo, sFN) = [S1() for _ in range(30)]
assert _n[0] <= 96
vL, vXe, vXo, vHe, vHo, vL16, vI, vG = range(8)
vM = 8; vPM = 12; vSEL = 14; vSTAMP = 16; vOB = 17; vDUM = 18; vRA = 19
vA, vB, vC, vD, vE, vF = 22, 23, 24, 25, 26, 27
PAIR = 28; RSK = 38; CS = 44; RES = 58; ACC2 = 28; WRP = 48
XFB = 68; ACC = 108; WDF = 188
Qb, Kb, Vb, Rb = ACC, ACC + 20, ACC + 40, ACC + 60
def Wf(ks, n): return (256 + 16 * ks if ks < 16 else 224 + 16 * (ks - 16)) + 4 * n
BIG = 0xf149f2ca
ONES = 0x3f803f80
LOG2E = math.log2(math.e)
def f32(x): return '0x%08x' % struct.unpack('<I', struct.pack('<f', x))[0]
def sb(srd): return int(srd[2:srd.index(':')])

class G:
    def __init__(self, **o):
        self.o = dict(stamps=False, padto=0, probe='', noffn=False, force=False, slowcopy=True, pads=True,
                      depth=3, osc='', wostep=12, pre=True, nt='', wd1=8, kf=11, wopf=15,
                      pf=(('s', 0, 'non', 0, 1), ('g', 1, 'all', 0, 2), ('p', 1, 'all', 1, 2)), gate='x', up='x', gux=4,
                      h1=2, h2=5, h3=8, h4=14, h5=17, hA=8, hB=11, hC=16, p2n=6, ring=(19, 40))
        assert all(k in self.o for k in o), o
        self.o.update(o)
        self.a = Asm(); self.names = []; self.nl = 0; self.colds = []; self.sp = ''; self.sx = ''
    def L(self, p='L'):
        self.nl += 1; return f'{p}_{self.nl}'
    def stamp(self, name):
        a = self.a
        if name == self.o['probe']: a.wlg(0); a('s_memrealtime s[98:99]'); a.wlg(0)
        if not self.o['stamps']: return
        a.wlg(0); a('s_memtime s[0:1]'); a.wlg(0)
        if name not in self.names: self.names.append(name)
        a(f'v_writelane_b32 {v(vSTAMP)}, s0, {self.names.index(name)}')
    def only(self, cond, fn):
        L = self.L(); self.a(cond); self.a(f's_cbranch_scc0 {L}'); fn(); self.a.label(L)
    def w(self, k, fn): self.only(f's_cmp_eq_u32 {sW}, {k}', fn)
    def exec(self, m):
        a = self.a
        if m == -1 or m < (1 << 31): a(f's_mov_b64 exec, {m}')
        else: a(f's_mov_b32 exec_lo, 0x{m & 0xffffffff:x}'); a(f's_mov_b32 exec_hi, 0x{m >> 32:x}')
    def tick(self): self.a(f's_sub_u32 {sCNT}, {sCNT}, 1'); self.a('s_cbranch_scc1 L_exit')
    def poll(self, issue, check):
        a = self.a; L = self.L('P'); a.label(L); self.tick(); issue(); check(); a(f's_cbranch_vccnz {L}')
    def verify(self, issue, check):
        a = self.a; Lc, Lr = self.L('C'), self.L('R')
        a.label(Lc); check(); a(f's_cbranch_vccnz {Lr}')
        def cold(): a.label(Lr); self.tick(); a.wall(); issue(); a.wall(); a(f's_branch {Lc}')
        self.colds.append(cold)
    def run(self, f):
        if callable(f): return f()
        for y in f: tk = self.a(y)
        return tk
    def xsum(self, rs, tmp, op='v_add_f32', full=True, sws=('v_permlane32_swap_b32', 'v_permlane16_swap_b32')):
        a = self.a
        for sw in sws:
            if full:
                for k, r in enumerate(rs): a(f'v_mov_b32 {v(tmp+k)}, {v(r)}')
            for k, r in enumerate(rs): a(f'{sw} {v(r)}, {v(tmp+k)}')
            for k, r in enumerate(rs): a(f'{op} {v(r)}, {v(r)}, {v(tmp+k)}')
    def dpp(self, op, rs, mods):
        for m in mods:
            for r in rs: self.a(f'{op}_dpp {v(r)}, {v(r)}, {v(r)} {m} row_mask:0xf bank_mask:0xf')
    def maxu(self, d, rs, first=True):
        rs = list(rs); r = []
        if first: r.append(f'v_max3_u32 {v(d)}, {v(rs[0])}, {v(rs[1])}, {v(rs[2])}' if len(rs) % 2 else f'v_max_u32 {v(d)}, {v(rs[0])}, {v(rs[1])}'); rs = rs[3:] if len(rs) % 2 else rs[2:]
        for k in range(0, len(rs), 2): r.append(f'v_max3_u32 {v(d)}, {v(d)}, {v(rs[k])}, {v(rs[k+1])}')
        return r
    def div9(self, q, x):
        return [f'v_mul_u32_u24 {v(q)}, 7282, {v(x)}', f'v_lshrrev_b32 {v(q)}, 16, {v(q)}']

    def srd(self, lst):
        for srd, n in lst: self.a(f's_mov_b32 s{sb(srd)+2}, {n}'); self.a(f's_mov_b32 s{sb(srd)+3}, 0x20000')
    def common(self):
        a = self.a
        a(f's_load_dword {sNON}, s[{sb(sWS)}:{sb(sWS)+1}], 0')
        self.srd(((sWS, WSN), (sOUT, 2359296), (sWR, 1152), (sWS1, WSN - LS)))
        a(f'''s_cmp_lt_u32 {sLI}, {0 if self.o["noffn"] else 18}
        s_cselect_b32 {sFN}, {MAT}, 0''')
        self.srd(((sWD, sFN), (sWG, sFN), (sWU, sFN)))
        a(f'''s_add_u32 s{sb(sWS1)}, s{sb(sWS)}, {LS}
        s_addc_u32 s{sb(sWS1)+1}, s{sb(sWS)+1}, 0
        s_mov_b32 {sCNT}, 20000
        s_mov_b32 {sSLOW}, {1 if self.o["force"] else 0}
        s_mul_i32 {sF}, {sXCD}, 18
        s_add_u32 {sF}, {sF}, {sLI}
        s_sub_u32 {sRED}, {sLI}, 24
        s_lshl_b32 {sRED}, {sRED}, 3
        s_add_u32 {sRED}, {sRED}, {sXCD}
        s_cmp_eq_u32 {sW}, 0
        s_cselect_b32 {sRED}, {sRED}, 99
        s_mul_i32 {sTB}, {sT}, {BLK}
        s_add_u32 {sTB}, {sTB}, {TB}
        s_cmp_eq_u32 {sJ}, 0
        s_cselect_b32 {t0}, 0, {BLK}
        s_cselect_b32 s{sb(sBIAS)}, 0x{BIG:x}, 0
        s_mov_b32 s{sb(sBIAS)+1}, s{sb(sBIAS)}
        s_sub_u32 {sTP}, {sTB}, {t0}
        s_lshl_b32 {t0}, {sCG}, 2
        s_add_u32 {t0}, {t0}, {sW}
        s_mul_i32 {sWB}, {t0}, 62208
        s_add_u32 {sWB}, {sWB}, {WP}
        s_lshl_b32 {t1}, {t0}, 9
        s_add_u32 {sOBs}, {t1}, {sTB}
        s_lshl_b32 {t1}, {t0}, 8
        s_add_u32 {t1}, {t1}, {sTB}
        s_add_u32 {sORs}, {t1}, {oOR}
        s_add_u32 {sSTs}, {t1}, {oST}
        s_lshl_b32 {t1}, {t0}, 10
        s_add_u32 {t1}, {t1}, {sTB}
        s_add_u32 {sGB}, {t1}, {oGB}
        s_lshr_b32 {t1}, {sW}, 1
        s_mul_i32 {t1}, {t1}, 294912
        s_and_b32 {t2}, {sW}, 1
        s_mul_i32 {t2}, {t2}, 36864
        s_add_u32 {t1}, {t1}, {t2}
        s_lshl_b32 {t2}, {sF}, 6
        s_add_u32 {sGU}, {t1}, {t2}
        s_lshl_b32 {sGL}, {sW}, 10
        s_lshl_b32 {t0}, {sJ}, 2
        s_add_u32 {t0}, {t0}, {sW}
        s_lshl_b32 {t0}, {t0}, 5
        s_add_u32 {t0}, {t0}, {sP}
        s_lshl_b32 {t0}, {t0}, 3
        s_add_u32 {t0}, {t0}, {sCG}
        s_mul_i32 {sOUTo}, {t0}, 144''')
    def nonce(self):
        self.a(f's_mul_i32 {sNON}, {sNON}, 1664525'); self.a(f's_add_u32 {sNON}, {sNON}, 1013904223'); self.a(f's_and_b32 {sNON}, {sNON}, -16')
    def wrsum(self):
        a = self.a
        a(f's_mov_b32 {t0}, {ONES}')
        for k in range(8): a(f'v_dot2_f32_bf16 {v(vA)}, v{56+k}, {t0}, {v(vA) if k else 0}')
        self.dpp('v_add_f32', [vA], ['row_ror:8', 'row_ror:4', 'row_ror:2', 'row_ror:1']); self.xsum([vA], vB)
        a(f'v_readfirstlane_b32 {sSW}, {v(vA)}')
    def poisonL(self, pol, P):
        a = self.a
        for k in range(4): a(f'v_mov_b32 {v(P+k)}, -1')
        a(f'''v_lshrrev_b32 {v(P+4)}, 1, {v(vG)}
        v_mul_u32_u24 {v(P+4)}, {LS - 16384}, {v(P+4)}
        v_lshl_add_u32 {v(P+4)}, {v(vG)}, 13, {v(P+4)}
        v_lshl_add_u32 {v(P+4)}, {v(vI)}, 4, {v(P+4)}
        s_add_u32 {t0}, {sOBs}, 32768''')
        for W in sWL:
            for b in (sOBs, t0): a(f'buffer_store_dwordx4 {v(P,4)}, {v(vOB)}, {W}, {b} offen{pol}')
        return a(f'buffer_store_dwordx4 {v(P,4)}, {v(P+4)}, {sWS}, {sORs} offen{pol}')
    def pfetch(self, pos, r0, w0=0):
        a = self.a; U = []
        if self.o['noffn']: return U
        for p, mat, who, part, parts in self.o['pf']:
            if p != pos: continue
            nc = 32 if who == 'all' else 14; R = -(-576 // (nc * parts)); n = -(-9 * R // (4 - w0)); srd = (sWG, sWU)[mat]
            for j in range(-(-n // 64)):
                U.append([f's_mul_i32 s1, {sW}, {n}', f'v_add_u32 {v(r0)}, {64*j}, v0', f'v_min_u32 {v(r0)}, {n-1}, {v(r0)}'])
                U.append([f's_mul_i32 s1, {sW}, {n}', f's_sub_u32 s1, s1, {w0*n}', f'v_add_u32 {v(r0)}, s1, {v(r0)}', f'v_min_u32 {v(r0)}, {9*R-1}, {v(r0)}'])
                U[-2].pop(0)
                U.append(self.div9(r0 + 1, r0))
                U.append([f'v_mul_u32_u24 {v(r0+1)}, 8064, {v(r0+1)}', f'v_lshl_add_u32 {v(r0)}, {v(r0)}, 7, {v(r0+1)}'])
                def ld(srd=srd, who=who, R=R, base=(part * nc - (0 if who == 'all' else 18)) * R * 8):
                    a(f's_mul_i32 s1, {sLI}, {R*8}'); a(f's_add_u32 s1, s1, {sXCD}')
                    if base: a(f's_add_u32 s1, s1, 0x{base & 0xffffffff:x}')
                    a(f's_mul_i32 s1, s1, 1152')
                    a(f's_mov_b32 s{sb(srd)+2}, {MAT}' if who == 'all' else f's_xor_b32 s{sb(srd)+2}, {sFN}, {MAT}')
                    a.untracked(f'buffer_load_dword {v(vDUM)}, {v(r0)}, {srd}, s1 offen{self.o["nt"]}')
                    a(f's_mov_b32 s{sb(srd)+2}, {sFN}')
                U.append(ld)
        return U

    def start(self):
        a = self.a; o = self.o; nt = o['nt']
        Lx, Lwo, Lj, Lxt, Lwt, Lf = [self.L() for _ in range(6)]
        a('s_cmp_ge_u32 s2, 256'); a('s_cbranch_scc1 L_exit')
        if o['stamps'] or o['padto']: a('s_memrealtime s[100:101]'); a('s_memtime s[96:97]'); a(f'v_mov_b32 {v(vSTAMP)}, 0')
        def ld(l):
            for srd, off in l: a(f's_load_dwordx2 s[{sb(srd)}:{sb(srd)+1}], s[0:1], {off}')
        ld(((sWQ, 8), (sX, 0), (sWO, 16), (sWS, 80)))
        a(f's_getpc_b64 s[{sb(sCD)}:{sb(sCD)+1}]'); a.raw('L_pc:')
        a(f's_lshr_b32 {sLI}, s2, 3'); self.srd(((sCD, 'L_hotend-L_pc'),))
        a(f'''v_lshrrev_b32 v1, 4, v0
        v_lshlrev_b32 v1, 7, v1
        s_lshl_b32 {t0}, {sLI}, 11''')
        tkc = a.untracked(f'buffer_load_dword {v(vDUM)}, v1, {sCD}, {t0} offen')
        a(f'''v_lshrrev_b32 v2, 6, v0
        s_and_b32 {sXCD}, s2, 7
        v_readfirstlane_b32 {sW}, v2''')
        ld(((sWD, 56), (sWG, 40), (sWU, 48), (sWR, 32), (sOUT, 64)))
        a(f'''v_and_b32 v0, 63, v0
        s_and_b32 {sCG}, {sLI}, 7
        s_lshr_b32 {t0}, {sLI}, 3
        s_lshl_b32 {sT}, {sXCD}, 2
        s_add_u32 {sT}, {sT}, {t0}
        s_lshr_b32 {sP}, {sT}, 4
        s_and_b32 {sJ}, {sT}, 15
        v_and_b32 {v(vI)}, 15, v0
        v_lshrrev_b32 {v(vG)}, 4, v0
        v_lshlrev_b32 {v(vL16)}, 4, v0''')
        XV = 66
        self.srd(((sX, 2359296),))
        a(f'''v_lshrrev_b32 {v(vA)}, 3, v0
        v_and_b32 {v(vB)}, 7, v0
        v_and_b32 v{XV}, 6, {v(vA)}
        v_xor_b32 v{XV}, v{XV}, {v(vB)}
        v_mul_u32_u24 {v(vA)}, 2304, {v(vA)}
        v_lshl_add_u32 v{XV}, v{XV}, 4, {v(vA)}''')
        a(f's_cmp_lg_u32 {sW}, 0'); a(f's_cbranch_scc1 {Lx}')
        for x in self.div9(vA, 0): a(x)
        a(f's_mul_i32 {t4}, {sCG}, 144'); a(f's_mov_b32 m0, {GATE}')
        a(f's_cmp_ge_u32 {sT}, 27'); a(f's_cbranch_scc1 {Lwo}')
        self.srd(((sWQ, 1990656),))
        a(f'''s_mul_i32 {sM}, {sT}, 43
        s_lshr_b32 {sM}, {sM}, 7
        s_mul_i32 {sKEY}, {sM}, 3
        s_sub_u32 {sKEY}, {sT}, {sKEY}
        v_mul_u32_u24 {v(vA)}, {3456-144}, {v(vA)}
        v_add_u32 {v(vA)}, {v(vA)}, {v(vL16)}
        s_mul_i32 {t3}, {sM}, {64*3456}
        s_add_u32 {t3}, {t3}, {t4}
        s_mul_i32 {t4}, {sKEY}, 1152
        s_add_u32 {t3}, {t3}, {t4}''')
        self.stamp('start')
        for q in range(10):
            if q: a(f's_add_u32 m0, m0, 1008'); a(f's_add_u32 {t3}, {t3}, {7*3456}')
            if q == 9: self.exec(0x1ff)
            tkw = a(f'buffer_load_dwordx4 {v(vA)}, {sWQ}, {t3} offen{nt} lds')
        self.exec(-1); a(f's_branch {Lj}')
        a.label(Lx)
        a(f'''s_lshl_b32 {t0}, {sJ}, 7
        s_add_u32 {t0}, {t0}, {sP}
        s_mul_i32 {t0}, {t0}, 1152
        s_sub_u32 {t4}, {sW}, 1
        s_mul_i32 {sM}, {t4}, {3*9216}
        s_lshl_b32 {sCID}, {sM}, 1
        s_add_u32 {sCID}, {sCID}, {t0}
        s_cmp_eq_u32 {sJ}, 0
        s_cselect_b32 {t2}, 0, 18432
        s_sub_u32 {t2}, {t0}, {t2}
        s_add_u32 {sSTD}, {sCID}, 36864
        s_cmp_eq_u32 {sW}, 3
        s_cselect_b32 {sSTD}, {t2}, {sSTD}
        s_cselect_b32 {sKEY}, {HP - 1024}, 0
        s_add_u32 {sKEY}, {sKEY}, 1024
        s_mul_i32 {sSLOT}, {sCG}, 43
        s_lshr_b32 {sSLOT}, {sSLOT}, 7
        s_mul_i32 {sSLOT}, {sSLOT}, 3
        s_sub_u32 {sSLOT}, {sCG}, {sSLOT}''')
        def nxt(): a(f's_add_u32 {sSLOT}, {sSLOT}, 1'); a(f's_cmp_eq_u32 {sSLOT}, 3'); a(f's_cselect_b32 {sSLOT}, 0, {sSLOT}')
        def bases():
            a(f'''s_mul_i32 {t2}, {sSLOT}, 3072
            s_add_u32 {t2}, {t2}, {sM}
            s_mul_i32 {t4}, {sSLOT}, {sKEY}
            s_mul_i32 {t4}, {t4}, 3
            s_add_u32 {t4}, {t4}, {sM}''')
        def xround():
            bases()
            a(f's_mul_i32 {t0}, {sSLOT}, 384'); a(f's_add_u32 {t1}, {sCID}, {t0}'); a(f's_add_u32 {t3}, {sSTD}, {t0}'); a(f's_sub_u32 {t0}, {sKEY}, 128')
            for k in range(3):
                if k == 1: a(f's_add_u32 {t1}, {t1}, 18432')
                for b in range(3):
                    a(f's_add_u32 m0, {t2}, {9216*k + 896*b}' if k < 2 else f's_add_u32 m0, m0, {t0}' if b else f's_add_u32 m0, {t4}, 18432')
                    tk = a(f'buffer_load_dwordx4 v{XV}, {sX}, {t1 if k < 2 else t3} offen offset:{128*b}{nt} lds')
            return tk
        self.stamp('start')
        tx = [xround()]
        a(f's_branch {Lj}')
        a.label(Lwo)
        self.srd(((sWO, 663552),))
        a(f'''s_sub_u32 {sM}, {sT}, 27
        s_min_u32 {sM}, {sM}, 3
        v_mul_u32_u24 {v(vA)}, {1152-144}, {v(vA)}
        v_add_u32 {v(vA)}, {v(vA)}, {v(vL16)}
        s_mul_i32 {t3}, {sM}, {144*1152}
        s_add_u32 {t3}, {t3}, {t4}''')
        self.stamp('start')
        for q in range(21):
            if q: a(f's_add_u32 m0, m0, 1008'); a(f's_add_u32 {t3}, {t3}, {7*1152}')
            tko = a(f'buffer_load_dwordx4 {v(vA)}, {sWO}, {t3} offen{nt} lds')
        a.label(Lj)
        self.common(); self.consts()
        tkp = self.poisonL('', 44)
        a(f'buffer_load_dwordx4 v[56:59], {v(vL16)}, {sWR}, 0 offen'); a(f'buffer_load_dwordx4 v[60:63], {v(vL16)}, {sWR}, 0 offen offset:1024')
        a(f's_cmp_lg_u32 {sW}, 0'); a(f's_cbranch_scc1 {Lxt}')
        a(f'v_bfe_u32 v30, v0, 2, 2'); a(f'v_and_b32 v31, 3, v0'); a(f'v_lshlrev_b32 v28, 15, v0'); a(f'v_lshlrev_b32 v29, 7, v0')
        a(f's_cmp_ge_u32 {sT}, 27'); a(f's_cbranch_scc1 {Lwt}')
        a(f'''v_lshl_add_u32 v32, {v(vG)}, 3, v30
        v_mul_u32_u24 v32, 144, v32
        v_lshl_add_u32 v40, v31, 3, v32
        v_add_u32 v40, {GATE}, v40
        v_lshrrev_b32 v33, 1, v31
        v_mul_u32_u24 v33, {4608-144}, v33
        v_mul_u32_u24 v34, 72, v31
        v_add3_u32 v41, v32, v33, v34
        v_add_u32 v41, {GATE+32}, v41
        v_bfe_u32 v33, v0, 1, 2
        v_mul_u32_u24 v33, 62208, v33
        v_bfe_u32 v34, v0, 3, 1
        v_mul_u32_u24 v34, 3456, v34
        v_and_b32 v35, 1, v0
        v_lshlrev_b32 v35, 6, v35
        v_add3_u32 v42, v33, v34, v35
        v_lshl_add_u32 v42, {v(vG)}, 4, v42
        s_mul_i32 {t3}, {sM}, 6912
        s_add_u32 {t3}, {t3}, {sWB}
        s_lshl_b32 {t4}, {sKEY}, 10
        s_add_u32 {t1}, {t3}, {t4}
        s_lshl_b32 {t4}, {sKEY}, 7
        s_add_u32 {t2}, {t3}, {t4}''')
        a.wait(tkw)
        self.stamp('prepld')
        for e in range(9):
            hd, kl = e >> 1, e & 1
            for jh in range(2):
                a(f'ds_read_b64_tr_b16 {v(ACC+4*e+2*jh, 2)}, ' + (f'v40 offset:{(32*kl + 4*jh)*144 + 72*(hd>>1) + 40*(hd&1)}' if e < 8 else f'v41 offset:{576*jh}'))
        for e in range(8):
            if e > 1 and not e & 1: a(f's_add_u32 {t1}, {t1}, 62208')
            a(f'buffer_store_dwordx4 {v(ACC+4*e,4)}, {v(vL16)}, {sWS}, {t1} offen offset:{3456*(e&1)} sc1')
        a(f'buffer_store_dwordx4 {v(ACC+32,4)}, v42, {sWS}, {t2} offen offset:3072 sc1')
        a('s_barrier')
        a.label(Lf)
        self.stamp('prepst')
        self.nonce()
        a(f'''s_lshl_b32 {t1}, {sCG}, 12
        s_add_u32 {t1}, {t1}, {FL}
        s_lshl_b32 {t2}, {sT}, 7
        s_add_u32 {t2}, {t2}, {t1}
        s_lshl_b32 {t3}, {sXCD}, 15
        s_add_u32 {t1}, {t1}, {t3}
        v_mov_b32 v30, {sNON}''')
        self.wrsum()
        a.wvm(0)
        self.exec(0xff); a(f'buffer_store_dword v30, v28, {sWS}, {t2} offen sc1')
        self.stamp('flag0')
        a.wvm(0)
        self.exec((1 << 27) - 1)
        self.poll(lambda: a(f'buffer_load_dword v30, v29, {sWS}, {t1} offen sc1'), lambda: a(f'v_cmp_ne_u32 vcc, {sNON}, v30'))
        self.exec(-1)
        a('s_branch L_main')

        a.label(Lwt)
        a(f'''v_lshrrev_b32 v33, 1, {v(vG)}
        v_and_b32 v34, 1, {v(vG)}
        v_lshl_add_u32 v32, {v(vG)}, 3, v30
        v_lshl_add_u32 v32, v33, 2, v32
        v_mul_u32_u24 v32, 144, v32
        v_mul_u32_u24 v36, 72, v34
        v_add_u32 v36, v36, v30
        v_mul_u32_u24 v36, 144, v36
        v_add_u32 v32, {GATE}, v32
        v_add_u32 v36, {GATE + 16*144}, v36
        v_and_b32 v35, 1, v0
        v_lshl_add_u32 v40, v31, 4, v32
        v_lshl_add_u32 v41, v35, 3, v32
        v_lshl_add_u32 v42, v31, 4, v36
        v_lshl_add_u32 v42, v33, 3, v42
        v_lshl_add_u32 v43, v35, 3, v36
        v_lshlrev_b32 v38, 7, {v(vG)}
        v_lshl_add_u32 v38, {v(vI)}, 4, v38
        v_add_u32 v38, 4096, v38
        v_lshl_add_u32 v39, v33, 9, {v(vL16)}
        s_mul_i32 {t3}, {sCG}, 82944
        s_add_u32 {t3}, {t3}, {WOP}
        s_mul_i32 {t1}, {sM}, {4*4608}
        s_add_u32 {t1}, {t1}, {t3}
        s_lshr_b32 {t2}, {sM}, 1
        s_mul_i32 {t2}, {t2}, 4608
        s_add_u32 {t3}, {t3}, {t2}
        s_add_u32 {t3}, {t3}, {16*4608}
        s_and_b32 {t2}, {sM}, 1
        s_lshl_b32 {t2}, {t2}, 8
        s_add_u32 {t3}, {t3}, {t2}
        s_add_u32 {t2}, {t3}, {t2}
        s_barrier''')
        a.wait(tko)
        self.stamp('prepld')
        for kl in range(4):
            for n in range(5):
                for jh in range(2):
                    a(f'ds_read_b64_tr_b16 {v(XFB+20*kl+4*n+2*jh, 2)}, v{41 if n == 4 else 40} offset:{(36*kl + 4*jh)*144 + 64*(n>>1) + 8*(n&1)}')
        for p in range(3):
            for jh in range(2): a(f'ds_read_b64_tr_b16 {v(XFB+80+4*p+2*jh, 2)}, v{43 if p == 2 else 42} offset:{36*144*jh + 64*p}')
        for kl in range(4):
            if kl: a(f's_add_u32 {t1}, {t1}, 4608')
            for n in range(4): a(f'buffer_store_dwordx4 {v(XFB+20*kl+4*n,4)}, {v(vL16)}, {sWS}, {t1} offen offset:{1024*n} sc1')
            self.exec(0x00ff00ff00ff00ff)
            a(f'buffer_store_dwordx4 {v(XFB+20*kl+16,4)}, v38, {sWS}, {t1} offen sc1'); self.exec(-1)
        for p in range(2): a(f'buffer_store_dwordx4 {v(XFB+80+4*p,4)}, v39, {sWS}, {t2} offen offset:{2048*p} sc1')
        self.exec(0x00ff00ff); a(f'buffer_store_dwordx4 {v(XFB+88,4)}, v38, {sWS}, {t3} offen sc1'); self.exec(-1)
        a.wall(); a(f's_branch {Lf}')

        a.label(Lxt)
        def wr():
            a(f's_mov_b32 m0, {WRL}'); a(f'buffer_load_dwordx4 {v(vL16)}, {sWR}, 0 offen lds')
            self.exec(0xff); a(f'buffer_load_dwordx4 {v(vL16)}, {sWR}, 0 offen offset:1024 lds'); self.exec(-1)
        self.w(2, wr)
        if o['pre']:
            def pre():
                a(f'''v_lshrrev_b32 v30, 5, v0
                v_mul_u32_u24 v30, {LS - 32*256}, v30
                v_lshl_add_u32 v30, v0, 8, v30
                s_lshl_b32 {t0}, {sXCD}, 13
                s_add_u32 {t0}, {t0}, {CAND}''')
                a.untracked(f'buffer_load_dword {v(vDUM)}, v30, {sWS}, {t0} offen sc1')
            a(f's_lshl_b32 {t0}, {sLI}, 2'); a(f's_add_u32 {t0}, {t0}, {sW}')
            self.only(f's_cmp_eq_u32 {t0}, {31*4+1}', pre)
        self.ones()
        def hz():
            a(f'v_mov_b32 v36, 0\nv_mov_b32 v37, 0\nv_mov_b32 v38, 0\nv_mov_b32 v39, 0\nv_add_u32 {v(vA)}, {HW}, {v(vL16)}')
            a(f'ds_write_b128 {v(vA)}, v[36:39]'); a(f'ds_write_b128 {v(vA)}, v[36:39] offset:1024')
        self.w(1, hz)
        a(f'''v_lshrrev_b32 {v(vA)}, 3, v0
        v_and_b32 {v(vB)}, 7, v0
        v_mul_u32_u24 v65, 1152, {v(vA)}
        v_lshl_add_u32 v65, {v(vB)}, 4, v65
        s_mul_i32 {t2}, {sW}, 96
        s_add_u32 {t2}, {t2}, {NM + 64 - 96}
        v_lshl_add_u32 v64, {v(vA)}, 2, {t2}''')
        if o['pads']:
            a.wait(tkc); a.wlg(0)
            for l in ('s_mov_b64 exec, 0', f's_cmp_eq_u32 {sW}, 2', 's_cbranch_scc1 L_pad1', f's_cmp_eq_u32 {sW}, 3', 's_cbranch_scc1 L_pad2', 's_branch L_pad0', 'L_padret:'): a.raw(l)
            self.exec(-1)
            self.stamp('chain')
        def rd(r):
            bases(); B = ACC + 36 * (r & 1)
            a(f'v_add_u32 v34, {t2}, {v(vL16)}'); a(f'v_add_u32 v35, {t4}, {v(vL16)}'); a(f'v_add_u32 v36, {sKEY}, v35'); a(f'v_add_u32 v37, {sKEY}, v36')
            a.wait(tx[r])
            for k in range(3):
                for b in range(3): a(f'ds_read_b128 {v(B + 12*k + 4*b, 4)}, ' + (f'v34 offset:{9216*k + 1024*b}' if k < 2 else f'v{35+b} offset:18432'))
        def dots(r):
            a(f's_mov_b32 {t0}, {ONES}')
            for e in range(36):
                x = v(ACC + 36*(r&1) + e); S = 28 + 2*(e // 12); z = r or e % 12
                a(f'v_dot2_f32_bf16 {v(S)}, {x}, {t0}, {v(S) if z else 0}'); a(f'v_dot2_f32_bf16 {v(S+1)}, {x}, {x}, {v(S+1) if z else 0}')
        def wd(lst):
            if not lst: return
            a(f'''s_mul_i32 {t1}, {sF}, 36864
            s_mul_i32 {t2}, {sW}, 384
            s_add_u32 {t1}, {t1}, {t2}
            s_mul_i32 {t2}, {sW}, 3072''')
            for q in lst:
                oc, b = divmod(q, 3)
                a(f's_add_u32 m0, {t2}, {UP - 3072 + 9216*oc + 896*b}'); a(f's_add_u32 s1, {t1}, {9216*oc - 384}' if oc else f's_sub_u32 s1, {t1}, 384')
                a(f'buffer_load_dwordx4 v65, {sWD}, s1 offen offset:{128*b}{nt} lds')
        rd(0); self.stamp('prepld'); dots(0)
        a('s_barrier')
        nxt(); tx.append(xround()); nxt(); tx.append(xround())
        self.stamp('prepst')
        self.nonce(); self.wrsum()
        nxt(); nxt(); rd(1); dots(1); nxt(); rd(2)
        self.stamp('xin')
        wd(range(o['wd1']))
        for u in self.pfetch('s', 40, 1): self.run(u)
        dots(2)
        self.dpp('v_add_f32', range(28, 34), ['quad_perm:[1,0,3,2]', 'quad_perm:[2,3,0,1]', 'row_half_mirror'])
        a(f's_mov_b32 {t0}, {f32(1/576)}'); a(f'v_mov_b32 v40, {f32(1e-5)}')
        for op in range(5):
            for S in (28, 30, 32):
                a([f'v_mul_f32 {v(S)}, {f32(-1/576)}, {v(S)}', f'v_fma_f32 {v(S+1)}, {v(S+1)}, {t0}, v40', f'v_fma_f32 {v(S+1)}, -{v(S)}, {v(S)}, {v(S+1)}',
                   f'v_max_f32 {v(S+1)}, v40, {v(S+1)}', f'v_rsq_f32 {v(S+1)}, {v(S+1)}'][op])
        a(f's_cmp_eq_u32 {sW}, 3'); a(f's_cselect_b32 {t2}, 288, 0'); a(f's_cselect_b32 {t3}, 320, 0'); a(f'v_subrev_u32 v41, {t2}, v64'); a(f'v_subrev_u32 v42, {t3}, v64')
        self.exec(0x0101010101010101)
        for k in range(2): a(f'ds_write2_b32 v64, v{28+2*k}, v{29+2*k} offset0:{8*k} offset1:{80+8*k}')
        for r in (41, 42): a(f'ds_write2_b32 v{r}, v32, v33 offset0:16 offset1:96')
        self.exec(-1)
        wd(range(o['wd1'], 12))
        self.stamp('flag0')
        a('s_branch L_main')
        a.raw('.p2align 12')
        a.label('L_main')
        a.barrier()
        self.stamp('h0')

    def ones(self):
        a = self.a
        def f():
            a(f'v_mul_u32_u24 {v(vA)}, {HP}, v0'); a(f'v_add_u32 {v(vA)}, {LH + 1024}, {v(vA)}')
            for k in range(4): a(f'v_mov_b32 {v(XFB+k)}, {ONES}')
            self.exec(0x1ff); a(f'ds_write_b128 {v(vA)}, {v(XFB,4)}'); self.exec(-1)
        self.w(2, f)

    def gu(self, mat, q):
        return [f's_add_u32 m0, {sGL}, {(UP if mat else GATE) + 4096*q}', f's_add_u32 s1, {sGU}, {589824*q}',
                f'buffer_load_dwordx4 {v(vD if mat else vC)}, {sWU if mat else sWG}, s1 offen{self.o["nt"]} lds']
    def gu_at(self, pos):
        return [self.gu(m, q) for m, k in ((0, self.o['gate']), (1, self.o['up'])) if k == pos for q in range(9)]

    def consts(self):
        a = self.a
        a(f'''v_lshrrev_b32 v28, 3, {v(vI)}
        v_mul_u32_u24 v28, 9216, v28
        v_and_b32 v29, 7, {v(vI)}
        v_and_b32 v31, 6, v29
        v_xor_b32 v32, v31, {v(vG)}
        v_lshlrev_b32 v32, 4, v32
        v_lshl_add_u32 v32, v29, 7, v32
        v_add_u32 {v(vXe)}, v32, v28
        v_xor_b32 {v(vXo)}, 64, {v(vXe)}
        v_cmp_gt_u32 vcc, 8, {v(vI)}
        v_mov_b32 v33, {LH + 1024}
        v_add_u32 v34, {LH - 9216}, {v(vXe)}
        v_add_u32 v35, {LH - 9216}, {v(vXo)}
        v_cndmask_b32 {v(vHe)}, v34, v33, vcc
        v_cndmask_b32 {v(vHo)}, v35, v33, vcc''')
        a(f's_mul_i32 {t0}, {sCG}, 9'); a(f's_mul_i32 {t1}, {sW}, 18432')
        a(f'v_lshl_add_u32 v33, v29, 7, v28'); a(f'v_add_u32 v33, {t1}, v33')
        for P in range(3):
            a(f's_add_u32 {t2}, {t0}, {4*P}')
            if P < 2: a(f'v_add_u32 v34, {t2}, {v(vG)}')
            else: a(f'v_mov_b32 v34, {t2}')
            a(f'''v_lshrrev_b32 v35, 3, v34
            v_and_b32 v34, 7, v34
            v_xor_b32 v34, v34, v31
            v_lshl_add_u32 v35, v35, 10, v33
            v_lshl_add_u32 {v(vRA+P)}, v34, 4, v35''')
        a(f'v_and_b32 v34, 1, {v(vG)}'); a(f'v_lshl_add_u32 {v(vRA+2)}, v34, 3, {v(vRA+2)}')
        a(f'''v_bfe_u32 v35, v0, 2, 2
        v_lshl_add_u32 v35, {v(vG)}, 3, v35
        v_mul_u32_u24 v35, 9216, v35
        v_xor_b32 v36, v34, v0
        v_and_b32 v36, 3, v36
        v_lshl_add_u32 {v(vC)}, v36, 4, v35
        v_xor_b32 {v(vD)}, 32, {v(vC)}
        v_lshlrev_b32 {v(vF)}, 4, {v(vG)}
        v_lshl_add_u32 {v(vF)}, {v(vI)}, 6, {v(vF)}
        v_mov_b32 v35, {OOB}
        v_cmp_gt_u32 vcc, 6, {v(vI)}
        s_lshl_b32 {t0}, {sXCD}, 3
        s_add_u32 {t0}, {t0}, {sCG}
        s_lshl_b32 {t0}, {t0}, 12
        v_cndmask_b32 {v(vF)}, v35, {v(vF)}, vcc
        s_add_u32 {t0}, {t0}, {FL - 5*128}
        s_lshl_b32 {t1}, {sXCD}, 12
        s_add_u32 {t1}, {t1}, {XF}
        v_cmp_gt_u32 vcc, 32, v0
        v_min_u32 v37, 35, v0
        v_lshl_add_u32 v35, v37, 7, {t0}
        v_lshl_add_u32 v36, v37, 7, {t1}
        v_cndmask_b32 {v(vE)}, v35, v36, vcc''')
        a(f'''v_lshlrev_b32 v34, 14, v34
        v_lshrrev_b32 v35, 1, {v(vG)}
        v_lshl_add_u32 v34, v35, 8, v34
        v_lshl_add_u32 {v(vOB)}, {v(vI)}, 4, v34''')
        a(f'v_mov_b32 v36, 0x{BIG:x}'); a('v_mov_b32 v37, 0xffff'); a('v_mov_b32 v38, 0xffff0000')
        for r in range(4):
            a(f'''v_lshl_add_u32 v34, {v(vG)}, 2, {r}
            v_cmp_le_u32 {sMK[r]}, v34, {v(vI)}
            v_sub_u32 v35, {v(vI)}, v34
            v_and_b32 v35, 8, v35
            v_cmp_eq_u32 vcc, 0, v35
            v_cndmask_b32 v{40+r}, 0, v{37+(r&1)}, {sMK[r]}
            v_cndmask_b32 {v(vM+r)}, v36, 0, vcc''')
        a(f'v_or_b32 {v(vPM)}, v40, v41'); a(f'v_or_b32 {v(vPM+1)}, v42, v43')
        a(f'''v_and_b32 v34, 0x33, v0
        v_mov_b32 v35, 0x3f80
        v_mov_b32 v36, 0x3f800000
        v_cmp_eq_u32 vcc, 16, v34
        v_cndmask_b32 {v(vSEL)}, 0, v35, vcc
        v_cmp_eq_u32 vcc, 17, v34
        v_cndmask_b32 {v(vSEL)}, {v(vSEL)}, v36, vcc
        v_cmp_eq_u32 vcc, 18, v34
        v_cndmask_b32 {v(vSEL+1)}, 0, v35, vcc''')

    def xread(self, ks, t, d):
        if t == 0: return f'ds_read_b128 {v(d,4)}, {v(vHo if ks & 1 else vHe)} offset:{HP*(ks>>1)}'
        return f'ds_read_b128 {v(d,4)}, {v(vXo if ks & 1 else vXe)} offset:{18432*(t-1) + 1024*(ks>>1)}'
    def mm(self, ks, t, n, x):
        d = ACC + 20 * n + 4 * t; w = v(Wf(ks, n), 4); x = v(x, 4)
        A, B = (x, w) if n == 2 else (w, x)
        return f'v_mfma_f32_16x16x32_bf16 {v(d,4)}, {A}, {B}, {v(d,4) if ks else 0}'
    def weave(self, mms, fill):
        n = len(mms)
        for k, m in enumerate(mms):
            self.a(m)
            if fill and (k % 2 or len(fill) > (n - k) // 2): self.run(fill.pop(0))
        while fill: self.run(fill.pop(0))
    def wd_units(self):
        U = [[f'v_bfe_u32 {v(vA)}, v0, 2, 2', f'v_lshlrev_b32 {v(vA)}, 7, {v(vA)}'], [f'v_and_b32 {v(vB)}, 3, v0', f'v_lshl_add_u32 {v(vA)}, {v(vB)}, 3, {v(vA)}'],
             [f'v_mul_u32_u24 {v(vB)}, 9216, {v(vG)}', f'v_add_u32 {v(vA)}, {v(vA)}, {v(vB)}', f's_mul_i32 {t0}, {sW}, 9']]
        for n in range(9):
            U.append([f's_add_u32 s1, {t0}, {n}', f's_lshr_b32 {t4}, s1, 2', f's_mul_i32 {t4}, {t4}, 28', f's_add_u32 s1, s1, {t4}', f's_lshl_b32 s1, s1, 5',
                      f's_add_u32 s1, s1, {UP}', f'v_add_u32 {v(vB)}, s1, {v(vA)}'] +
                     [f'ds_read_b64_tr_b16 {v(WDF+4*n+2*jh,2)}, {v(vB)} offset:{512*jh}' for jh in range(2)])
        return U
    def gemm0(self):
        a = self.a; o = self.o; D = o['depth']
        def wload(ks):
            r = [[f's_add_u32 {t3}, {sWB}, {3456*ks}', f'buffer_load_dwordx4 {v(Wf(ks,0),4)}, {v(vL16)}, {sWS}, {t3} offen sc1']]
            for n in (1, 2): r.append([f'buffer_load_dwordx4 {v(Wf(ks,n),4)}, {v(vL16)}, {sWS}, {t3} offen offset:{1024*n} sc1'])
            r.append([f'buffer_load_dwordx4 {v(Wf(ks,3),4)}, {v(vF)}, {sWS}, {t3} offen offset:3072 sc1'])
            return r
        xb = lambda ks, t: XFB + 20 * (ks & 1) + 4 * t
        extra = {ks: [] for ks in range(18)}; hook = {}
        for ks in range(D):
            for x in wload(ks): self.run(x)
        for t in range(5): a(self.xread(0, t, xb(0, t)))
        a(f'''s_getreg_b32 {t0}, hwreg(HW_REG_XCC_ID, 0, 4)
        s_or_b32 {t0}, {t0}, {sNON}
        v_mov_b32 v45, {sNON}
        v_mov_b32 v46, {t0}
        v_cmp_gt_u32 vcc, 32, v0
        s_lshl_b32 {t1}, {sXCD}, 5
        s_add_u32 {t1}, {t1}, {sLI}
        s_lshl_b32 {t1}, {t1}, 7
        s_add_u32 {t1}, {t1}, {XF}
        v_cndmask_b32 v46, v45, v46, vcc''')
        def xf(): self.exec(1); a(f'buffer_store_dword v46, {v(vL16)}, {sWS}, {t1} offen sc1'); self.exec(-1)
        self.w(1, xf)
        for k in range(4): a(f'v_mov_b32 v{40+k}, -1')
        a(f's_cmp_lt_u32 {sLI}, 18'); a(f's_cselect_b32 s{sb(sSV)}, -1, 0'); a(f's_cselect_b32 s{sb(sSV)+1}, -1, 0xffffff00')
        for l in range(2): extra[2 + 2*l].append([f's_mov_b64 exec, {sSV}', f'buffer_store_dwordx4 v[40:43], {v(vL16)}, {sWL[l]}, {sGB} offen sc1', 's_mov_b64 exec, -1'])
        if o['up'] != 'x':
            hook[2] = lambda: a('s_barrier')
            for k, u in enumerate(self.wd_units()): extra[2 + k * 3 // 4].append(u)
        fl = lambda: a(f'buffer_load_dword v45, {v(vE)}, {sWS}, 0 offen sc1')
        extra[o['kf']].append(fl)
        def chk():
            Lr, Lk = self.L('R'), self.L('C')
            a('v_cmp_ne_u32 vcc, v45, v46'); a(f's_cbranch_vccnz {Lr}'); a.label(Lk)
            def cold():
                a.label(Lr); a.wall()
                self.poll(fl, lambda: (a('v_xor_b32 v47, v45, v46'), a('v_cmp_lt_u32 vcc, 15, v47')))
                a('v_cmp_ne_u32 vcc, 0, v47'); a(f's_cbranch_vccz {Lk}'); a(f's_mov_b32 {sSLOW}, 1'); a(f's_branch {Lk}')
            self.colds.append(cold)
        hook[o['kf'] + D] = chk
        kt = 18 - D
        if o['wopf']:
            assert o['wopf'] >= o['kf'] + D
            extra[o['wopf'] - 1].append([f'v_min_u32 v48, 41, v0', f'v_lshlrev_b32 v48, 7, v48'])
            def wp():
                a(f'''s_and_b32 s1, {sT}, 3
                s_lshl_b32 {t4}, {sCG}, 2
                s_add_u32 s1, s1, {t4}
                s_mul_i32 s1, s1, 20736
                s_mul_i32 {t4}, {sW}, 5120
                s_add_u32 s1, s1, {t4}
                s_add_u32 s1, s1, {WOP}''')
                a.untracked(f'buffer_load_dword {v(vDUM)}, v48, {sWS}, s1 offen sc1')
            extra[o['wopf']].append(wp)
        extra[kt] += self.pfetch('g', 50)
        for q, u in enumerate(self.gu_at('g')): extra[kt + q * D // 18].append(u)
        for ks in range(18):
            if ks in hook: hook[ks]()
            fill = []
            if ks + 1 < 18: fill += [[self.xread(ks + 1, t, xb(ks + 1, t))] for t in range(5)]
            if ks + D < 18: fill += wload(ks + D)
            fill += extra[ks]
            if ks == 17: fill += [[x] for x in self.pre_attn()]
            self.weave([self.mm(ks, t, n, xb(ks, t)) for t in range(5) for n in range(4)], fill)
        self.stamp('gemm0')
    HB = staticmethod(lambda ks: XFB + 16 + 4 * (ks % 6))
    def phase2(self, extra):
        pa = [[x] for x in self.pre_attn()]; k0 = 18 - (len(pa) + 1) // 2
        assert len(extra) <= 3 * k0
        for ks in range(18):
            fill = [[self.xread(ks + 5, 0, self.HB(ks + 5))]] if ks + 5 < 18 else []
            src, n = (extra, 3) if ks < k0 else (pa, 2)
            fill += src[:n]; del src[:n]
            self.weave([self.mm(ks, 0, n, self.HB(ks)) for n in range(4)], fill)
    def gemm1(self):
        a = self.a; o = self.o; sx = self.sx
        xb = lambda ks, t: XFB + 16 * (1 - (ks & 1)) + 4 * (t - 1)
        extra = {ks: [] for ks in range(18)}
        U = self.pfetch('x', 64)
        for u in self.gu_at('x'): U.append(lambda u=u: setattr(self, 'tk_gu', self.run(u)))
        fa = self.ffn_addr(); U += [fa[k:k+2] for k in range(0, len(fa), 2)]
        ks = 0
        while U: extra[ks] += U[:o['gux']]; del U[:o['gux']]; ks += 1
        assert ks <= o['h3'], ks
        hook = self.hooks()
        for t in range(1, 5): a(self.xread(0, t, xb(0, t)))
        for ks in range(18):
            if ks in hook: hook[ks]()
            fill = [[self.xread(ks + 1, t, xb(ks + 1, t))] for t in range(1, 5)] if ks < 17 else [[self.xread(k, 0, self.HB(k))] for k in range(5)]
            self.weave([self.mm(ks, t, n, xb(ks, t)) for t in range(1, 5) for n in range(4)], fill + extra[ks])
        if 18 in hook: hook[18]()
        self.stamp('ph1')
        a(f's_cmp_lg_u32 {sOWN}, 0'); a(f's_cbranch_scc1 L_patch{sx}')
        self.phase2([])
        a.label(f'L_patched{sx}')
        self.colds.insert(0, self.patch)
        self.stamp('gemm1')
    def pre_attn(self):
        r = [f'v_lshlrev_b32 {v(vA)}, 2, {v(vI)}', f'v_add_u32 {v(vA)}, {NM}, {v(vA)}',
             f'v_lshlrev_b32 {v(vB)}, 4, {v(vG)}', f'v_add_u32 {v(vB)}, {NM}, {v(vB)}']
        r += [f'ds_read_b128 {v(RES,4)}, {v(vRA)}', f'ds_read_b128 {v(RES+4,4)}, {v(vRA+1)}', f'ds_read_b64 {v(RES+8,2)}, {v(vRA+2)}']
        r += [f'ds_read2_b32 {v(PAIR+2*t,2)}, {v(vA)} offset0:{16*t} offset1:{80+16*t}' for t in range(5)]
        return r + self.vform(0) + self.vform(1)
    def vform(self, t):
        d = XFB + 8 * (t & 1)
        return [f'ds_read_b128 {v(d,4)}, {v(vB)} offset:{64*t}', f'ds_read_b128 {v(d+4,4)}, {v(vB)} offset:{320+64*t}']

    def attn(self, lay):
        a0 = self.a; o = self.o; W = sWL[lay]
        a0.barrier()
        self.stamp(f'abar{lay}')
        a0(f's_mul_i32 {t0}, {sW}, 20480'); a0(f's_mul_i32 {t1}, {sCG}, 82944'); a0(f's_add_u32 {t1}, {t1}, {t0}')
        wo = []
        for q in range(21):
            x = []
            if q % 4 == 0: x += [f's_add_u32 m0, {t0}, {1024*q}', f's_add_u32 {t2}, {t1}, {WOP + 1024*q}']
            x.append(f'buffer_load_dwordx4 {v(vL16)}, {sWS}, {t2} offen offset:{1024*(q%4)} sc1 lds')
            wo.append(x)
        dma = list(wo); post = []
        if lay == 0: dma += self.gu_at('a'); post += self.gu_at('o')
        cnt = [0]; self.tk_wo = None
        def drain(l):
            x = l.pop(0)
            for y in x: tk = a0(y)
            if x is wo[-1]: self.tk_wo = tk
        def a(t):
            for l in t.strip().split('\n'):
                a0(l.strip()); cnt[0] += 1
                if cnt[0] % o['wostep'] == 0 and dma: drain(dma)
        csQ, csK, csR, csV = CS, CS + 4, CS + 8, CS + 12
        for t in range(5): a(f'v_mul_f32 {v(RSK+t)}, {f32(18**-0.5 * LOG2E)}, {v(PAIR+2*t+1)}')
        a(f'v_mov_b32 {v(csV)}, {v(Vb)}\nv_mov_b32 {v(csV+1)}, {v(Vb)}')
        for cs, b in ((csR, Rb), (csK, Kb), (csQ, Qb)):
            for r in range(4): a(f'v_mov_b32_dpp {v(cs+r)}, {v(b+r)} row_newbcast:0 row_mask:0xf bank_mask:0xf')
        a(f'v_permlane32_swap_b32 {v(csV)}, {v(csV+1)}')
        SC = XFB + 20
        def fold(t):
            P = v(PAIR + 2 * t, 2); kp = v(RSK + (t & ~1), 2); ks_ = f'op_sel:[0,{t&1}] op_sel_hi:[1,{t&1}]'
            q, k, vv, r = Qb + 4*t, Kb + 4*t, Vb + 4*t, Rb + 4*t
            for b, cs in ((r, csR), (k, csK)) + (((q, csQ),) if t else ()):
                for h in (0, 2): a(f'v_pk_fma_f32 {v(b+h,2)}, {v(cs+h,2)}, {P}, {v(b+h,2)} op_sel_hi:[1,0,1]')
            a(f'v_pk_mul_f32 {v(r,2)}, {v(r,2)}, {P} op_sel:[0,1] op_sel_hi:[1,1]')
            a(f'v_pk_mul_f32 {v(r+2,2)}, {v(r+2,2)}, {kp} {ks_}')
            for h in (0, 2): a(f'v_pk_mul_f32 {v(k+h,2)}, {v(k+h,2)}, {kp} {ks_}')
            nm = XFB + 8 * (t & 1)
            if t:
                for h in (0, 2): a(f'v_pk_mul_f32 {v(q+h,2)}, {v(q+h,2)}, {P} op_sel:[0,1] op_sel_hi:[1,1]')
            for h in (0, 2): a(f'v_pk_fma_f32 {v(vv+h,2)}, {v(nm+h,2)}, {v(csV,2)}, {v(vv+h,2)} op_sel_hi:[1,0,1]')
            for h in (0, 2): a(f'v_pk_mul_f32 {v(vv+h,2)}, {v(vv+h,2)}, {v(nm+4+h,2)}')
            if t: a(f'v_cvt_pk_bf16_f32 {v(q)}, {v(q)}, {v(q+1)}\nv_cvt_pk_bf16_f32 {v(q+1)}, {v(q+2)}, {v(q+3)}')
            a(f'v_cvt_pk_bf16_f32 {v(q+2)}, {v(r)}, {v(r+1)}\nv_mov_b32 {v(q+3)}, 0x3f80')
            a(f'v_cvt_pk_bf16_f32 {v(k)}, {v(k)}, {v(k+1)}\nv_cvt_pk_bf16_f32 {v(k+1)}, {v(k+2)}, {v(k+3)}')
            if t: a(f'v_mfma_f32_16x16x32_bf16 {v(q-4,4)}, {v(k-4,4)}, {v(q,4)}, {v(vM,4)}')
            a(f'v_cvt_pk_bf16_f32 {v(k+2)}, {v(r+2)}, {v(r+3)}\nv_mov_b32 {v(k+3)}, 0')
            a(f'v_mfma_f32_16x16x16_bf16 {v(r,4)}, {v(q+2,2)}, {v(vSEL,2)}, 0')
            a(f'v_cvt_pk_bf16_f32 {v(Vb+2*t)}, {v(vv)}, {v(vv+1)}\nv_cvt_pk_bf16_f32 {v(Vb+2*t+1)}, {v(vv+2)}, {v(vv+3)}')
            if t: a(f'v_mfma_f32_16x16x32_bf16 {v(SC+4*(t-1),4)}, {v(k,4)}, {v(q,4)}, {v(vM,4)}')
            if t + 2 < 5:
                for x in self.vform(t + 2): a(x)
        for t in range(5): fold(t)
        self.stamp(f'fold{lay}')
        MX = XFB + 16
        for h in (0, 2): a(f'v_pk_add_f32 {v(Qb+h,2)}, {v(Qb+h,2)}, {sBIAS}')
        for t in range(4):
            sc_ = SC + 4*t
            for r in range(4): a(f'v_cndmask_b32 {v(sc_+r)}, {v(Qb+4*t+r)}, {v(sc_+r)}, {sMK[r]}')
            a(f'v_max3_f32 {v(MX+t)}, {v(sc_)}, {v(sc_+1)}, {v(sc_+2)}\nv_max_f32 {v(MX+t)}, {v(MX+t)}, {v(sc_+3)}')
        vr = []
        for t in range(5):
            r = Rb + 4*t
            vr += [f'v_cvt_pk_bf16_f32 {v(Rb+2*t)}, {v(r)}, {v(r+1)}', f'v_cvt_pk_bf16_f32 {v(Rb+2*t+1)}, {v(r+2)}, {v(r+3)}']
        a(f'''v_permlane32_swap_b32 {v(MX)}, {v(MX+1)}
        {vr[0]}
        v_permlane32_swap_b32 {v(MX+2)}, {v(MX+3)}
        v_max_f32 {v(MX)}, {v(MX)}, {v(MX+1)}
        v_max_f32 {v(MX+2)}, {v(MX+2)}, {v(MX+3)}
        {vr[1]}
        {vr[2]}
        v_permlane16_swap_b32 {v(MX)}, {v(MX+2)}
        v_max_f32 {v(MX)}, {v(MX)}, {v(MX+2)}
        v_mov_b32 {v(MX+2)}, {v(MX)}
        {vr[3]}
        {vr[4]}
        v_permlane16_swap_b32 {v(MX)}, {v(MX+2)}
        v_mov_b32 {v(MX+1)}, {v(MX)}
        v_mov_b32 {v(MX+3)}, {v(MX+2)}
        {vr[5]}
        v_permlane32_swap_b32 {v(MX)}, {v(MX+1)}
        v_permlane32_swap_b32 {v(MX+2)}, {v(MX+3)}''')
        for x in vr[6:]: a(x)
        for t in range(4):
            sc_ = SC + 4*t
            for h in (0, 2): a(f'v_pk_add_f32 {v(sc_+h,2)}, {v(sc_+h,2)}, {v(MX+(t&~1),2)} op_sel:[0,{t&1}] op_sel_hi:[1,{t&1}] neg_lo:[0,1] neg_hi:[0,1]')
        def pv(t, k):
            p = Kb + 4*t
            return f'v_mfma_f32_16x16x32_bf16 {v((SC if k else XFB)+4*t,4)}, {v((Vb if k else Rb)+2*t,4)}, {v(p,4)}, 0'
        for t in range(4):
            sc_ = SC + 4*t; p = Kb + 4*t
            for r in range(4):
                a(f'v_exp_f32 {v(sc_+r)}, {v(sc_+r)}')
                if t and r in (1, 2): a(pv(t - 1, r - 1))
            a(f'v_cvt_pk_bf16_f32 {v(p+2)}, {v(sc_)}, {v(sc_+1)}\nv_cvt_pk_bf16_f32 {v(p+3)}, {v(sc_+2)}, {v(sc_+3)}')
            for h in range(2): a(f'v_bfi_b32 {v(p+h)}, {v(vPM+h)}, 0, {v(p+2+h)}')
            for h in range(2): a(f'v_and_b32 {v(p+2+h)}, {v(vPM+h)}, {v(p+2+h)}')
        OP = Qb
        a(f'v_rcp_f32 {v(XFB+2)}, {v(XFB+2)}\nv_rcp_f32 {v(XFB+6)}, {v(XFB+6)}')
        a(pv(3, 0)); a(f'v_rcp_f32 {v(XFB+10)}, {v(XFB+10)}'); a(pv(3, 1))
        a(f'v_lshlrev_b32 {v(vA)}, 2, v0\ns_add_u32 {t3}, {sOBs}, 32768')
        for t in range(4):
            d = SC + 4*t; e = XFB + 4*t
            if t == 2: a(f'v_rcp_f32 {v(XFB+14)}, {v(XFB+14)}')
            for b in (d, d + 2, e): a(f'v_pk_mul_f32 {v(b,2)}, {v(b,2)}, {v(e+2,2)} op_sel_hi:[1,0]')
            a(f'v_cvt_pk_bf16_f32 {v(OP+2*t)}, {v(d)}, {v(d+1)}\nv_cvt_pk_bf16_f32 {v(OP+2*t+1)}, {v(d+2)}, {v(d+3)}')
            a(f'v_cvt_pk_bf16_f32 {v(OP+8+t)}, {v(e)}, {v(e+1)}')
            if t == 2:
                while dma: drain(dma)
                for h in range(2): a(f'v_permlane16_swap_b32 {v(OP+h)}, {v(OP+2+h)}')
                a(f'buffer_store_dwordx4 {v(OP,4)}, {v(vOB)}, {W}, {sOBs} offen{self.sp}')
        a = a0
        for t in (1, 2): a(f'v_mov_b32_dpp {v(OP+8)}, {v(OP+8+t)} quad_perm:[0,1,2,3] row_mask:{1<<t} bank_mask:0xf')
        for h in range(2): a(f'v_permlane16_swap_b32 {v(OP+4+h)}, {v(OP+6+h)}')
        a(f'v_mov_b32_dpp {v(OP+8)}, {v(OP+11)} quad_perm:[0,1,2,3] row_mask:8 bank_mask:0xf')
        a(f'buffer_store_dwordx4 {v(OP+4,4)}, {v(vOB)}, {W}, {t3} offen{self.sp}')
        self.tk_o = a(f'buffer_store_dword {v(OP+8)}, {v(vA)}, {W}, {sORs} offen{self.sp}')
        self.stamp(f'attn{lay}')
        while post: drain(post)

    def p2(self, lay):
        a = self.a; o = self.o; W = sWL[lay]; sp = self.sp
        AD = ACC + 72
        NS = o['ring'][lay] if lay or o['up'] == 'x' else 10
        slot = lambda k: (XFB + 4 * (k % NS)) if k % NS < 10 else ((224 if lay else WDF) + 4 * (k % NS - 10))
        if lay:
            a(f's_lshl_b32 {t0}, {sW}, 6'); a(f's_add_u32 {t0}, {t0}, {NM + 640 + 64}'); a(f'v_lshl_add_u32 {v(vA)}, {v(vI)}, 2, {t0}')
            a(f'ds_read2_b32 {v(AD+4,2)}, {v(vA)} offset0:0 offset1:80')
        a(f'''v_lshlrev_b32 {v(vE)}, 10, {v(vG)}
        v_lshl_add_u32 {v(AD+6)}, {v(vI)}, 2, {v(vE)}
        s_lshl_b32 {t0}, {sW}, 14
        s_add_u32 {t0}, {t0}, {sTB}
        s_lshl_b32 {t2}, {sW}, 6
        s_add_u32 {t2}, {t2}, {sTB}
        s_add_u32 {t2}, {t2}, {oOR}
        s_add_u32 {t3}, {t2}, 4096
        v_add_u32 {v(AD)}, {9*4608}, {v(vL16)}
        v_and_b32 {v(AD+1)}, 7, v0
        v_lshlrev_b32 {v(AD+1)}, 4, {v(AD+1)}
        v_lshl_add_u32 {v(AD+1)}, {v(vG)}, 7, {v(AD+1)}
        v_add_u32 {v(AD+2)}, {9*4608}, {v(AD+1)}''')
        def init():
            for k in range(10):
                a(f'v_lshlrev_b32 {v(ACC2+2*k)}, 16, {v(RES+k)}'); a(f'v_and_b32 {v(ACC2+2*k+1)}, 0xffff0000, {v(RES+k)}')
                if lay: a(f'v_pk_fma_f32 {v(ACC2+2*k,2)}, {v(ACC2+2*k,2)}, {v(AD+4,2)}, {v(AD+4,2)} op_sel:[0,0,1] op_sel_hi:[1,0,1]')
        init()
        order = [16, 17] + list(range(16))
        def wread(k):
            ks, n = order[k // 5], k % 5; hi = ks >= 9
            ad = (AD + 2 if hi else AD + 1) if n == 4 else (AD if hi else vL16)
            return f'ds_read_b128 {v(slot(k), 4)}, {v(ad)} offset:{4608*(ks - 9*hi) + 1024*n}'
        def oload(ks):
            if ks % 4 == 0: a(f's_add_u32 {t1}, {t0}, {1024*ks}')
            a(f'buffer_load_dwordx4 {v(ACC+4*ks,4)}, {v(vL16)}, {W}, {t1} offen offset:{1024*(ks%4)} sc1')
        N0 = o['p2n']
        def first():
            for ks in range(2):
                for jj in range(4): a(f'buffer_load_dword {v(ACC+64+4*ks+jj)}, {v(AD+6)}, {W}, {t3 if ks else t2} offen offset:{256*jj} sc1')
            for ks in range(N0): oload(ks)
        Lp, Lr, Lq = [self.L() for _ in range(3)]
        if sp: a.wait(self.tk_o)
        first()
        a.wait(self.tk_wo); a.barrier()
        self.stamp(f'oack{lay}')
        for k in range(NS - 1): a(wread(k))
        a.label(Lp)
        for x in self.maxu(AD + 3, range(ACC + 64, ACC + 72)): a(x)
        a(f'v_cmp_eq_u32 vcc, -1, {v(AD+3)}'); a(f's_cbranch_vccnz {Lq}')
        self.stamp(f'ogate{lay}')
        U = [[f's_mul_i32 {t4}, {sCG}, 144', f's_add_u32 {t4}, {t4}, {WRL}', f'v_lshl_add_u32 {v(vA)}, {v(vG)}, 4, {t4}'],
             [f'v_and_b32 {v(vB)}, 1, {v(vG)}', f'v_lshl_add_u32 {v(vB)}, {v(vB)}, 3, {t4}'],
             [f'ds_read_b128 {v(WRP,4)}, {v(vA)}'], [f'ds_read_b128 {v(WRP+4,4)}, {v(vA)} offset:64'], [f'ds_read_b64 {v(WRP+8,2)}, {v(vB)} offset:128'],
             [f'v_lshlrev_b32 {v(vE)}, 10, {v(vG)}', f'v_lshl_add_u32 {v(vE)}, {v(vI)}, 4, {v(vE)}']]
        if lay == 0:
            x = f'''v_lshrrev_b32 {v(vA)}, 3, {v(vI)}
            v_mul_u32_u24 {v(vA)}, 9216, {v(vA)}
            v_add_u32 {v(vXe)}, {v(vA)}, {v(AD+1)}
            v_add_u32 {v(vXo)}, 512, {v(vXe)}
            v_cmp_gt_u32 vcc, 8, {v(vI)}
            v_mov_b32 {v(vA)}, {LH + 1024}
            v_add_u32 {v(vHe)}, {LH - 9216}, {v(vXe)}
            v_add_u32 {v(vHo)}, {LH - 9216}, {v(vXo)}
            v_cndmask_b32 {v(vHe)}, {v(vHe)}, {v(vA)}, vcc
            v_cndmask_b32 {v(vHo)}, {v(vHo)}, {v(vA)}, vcc
            s_lshl_b32 {t4}, {sW}, 4
            s_add_u32 {t4}, {t4}, {sCG}
            s_mul_i32 {t4}, {t4}, 1152
            v_add_u32 {v(vRA)}, {t4}, {v(vXe)}
            v_add_u32 {v(vRA+1)}, 512, {v(vRA)}
            v_lshlrev_b32 {v(vA)}, 7, {v(vG)}
            v_sub_u32 {v(vA)}, {v(vRA)}, {v(vA)}
            v_and_b32 {v(vB)}, 1, {v(vG)}
            v_lshl_add_u32 {v(vA)}, {v(vB)}, 3, {v(vA)}
            v_add_u32 {v(vRA+2)}, 1024, {v(vA)}'''
        else: x = f'v_mul_u32_u24 {v(vXe)}, 2304, {v(vI)}\nv_lshl_add_u32 {v(vXe)}, {v(vG)}, 4, {v(vXe)}'
        U += [[l.strip()] for l in x.split('\n')]
        V = (self.pfetch('p', vA) + self.gu_at('p')) if lay == 0 else []
        for k in range(90):
            kk, n = divmod(k, 5); ks = order[kk]
            if k + NS - 1 < 90: a(wread(k + NS - 1))
            a(f'v_mfma_f32_16x16x32_bf16 {v(ACC2+4*n,4)}, {v(slot(k),4)}, {v(ACC+4*ks,4)}, {v(ACC2+4*n,4)}')
            if n == 0 and kk + N0 < 16: oload(kk + N0)
            elif ks < 16 and n in (2, 3): a(f'v_max3_u32 {v(AD+3)}, {v(AD+3)}, {v(ACC+4*ks+2*n-4)}, {v(ACC+4*ks+2*n-3)}')
            elif U: self.run(U.pop(0))
            elif V and kk + N0 >= 16: self.run(V.pop(0))
        assert not U
        for u in V: self.run(u)
        a(f'v_cmp_eq_u32 vcc, -1, {v(AD+3)}'); a(f's_cbranch_vccnz {Lr}')
        def cold():
            a.label(Lr); init()
            for k in range(NS - 1): a(wread(k))
            a.label(Lq); self.tick(); a.wall(); first(); a.wall(); a(f's_branch {Lp}')
        self.colds.append(cold)
        self.stamp(f'p2{lay}')
        XP = ACC; S = ACC + 12
        a(f's_mov_b32 {t0}, {ONES}')
        if lay == 0: a(f's_add_u32 {t1}, {sTB}, {oX1}')
        def dot(k, first=False):
            for j, x in enumerate((t0, v(XP+k), v(WRP+k))): a(f'v_dot2_f32_bf16 {v(S+j)}, {v(XP+k)}, {x}, {0 if first else v(S+j)}')
        for k in range(10):
            a(f'v_cvt_pk_bf16_f32 {v(XP+k)}, {v(ACC2+2*k)}, {v(ACC2+2*k+1)}')
            if lay == 0 and k in (3, 7): a(f'buffer_store_dwordx4 {v(XP+k-3,4)}, {v(vRA)}, {sWS}, {t1} offen offset:{128*(k-3)}{sp}')
        dot(0, True); a('s_mov_b32 exec_hi, 0'); dot(8); dot(9); self.exec(-1)
        if lay == 0:
            for h in range(2): a(f'v_permlane16_swap_b32 {v(XP+8+h)}, {v(XP+10+h)}')
            self.exec(0xffff); tk = a(f'buffer_store_dwordx4 {v(XP+8,4)}, {v(vRA)}, {sWS}, {t1} offen offset:1024{sp}'); self.exec(-1)
        for k in range(1, 8): dot(k)
        a(f'v_mov_b32 {v(S+3)}, {sNON}')
        self.xsum([S, S+1, S+2], S + 4, full=False)
        if lay == 0: a.wait(tk)
        self.exec(0xffff); self.tk_st = a(f'buffer_store_dwordx4 {v(S,4)}, {v(vL16)}, {W}, {sSTs} offen{sp}'); self.exec(-1)
        self.stamp(f'st{lay}')

    def x1piece(self, q):
        a = self.a; off = 9216 * (q & 1) + 1024 * (q >> 1)
        a(f's_add_u32 m0, {sM}, {off}'); a(f's_add_u32 s1, {sKEY}, {off}')
        return a(f'buffer_load_dwordx4 {v(vL16)}, {sWS}, s1 offen sc1 lds')
    def gstat(self, S, n):
        a = self.a
        for k in range(n): a(f'v_add_f32 {v(S+k)}, {v(S+k)}, {v(S+4+k)}')
        self.xsum(list(range(S, S + n)), S + 4)
        a(f'''v_mul_f32 {v(S)}, {f32(-1/576)}, {v(S)}
        v_mul_f32 {v(S+1)}, {f32(1/576)}, {v(S+1)}
        v_fma_f32 {v(S+1)}, -{v(S)}, {v(S)}, {v(S+1)}
        v_max_f32 {v(S+1)}, 0, {v(S+1)}
        v_add_f32 {v(S+4)}, {f32(1e-5)}, {v(S+1)}
        v_rsq_f32 {v(S+3)}, {v(S+4)}''')
    def lnc(self, S):
        a = self.a
        a(f'''v_add_f32 {v(S+5)}, 1.0, {v(S+3)}
        v_mul_f32 {v(S+6)}, {v(S+5)}, {v(S+5)}
        v_mul_f32 {v(S+6)}, {v(S+6)}, {v(S+1)}
        v_add_f32 {v(S+6)}, {f32(1e-5)}, {v(S+6)}
        v_rsq_f32 {v(S+6)}, {v(S+6)}
        v_mul_f32 {v(S+6)}, {v(S+6)}, {v(S+5)}''')

    def router(self, lay):
        a = self.a; o = self.o; W = sWL[lay]
        S = ACC + 20; K = S + 8; ZP = ACC; ZT = ACC + 40; H = ACC + 60
        a(f'''s_lshl_b32 {t1}, {sW}, 8
        s_add_u32 {t1}, {t1}, {sTB}
        s_add_u32 {t1}, {t1}, {oST}
        s_add_u32 {t2}, {t1}, 4096''')
        def main():
            a(f'buffer_load_dwordx4 {v(S,4)}, {v(vE)}, {W}, {t1} offen sc1'); a(f'buffer_load_dwordx4 {v(S+4,4)}, {v(vE)}, {W}, {t2} offen sc1')
        def check():
            a(f'v_cmp_ne_u32 {sSV}, {sNON}, {v(S+3)}'); a(f'v_cmp_ne_u32 vcc, {sNON}, {v(S+7)}'); a(f's_or_b64 vcc, vcc, {sSV}')
        if lay == 0:
            a.barrier(); self.ones()
            a(f's_mul_i32 {sM}, {sW}, 18432'); a(f's_add_u32 {sKEY}, {sTB}, {oX1}'); a(f's_add_u32 {sKEY}, {sKEY}, {sM}')
            idle = self.wd_units() if o['up'] == 'x' else []
        else:
            idle = [[f'ds_read_b64_tr_b16 {v(256+4*ks+2*jh,2)}, {v(vC)} offset:{1024*(2*ks+jh)}' for jh in range(2)] for ks in range(18)]
        h = len(idle) // 3
        for u in idle[:h]: self.run(u)
        a.wait(self.tk_st)
        main()
        for u in idle[h:]: self.run(u)
        a(f'''v_lshlrev_b32 {v(vA)}, 4, {v(vG)}
        v_mov_b32 {v(K+3)}, {sNON}
        s_lshl_b32 {t0}, {sW}, 4
        v_or_b32 {v(K+5)}, {t0}, {v(vI)}
        s_add_u32 {t0}, {t0}, {CB}
        v_mov_b32 {v(vB)}, {t0}
        v_and_b32 {v(H+5)}, 3, v0
        v_lshlrev_b32 {v(H+5)}, 4, {v(H+5)}
        v_add_u32 {v(H+5)}, {CB}, {v(H+5)}
        v_lshrrev_b32 {v(H+6)}, 2, v0
        v_lshlrev_b32 {v(H+6)}, 13, {v(H+6)}
        s_lshl_b32 {t0}, {sT}, 8
        s_add_u32 {t0}, {t0}, {CAND}
        s_mov_b32 {t4}, -64''')
        self.verify(main, check)
        self.stamp(f'gath{lay}')
        if lay == 0:
            for q in range(4): tka = self.x1piece(q)
            def hx():
                a(f's_add_u32 {t1}, {sTB}, {oHX - 7*9216}')
                self.exec(0xff00ff00ff00ff00)
                for k in range(2): a(f'buffer_store_dwordx4 {v(ACC+4*k,4)}, {v(vRA)}, {sWS}, {t1} offen offset:{512*k} sc1')
                self.exec(0xff00); a(f'buffer_store_dwordx4 {v(ACC+8,4)}, {v(vRA)}, {sWS}, {t1} offen offset:1024 sc1'); self.exec(-1)
            self.w(3, hx)
        self.gstat(S, 3)
        a(f'''v_fma_f32 {v(K)}, {v(S)}, {sSW}, {v(S+2)}
        v_mul_f32 {v(K)}, {v(K)}, {v(S+3)}
        v_ashrrev_i32 {v(K+4)}, 31, {v(K)}
        v_lshrrev_b32 {v(K+4)}, 1, {v(K+4)}
        v_xor_b32 {v(K)}, {v(K)}, {v(K+4)}
        v_and_or_b32 {v(K)}, {v(K)}, {t4}, {v(K+5)}''')
        zz = [f'v_mov_b32 {v(K+6)}, {v(S+3)}', f'v_mul_f32 {v(K+7)}, {v(S)}, {v(S+3)}', f'v_mul_f32 {v(K+2)}, {v(S+4)}, {v(S+3)}', f'v_sub_f32 {v(K+1)}, 0, {v(S)}']
        for k in (8, 9, 0, 1, 2, 3, 4, 5, 6, 7):
            zz.append(f'v_pk_fma_f32 {v(ZT+2*k,2)}, {v(ACC2+2*k,2)}, {v(K+6,2)}, {v(K+6,2)} op_sel:[0,0,1] op_sel_hi:[1,0,1]')
        for j, m in enumerate(('row_ror:8', 'row_ror:4', 'row_ror:2', 'row_ror:1')):
            x = K + 4 if j else K
            a(zz.pop(0)); a(zz.pop(0)); a(f'v_max_i32_dpp {v(K+4)}, {v(x)}, {v(x)} {m} row_mask:0xf bank_mask:0xf')
        a(f'v_cmp_eq_u32 {sCM}, {v(K)}, {v(K+4)}')
        a(zz.pop(0)); a(zz.pop(0))
        a(f's_and_b64 exec, {sCM}, 0xffff'); a(f'ds_write_b128 {v(vB)}, {v(K,4)}'); self.exec(-1)
        for x in zz: a(x)
        def cs():
            a.barrier()
            def f():
                a(f'ds_read_b128 {v(H,4)}, {v(H+5)}')
                a(f'v_max_i32_dpp {v(H+4)}, {v(H)}, {v(H)} quad_perm:[1,0,3,2] row_mask:0xf bank_mask:0xf')
                a(f'v_max_i32_dpp {v(H+4)}, {v(H+4)}, {v(H+4)} quad_perm:[2,3,0,1] row_mask:0xf bank_mask:0xf')
                a(f'v_cmp_eq_u32 vcc, {v(H)}, {v(H+4)}'); a('s_mov_b32 exec_hi, 0'); a('s_mov_b32 exec_lo, vcc_lo')
                a(f'buffer_store_dwordx4 {v(H,4)}, {v(H+6)}, {W}, {t0} offen sc1'); self.exec(-1)
            self.w(0, f)
        self.only(f's_cmp_eq_u32 {sCG}, 0', cs)
        for k in (8, 9, 0, 1, 2, 3, 4, 5, 6, 7): a(f'v_cvt_pk_bf16_f32 {v(ZP+k)}, {v(ZT+2*k)}, {v(ZT+2*k+1)}')
        for h in range(2): a(f'v_permlane16_swap_b32 {v(ZP+8+h)}, {v(ZP+10+h)}')
        a(f's_mov_b64 exec, {sCM}')
        for P in range(2): a(f'buffer_store_dwordx4 {v(ZP+4*P,4)}, {v(vA)}, {W}, {sGB} offen offset:{gCZ + 64*P} sc1')
        a(f's_and_b64 exec, {sCM}, 0xffff')
        a(f'buffer_store_dwordx4 {v(ZP+8,4)}, {v(vA)}, {W}, {sGB} offen offset:{gCZ + 128} sc1')
        self.exec(-1)
        self.stamp(f'cand{lay}')
        if lay == 0:
            for q in range(4, 18): self.tk_x = self.x1piece(q)
            self.lnc(S)
            a(f's_lshl_b32 {t0}, {sW}, 6'); a(f's_add_u32 {t0}, {t0}, {NM + 64}'); a(f'v_lshl_add_u32 {v(vB)}, {v(vI)}, 2, {t0}')
            a(f'v_mov_b32 v60, {v(S)}'); a(f'v_mov_b32 v61, {v(S+6)}'); a(f'v_mov_b32 v62, 0'); a(f'v_mov_b32 v63, {sNON}')
            self.exec(0xffff)
            a(f'ds_write2_b32 {v(vB)}, {v(S)}, {v(S+6)} offset0:0 offset1:80')
            a(f'ds_write2_b32 {v(vB)}, {v(S+5)}, {v(K+7)} offset0:160 offset1:240')
            self.exec(-1)
            a.wait(tka); a.barrier()
            self.stamp('xa')
        else:
            OPK = ACC + 68
            a(f'v_add_f32 {v(K+6)}, 1.0, {v(K+6)}')
            for k in range(10): a(f'v_pk_fma_f32 {v(ZT+2*k,2)}, {v(ACC2+2*k,2)}, {v(K+6,2)}, {v(K+6,2)} op_sel:[0,0,1] op_sel_hi:[1,0,1]')
            for k in (8, 9, 0, 1, 2, 3, 4, 5, 6, 7): a(f'v_cvt_pk_bf16_f32 {v(OPK+k)}, {v(ZT+2*k)}, {v(ZT+2*k+1)}')
            for h in range(2): a(f'v_permlane16_swap_b32 {v(OPK+8+h)}, {v(OPK+10+h)}')
            a(f's_not_b64 {sSV}, {sCM}')
            self.outst(sSV)

    def outst(self, m):
        a = self.a; OPK = ACC + 68; f = self.o['osc']
        a(f's_mov_b64 exec, {m}')
        for P in range(2): a(f'buffer_store_dwordx4 {v(OPK+4*P,4)}, {v(vXe)}, {sOUT}, {sOUTo} offen offset:{64*P}{f}')
        a(f's_and_b64 exec, {m}, 0xffff')
        a(f'buffer_store_dwordx4 {v(OPK+8,4)}, {v(vXe)}, {sOUT}, {sOUTo} offen offset:128{f}')
        self.exec(-1)

    C = 28; Z = 40
    def cand_addr(self):
        a = self.a; C = self.C; Z = self.Z
        a(f'v_and_b32 {v(C+10)}, 31, v0'); a(f'v_lshlrev_b32 {v(C+10)}, 8, {v(C+10)}')
        for x in self.div9(Z + 10, 0): a(x)
        a(f'v_mul_u32_u24 {v(Z+10)}, {4096-144}, {v(Z+10)}'); a(f'v_add_u32 {v(Z+10)}, {v(Z+10)}, {v(vL16)}')
        for k in range(4): a(f'v_mov_b32 {v(Z+4+k)}, 0')
        a(f'v_mov_b32 {v(C+9)}, {WIN}')
    def cand_load(self, lay):
        a = self.a; C = self.C; a(f's_lshl_b32 s1, {sXCD}, 13'); a(f's_add_u32 s1, s1, {CAND}')
        a(f'buffer_load_dwordx4 {v(C,4)}, {v(C+10)}, {sWL[lay]}, s1 offen sc1')
    def cand_check(self): self.a(f'v_cmp_ne_u32 vcc, {sNON}, {v(self.C+3)}')
    def row_load(self, W, d, va, sa, vb, off):
        a = self.a
        a(f'buffer_load_dwordx4 {v(d,4)}, {v(va)}, {W}, {sa} offen sc1'); a(f's_add_u32 s1, {sa}, {off}')
        self.exec(0xff); a(f'buffer_load_dwordx4 {v(d+4,4)}, {v(vb)}, {W}, s1 offen sc1'); self.exec(-1)
    def z_load(self, lay): self.row_load(sWL[lay], self.Z, self.Z + 10, t1, vL16, 7*4096 + 16)
    def row_check(self, d):
        for x in self.maxu(d + 8, range(d, d + 8)): self.a(x)
        self.a(f'v_cmp_eq_u32 vcc, -1, {v(d+8)}')
    def argmax(self, lay):
        a = self.a; C = self.C
        for k, m in enumerate(('row_ror:8', 'row_ror:4', 'row_ror:2', 'row_ror:1')):
            x = C + 8 if k else C
            a(f'v_max_i32_dpp {v(C+8)}, {v(x)}, {v(x)} {m} row_mask:0xf bank_mask:0xf')
            if k == 0: a(f'v_mov_b32 {v(C+3)}, v0')
        a(f'v_readlane_b32 {t0}, {v(C+8)}, 0'); a(f'v_readlane_b32 {t1}, {v(C+8)}, 16'); a(f's_max_i32 {sKEY}, {t0}, {t1}')
        a(f'v_cmp_eq_u32 vcc, {sKEY}, {v(C)}')
        a(f'''s_bfe_u32 {t2}, {sKEY}, 0x20004
        s_lshl_b32 {t2}, {t2}, 10
        s_add_u32 {t2}, {t2}, {TB + oGB + gCZ}
        s_ff1_i32_b32 {t0}, vcc_lo
        s_mul_i32 {t1}, {t0}, {BLK}
        s_add_u32 {t1}, {t1}, {t2}''')
    def winput(self):
        a = self.a; C = self.C
        a(f's_lshl_b64 exec, 1, {t0}'); a(f'ds_write_b128 {v(C+9)}, {v(C,4)}'); self.exec(-1)
    def zput(self):
        a = self.a; Z = self.Z
        a(f'v_add_u32 {v(Z+8)}, {ZR}, {v(vL16)}'); a(f'ds_write_b128 {v(Z+8)}, {v(Z,4)}')
        self.exec(0xff); a(f'ds_write_b128 {v(Z+8)}, {v(Z+4,4)} offset:1024'); self.exec(-1)
    def winread(self):
        a = self.a; C = self.C
        a(f'v_mov_b32 {v(C+4)}, {WIN}'); a(f'ds_read_b128 {v(C,4)}, {v(C+4)}')
        for k, r in enumerate((sKEY, sM, sSTD, sCID)): a(f'v_readfirstlane_b32 {r}, {v(C+k)}')
        a(f'''s_sub_u32 {t0}, {sCID}, {sT}
        s_lshl_b32 {t0}, {t0}, 6
        s_and_b32 {t2}, {sKEY}, 63
        s_add_u32 {t0}, {t0}, 16
        s_add_u32 {sSLOT}, {t0}, {t2}''')
    def ffn_addr(self):
        return [l.strip() for l in f'''v_bfe_u32 {v(vC)}, v0, 1, 1
        v_lshlrev_b32 {v(vD)}, 1, {v(vC)}
        v_and_or_b32 {v(vD)}, {v(vG)}, 1, {v(vD)}
        v_xor_b32 {v(vD)}, {sW}, {v(vD)}
        v_mul_u32_u24 {v(vC)}, 36864, {v(vC)}
        v_lshl_add_u32 {v(vC)}, {v(vD)}, 4, {v(vC)}
        v_lshrrev_b32 {v(vD)}, 2, v0
        v_lshl_add_u32 {v(vC)}, {v(vD)}, 6, {v(vC)}
        v_and_b32 {v(vD)}, 1, v0
        v_lshl_add_u32 {v(vC)}, {v(vD)}, 3, {v(vC)}
        v_add_u32 {v(vC)}, {GATE}, {v(vC)}
        v_lshlrev_b32 {v(vD)}, 4, {v(vG)}
        v_add_u32 {v(vD)}, {ZR}, {v(vD)}'''.split('\n')]
    def ffn(self, lay):
        a = self.a
        if lay == 0:
            D = 28; B0 = 36; NB = 4
            def rd(ks):
                b = B0 + 8 * (ks % NB)
                return [f'ds_read_b128 {v(b+4,4)}, {v(vD)} offset:{64*ks}'] + [f'ds_read_b64_tr_b16 {v(b+2*jh,2)}, {v(vC)} offset:{1024*(2*ks+jh)}' for jh in range(2)]
            ab = lambda ks: (B0 + 8 * (ks % NB), B0 + 8 * (ks % NB) + 4)
        else:
            D = 28; B0 = XFB; NB = 10
            rd = lambda ks: [f'ds_read_b128 {v(B0+4*(ks%NB),4)}, {v(vD)} offset:{64*ks}']
            ab = lambda ks: (256 + 4 * ks, B0 + 4 * (ks % NB))
        for ks in range(NB - 1):
            for x in rd(ks): a(x)
        a(f'''s_lshl_b32 {t0}, {sW}, 9
        s_add_u32 {t0}, {t0}, {HW + 144}
        v_lshl_add_u32 {v(vA)}, {v(vG)}, 3, {t0}
        v_lshlrev_b32 {v(vB)}, 9, {v(vG)}
        v_lshl_add_u32 {v(vB)}, {v(vI)}, 4, {v(vB)}
        v_add_u32 {v(vB)}, {HW}, {v(vB)}
        v_lshlrev_b32 {v(vE)}, 6, {v(vI)}
        v_lshl_add_u32 {v(vE)}, {v(vG)}, 4, {v(vE)}''')
        for ks in range(18):
            if ks + NB - 1 < 18:
                for x in rd(ks + NB - 1): a(x)
            A, B = ab(ks)
            a(f'v_mfma_f32_16x16x32_bf16 {v(D,4)}, {v(A,4)}, {v(B,4)}, {v(D,4) if ks else 0}')
        for r in range(4): a(f'v_mul_f32 {v(D+8+r)}, {f32(-LOG2E)}, {v(D+r)}')
        for r in range(4): a(f'v_exp_f32 {v(D+8+r)}, {v(D+8+r)}')
        for r in range(4): a(f'v_permlane32_swap_b32 {v(D+r)}, {v(D+4+r)}')
        for r in range(4): a(f'v_add_f32 {v(D+8+r)}, 1.0, {v(D+8+r)}')
        for r in range(4): a(f'v_rcp_f32 {v(D+8+r)}, {v(D+8+r)}')
        for h in (0, 2): a(f'v_pk_mul_f32 {v(D+h,2)}, {v(D+h,2)}, {v(D+4+h,2)}')
        for h in (0, 2): a(f'v_pk_mul_f32 {v(D+h,2)}, {v(D+h,2)}, {v(D+8+h,2)}')
        a(f'v_cvt_pk_bf16_f32 {v(D)}, {v(D)}, {v(D+1)}\nv_cvt_pk_bf16_f32 {v(D+1)}, {v(D+2)}, {v(D+3)}')
        self.exec(0x10001); a(f'ds_write_b64 {v(vA)}, {v(D,2)}'); self.exec(-1)
        a.barrier()
        for n in range(9): a(f'ds_read_b128 {v(32+4*n,4)}, {v(vB)} offset:{16*(9-n)}')
        for n in range(9): a(f'v_mfma_f32_16x16x32_bf16 {v(D,4)}, {v(WDF+4*n,4)}, {v(32+4*n,4)}, {v(D,4) if n else 0}')
        self.exec(0x03ff03ff03ff03ff)
        a(f'buffer_store_dwordx4 {v(D,4)}, {v(vE)}, {sWL[lay]}, {sGB} offen sc1'); self.exec(-1)

    Y = 28
    def red_addr(self):
        a = self.a
        a(f'''s_mul_i32 {t2}, {sRED}, 7282
        s_lshr_b32 {t2}, {t2}, 16
        s_mul_i32 {t2}, {t2}, 7
        s_add_u32 {t2}, {t2}, {sRED}
        s_lshl_b32 {t2}, {t2}, 6
        s_add_u32 {t2}, {t2}, {TB + oGB + gPY}
        v_lshrrev_b32 {v(vA)}, 3, v0
        v_mul_u32_u24 {v(vA)}, {4*BLK}, {v(vA)}
        v_bfe_u32 {v(vB)}, v0, 2, 1
        v_lshl_add_u32 {v(vA)}, {v(vB)}, 12, {v(vA)}
        v_and_b32 {v(vB)}, 3, v0
        v_lshl_add_u32 {v(vA)}, {v(vB)}, 4, {v(vA)}
        v_lshlrev_b32 {v(vB)}, 3, {v(vB)}
        s_lshl_b32 {t3}, {sRED}, 5
        v_add_u32 {v(vE)}, {t3}, {v(vB)}
        v_lshrrev_b32 {v(vF)}, 4, {v(vE)}''')
        for x in self.div9(vF, vF): a(x)
        a(f'''v_mul_u32_u24 {v(vF)}, {4096-144}, {v(vF)}
        v_add_u32 {v(vF)}, {v(vF)}, {v(vE)}
        s_ashr_i32 {t0}, {sKEY}, 31
        s_lshr_b32 {t0}, {t0}, 1
        s_xor_b32 {t0}, {t0}, {sKEY}
        v_mov_b32 {v(vE)}, {f32(-LOG2E)}
        v_mul_f32 {v(vE)}, {t0}, {v(vE)}
        v_exp_f32 {v(vE)}, {v(vE)}
        v_add_f32 {v(vE)}, 1.0, {v(vE)}
        v_rcp_f32 {v(vE)}, {v(vE)}''')
    def red_load(self, lay):
        a = self.a; Y = self.Y; W = sWL[lay]
        a(f'buffer_load_dwordx2 {v(Y+36,2)}, {v(vF)}, {W}, {t1} offen sc1')
        for q in range(9):
            a(f's_add_u32 s1, {t2}, {(q >> 2)*BLK + (q & 3)*8192}'); a(f'buffer_load_dwordx4 {v(Y+4*q,4)}, {v(vA)}, {W}, s1 offen sc1')
    def red_check(self):
        Y = self.Y
        for x in self.maxu(Y + 38, [Y + 36, Y + 37] + list(range(Y, Y + 36))): self.a(x)
        self.a(f'v_cmp_eq_u32 vcc, -1, {v(Y+38)}')
    def red_sum(self, lay):
        a = self.a; Y = self.Y; Z = Y + 36
        for q in range(1, 9):
            for h in (0, 2): a(f'v_pk_add_f32 {v(Y+h,2)}, {v(Y+h,2)}, {v(Y+4*q+h,2)}')
        a(f'v_lshlrev_b32 {v(Y+8)}, 16, {v(Z)}\nv_and_b32 {v(Y+9)}, 0xffff0000, {v(Z)}\nv_lshlrev_b32 {v(Y+10)}, 16, {v(Z+1)}\nv_and_b32 {v(Y+11)}, 0xffff0000, {v(Z+1)}')
        self.dpp('v_add_f32', range(Y, Y + 4), ['row_ror:8', 'row_ror:4'])
        a(f'v_mov_b32 {v(Z)}, {sSTD}'); a(f'v_add_f32 {v(Z)}, 1.0, {v(Z)}')
        for r in range(4): a(f'v_fma_f32 {v(Y+8+r)}, {v(Y+8+r)}, {v(Z)}, {sM}')
        self.xsum(list(range(Y, Y + 4)), Y + 4, full=False)
        for r in range(4): a(f'v_fma_f32 {v(Y+r)}, {v(Y+r)}, {v(vE)}, {v(Y+8+r)}')
        a(f'v_cvt_pk_bf16_f32 {v(Y)}, {v(Y)}, {v(Y+1)}\nv_cvt_pk_bf16_f32 {v(Y+1)}, {v(Y+2)}, {v(Y+3)}')
        self.exec(0xf)
        if lay == 0: a(f'buffer_store_dwordx2 {v(Y,2)}, {v(vB)}, {sWS}, {sGB} offen offset:{gNR} sc1')
        else:
            a(f'buffer_store_dwordx2 {v(Y,2)}, {v(vB)}, {sOUT}, {t4} offen{self.o["osc"]}')
            def nn():
                self.exec(1); a(f'v_mov_b32 {v(vC)}, {sNON}'); a(f'buffer_store_dword {v(vC)}, {v(vB)}, {sWS}, 0 offen sc1')
            self.only(f's_cmp_eq_u32 {sRED}, 0', nn)
        self.exec(-1)

    def hooks(self):
        a = self.a; o = self.o; Z = self.Z; h = {}
        def add(ks, f):
            g = h.get(ks)
            h[ks] = (lambda: (g(), f())) if g else f
        red = lambda f: self.only(f's_cmp_lt_u32 {sRED}, 36', f)
        add(o['h1'], lambda: self.w(0, lambda: (self.cand_addr(), self.cand_load(0))))
        def xb():
            a.wait(self.tk_x)
            def hs():
                a(f's_lshl_b32 {t0}, {sCG}, 7'); a(f's_add_u32 {t0}, {t0}, {sTB}'); a(f's_add_u32 {t0}, {t0}, {oHS - 128}')
                self.exec(0xff00); a(f'buffer_store_dwordx4 v[60:63], {v(vL16)}, {sWS}, {t0} offen sc1'); self.exec(-1)
            self.w(3, hs)
            a('s_barrier'); self.stamp('xb')
        add(3, xb)
        def h2():
            self.verify(lambda: self.cand_load(0), self.cand_check); self.argmax(0)
            self.only(f's_cmp_lt_u32 {sLI}, 18', lambda: self.z_load(0)); self.winput()
        add(o['h2'], lambda: (self.w(0, h2), self.stamp('h2')))
        def h3():
            Lf, Lj = self.L(), self.L()
            a(f's_cmp_lt_u32 {sLI}, 18'); a(f's_cbranch_scc0 {Lf}')
            self.w(0, lambda: (self.verify(lambda: self.z_load(0), lambda: self.row_check(Z)), self.zput()))
            a.wait(self.tk_gu)
            a.barrier(); self.stamp('h3'); self.ffn(0); a(f's_branch {Lj}')
            a.label(Lf); a.barrier(); a.label(Lj)
            self.winread()
            a(f'''s_cmp_eq_u32 {sJ}, 0
            s_cselect_b32 {t0}, 16, 8
            s_sub_u32 {t2}, {sSLOT}, {t0}
            s_sub_u32 {t0}, 80, {t0}
            s_cmp_lt_u32 {t2}, {t0}
            s_cselect_b32 {sOWN}, 1, 0''')
            self.stamp('ffn0')
        add(o['h3'], h3)
        assert o['hA'] >= o['h3']
        def hl(): a(f's_add_u32 s1, {sTP}, {oHS}'); a(f'buffer_load_dwordx4 v[60:63], {v(vL16)}, {sWS}, s1 offen sc1')
        add(o['hA'], lambda: self.w(2, hl))
        def hB():
            self.verify(hl, lambda: a(f'v_cmp_ne_u32 vcc, {sNON}, v63'))
            for q in range(9):
                a(f's_mov_b32 m0, {LH + HP*q}'); a(f's_add_u32 s1, {sTP}, {oHX + 1024*q}')
                self.tk_h = a(f'buffer_load_dwordx4 {v(vL16)}, {sWS}, s1 offen sc1 lds')
            a(f'v_lshlrev_b32 v64, 2, v0'); a(f'v_add_u32 v64, {NM}, v64')
            self.exec(0xffff); a(f'ds_write2_b32 v64, v60, v61 offset0:0 offset1:80'); self.exec(-1)
        add(o['hB'], lambda: (self.w(2, hB), self.stamp('hB')))
        add(o['hC'], lambda: (self.w(2, lambda: (a.wait(self.tk_h), a.wlg(0))), a('s_barrier'), self.stamp('hC')))
        add(o['h4'], lambda: red(lambda: (self.red_addr(), self.red_load(0))))
        add(o['h5'], lambda: (red(lambda: (self.verify(lambda: self.red_load(0), self.red_check), self.red_sum(0))), self.stamp('red0')))
        return h

    def patch(self):
        a = self.a; Rr = self.Z; sx = self.sx
        a.label(f'L_patch{sx}')
        a.raw('@PAD')
        a.wlg(0)
        for k in range(4): a(f'v_mov_b32 {v(Rr+4+k)}, 0')
        a(f'''v_lshrrev_b32 {v(vA)}, 3, v0
        v_mul_u32_u24 v51, {HP - 128}, {v(vA)}
        s_mov_b32 {t0}, {LH + 1040}
        v_add3_u32 v51, v51, {v(vL16)}, {t0}
        v_and_b32 v52, 11, v0
        v_cmp_eq_u32 vcc, 1, v52
        v_lshl_add_u32 v52, {v(vG)}, 4, {t0}
        v_add_u32 v53, 64, v52
        v_cndmask_b32 {v(vHe)}, {v(vHe)}, v52, vcc
        v_cndmask_b32 {v(vHo)}, {v(vHo)}, v53, vcc''')
        def f():
            a(f'''s_mov_b32 {t3}, {TB + 3*BLK + oGB + gNR}
            v_bfe_u32 v50, v0, 1, 3
            v_mul_u32_u24 v50, {4*BLK}, v50
            v_lshl_add_u32 v50, {v(vG)}, 12, v50
            v_and_b32 v52, 1, v0
            v_lshl_add_u32 v50, v52, 4, v50
            s_lshr_b32 {t1}, {sSLOT}, 3
            s_sub_u32 {t1}, {t1}, 2
            s_mul_i32 {t1}, {t1}, 9216
            s_cmp_lt_u32 {sSLOT}, 16
            s_cselect_b32 {t1}, {LH}, {t1}
            s_cselect_b32 {t2}, {HP - 1024}, 0
            s_and_b32 {t0}, {sSLOT}, 7
            s_lshl_b32 {t0}, {t0}, 4
            s_add_u32 {t1}, {t1}, {t0}
            v_mul_u32_u24 {v(vA)}, {t2}, {v(vA)}
            v_lshl_add_u32 {v(vA)}, v0, 7, {v(vA)}
            v_add_u32 {v(vA)}, {t1}, {v(vA)}
            s_lshl_b32 {t2}, {t2}, 3
            v_add_u32 {v(vB)}, {t2}, {v(vA)}''')
            self.poll(lambda: self.row_load(sWS, Rr, 50, t3, 50, 16384), lambda: self.row_check(Rr))
            a(f'ds_write_b128 v51, {v(Rr,4)}'); a(f'ds_write_b128 {v(vA)}, {v(Rr,4)}')
            self.exec(0xff); a(f'ds_write_b128 v51, {v(Rr+4,4)} offset:{8*HP}'); a(f'ds_write_b128 {v(vB)}, {v(Rr+4,4)} offset:8192'); self.exec(-1)
        self.w(1, f)
        a.barrier()
        self.stamp('nr')
        for k in range(5): a(self.xread(k, 0, self.HB(k)))
        a(f'ds_read_b128 {v(Rr,4)}, v51'); self.exec(0xff); a(f'ds_read_b128 {v(Rr+4,4)}, v51 offset:{8*HP}'); self.exec(-1)
        S = Rr + 8; a(f's_mov_b32 {t3}, {ONES}')
        U = [[f'v_dot2_f32_bf16 {v(S)}, {v(Rr+k)}, {t3}, {v(S) if k else 0}', f'v_dot2_f32_bf16 {v(S+1)}, {v(Rr+k)}, {v(Rr+k)}, {v(S+1) if k else 0}'] for k in range(8)]
        U += [lambda m=m: self.dpp('v_add_f32', [S, S+1], [m]) for m in ('row_ror:8', 'row_ror:4', 'row_ror:2', 'row_ror:1')]
        U += [lambda w=w: self.xsum([S, S+1], S + 4, full=False, sws=(w,)) for w in ('v_permlane32_swap_b32', 'v_permlane16_swap_b32')]
        U += [[f'v_mul_f32 {v(S)}, {f32(-1/576)}, {v(S)}', f'v_mul_f32 {v(S+1)}, {f32(1/576)}, {v(S+1)}'],
              [f'v_fma_f32 {v(S+1)}, -{v(S)}, {v(S)}, {v(S+1)}', f'v_max_f32 {v(S+1)}, 0, {v(S+1)}'],
              [f'v_add_f32 {v(S+1)}, {f32(1e-5)}, {v(S+1)}', f'v_rsq_f32 {v(S+1)}, {v(S+1)}'],
              [f's_lshl_b32 {t0}, {sSLOT}, 2', f's_add_u32 {t0}, {t0}, {NM}', f'v_mov_b32 {v(vA)}, {t0}'], [f'v_mov_b32 {v(S+4)}, 1.0', f'v_mov_b32 {v(S+5)}, 0'],
              ['s_mov_b64 exec, 1', f'ds_write2_b32 {v(vA)}, {v(S)}, {v(S+1)} offset0:0 offset1:80', f'ds_write2_b32 {v(vA)}, {v(S+4)}, {v(S+5)} offset0:160 offset1:240', 's_mov_b64 exec, -1'],
              [f's_and_b32 {t1}, {sSLOT}, 15', f's_mov_b32 s{sb(sSV)}, 0x10001', f's_mov_b32 s{sb(sSV)+1}, 0x10001', f's_lshl_b64 {sSV}, {sSV}, {t1}', f's_not_b64 vcc, {sSV}'],
              [f's_lshr_b32 {t2}, {t1}, 2', f's_lshl_b32 {t2}, {t2}, 4', f's_mov_b64 {sSV}, 0xffff', f's_lshl_b64 {sSV}, {sSV}, {t2}', f's_and_b32 {t1}, {t1}, 3', f's_lshr_b32 {t0}, {sSLOT}, 4']]
        self.phase2(U)
        a(f'v_mov_b32 v40, {v(Vb+1)}'); a(f'v_mov_b32 v41, {v(Vb+1)}'); a('v_permlane32_swap_b32 v40, v41')
        Lt = [self.L() for _ in range(5)]
        for t in (0, 2, 3, 4): a(f's_cmp_eq_u32 {t0}, {t}'); a(f's_cbranch_scc1 {Lt[t]}')
        for t in range(1, 5):
            if t > 1: a.label(Lt[t])
            for b in (Qb, Kb, Rb):
                for r in range(4): a(f'v_cndmask_b32_dpp {v(b+4*t+r)}, {v(b+r)}, {v(b+4*t+r)}, vcc row_newbcast:1 row_mask:0xf bank_mask:0xf')
            for r in range(4):
                a(f's_cmp_eq_u32 {t1}, {r}'); a(f's_cselect_b64 vcc, {sSV}, 0'); a(f'v_cndmask_b32 {v(Vb+4*t+r)}, {v(Vb+4*t+r)}, v40, vcc')
            if t < 4: a(f's_branch {Lt[0]}')
        a.label(Lt[0])
        a.wall(); a('s_nop 3'); a(f's_branch L_patched{sx}')

    def tail(self):
        a = self.a; Z = self.Z
        def w0():
            self.cand_addr()
            self.poll(lambda: self.cand_load(1), self.cand_check); self.argmax(1)
            self.only(f's_cmp_lt_u32 {sLI}, 18', lambda: self.z_load(1)); self.winput()
            self.only(f's_cmp_lt_u32 {sLI}, 18', lambda: (self.verify(lambda: self.z_load(1), lambda: self.row_check(Z)), self.zput()))
        self.w(0, w0)
        a.barrier()
        self.stamp('win1')
        self.only(f's_cmp_lt_u32 {sLI}, 18', lambda: self.ffn(1))
        self.stamp('ffn1')
        self.winread()
        a(f's_lshr_b32 {t0}, {sSLOT}, 4'); a(f's_sub_u32 {t0}, {t0}, 1')
        self.only(f's_cmp_lg_u32 {t0}, {sW}', lambda: self.outst(sCM))
        def red():
            self.red_addr()
            a(f'''s_and_b32 {t0}, {sCID}, 15
            s_lshl_b32 {t0}, {t0}, 6
            s_and_b32 {t4}, {sKEY}, 63
            s_add_u32 {t0}, {t0}, {t4}
            s_lshl_b32 {t0}, {t0}, 1
            s_lshr_b32 {t4}, {sCID}, 4
            s_add_u32 {t0}, {t0}, {t4}
            s_mul_i32 {t0}, {t0}, 36
            s_add_u32 {t0}, {t0}, {sRED}
            s_lshl_b32 {t4}, {t0}, 5''')
            self.poll(lambda: self.red_load(1), self.red_check); self.red_sum(1)
        self.only(f's_cmp_lt_u32 {sRED}, 36', red)

    def body(self):
        a = self.a; o = self.o
        self.tk_gu = None
        self.attn(0); self.p2(0); self.router(0); self.gemm1(); self.attn(1); self.p2(1); self.router(1); self.tail()
        if o['stamps']:
            self.stamp('red1'); a.wall(); self.stamp('end')
            a('s_memrealtime s[4:5]'); a.wlg(0)
            for k, r in ((62, 's100'), (63, 's4'), (61, sCNT), (60, 's96'), (59, sSLOW)): a(f'v_writelane_b32 {v(vSTAMP)}, {r}, {k}')
            a(f's_lshl_b32 {t0}, s2, 2'); a(f's_add_u32 {t0}, {t0}, {sW}'); a(f's_lshl_b32 {t0}, {t0}, 8'); a(f's_add_u32 {t0}, {t0}, {STAMP}')
            a(f'v_lshlrev_b32 {v(vB)}, 2, v0'); a(f'buffer_store_dword {v(vSTAMP)}, {v(vB)}, {sWS}, {t0} offen')
        if o['padto']:
            if o['probe']: a(f's_cmp_eq_u32 {sW}, 0'); a('s_cselect_b32 s100, s98, s100')
            L = self.L(); a.wall(); a.label(L); a('s_memrealtime s[4:5]'); a.wlg(0); a('s_sub_u32 s4, s4, s100'); a(f's_cmp_lt_u32 s4, {o["padto"]}'); a(f's_cbranch_scc1 {L}')
        a('s_endpgm')
        while self.colds: self.colds.pop(0)()
    def slow(self):
        a = self.a
        a.label('L_slow'); a.wall()
        self.sp = ' sc1'; self.sx = '_s'
        self.poisonL(' sc1', 44); a.wall(); a('s_barrier')
        def f():
            a(f'''s_lshl_b32 {t1}, {sT}, 10
            s_add_u32 {t1}, {t1}, {XF2}
            s_lshl_b32 {t2}, {sCG}, 7
            s_add_u32 {t2}, {t2}, {t1}
            v_mov_b32 v44, {sNON}
            v_lshlrev_b32 v45, 7, v0''')
            self.exec(1); a(f'buffer_store_dword v44, v45, {sWS}, {t2} offen sc1'); self.exec(0xff)
            self.poll(lambda: a(f'buffer_load_dword v46, v45, {sWS}, {t1} offen sc1'), lambda: a(f'v_cmp_ne_u32 vcc, {sNON}, v46'))
            self.exec(-1)
        self.w(0, f)
        self.body()

    def wrap(self, lines):
        K = NAME + '_kernel'
        head = open('header.txt').read()
        return (f'; @launch grid=(256,1,1) block=(256,1,1) lds=163840\n' + head +
                f'.amdgcn_target "amdgcn-amd-amdhsa--gfx950"\n.text\n.globl {K}\n.p2align 8\n.type {K},@function\n{K}:\n' + '\n'.join(lines) + '\ns_endpgm\n' +
                f'''
.section .rodata,"a"
.p2align 6
.amdhsa_kernel {K}
  .amdhsa_next_free_vgpr 512
  .amdhsa_next_free_sgpr 102
  .amdhsa_accum_offset 256
  .amdhsa_group_segment_fixed_size 0
  .amdhsa_kernarg_size 88
  .amdhsa_user_sgpr_count 2
  .amdhsa_user_sgpr_kernarg_segment_ptr 1
  .amdhsa_system_sgpr_workgroup_id_x 1
.end_amdhsa_kernel
''')
    def pads(self, lines):
        i0, i1 = lines.index('L_main:'), lines.index('L_hotend:')
        if not self.o['pads']: return [l for l in lines if l != '@PAD']
        ins = [l for l in lines[i0:i1] if not l.endswith(':') and l[0] not in ';@']
        src = '\n'.join(re.sub(r'^(s_c?branch\w*) .*', r'\1 0', l) for l in ins) + '\n'
        r = subprocess.run(['llvm-mc', '-triple=amdgcn-amd-amdhsa', '-mcpu=gfx950', '-show-encoding'], input=src, capture_output=True, text=True)
        size = [l.count('0x', l.index('encoding:')) for l in r.stdout.split('\n') if 'encoding:' in l]
        assert len(size) == len(ins), (len(size), len(ins), r.stderr[:400])
        out = []; addr = 0; nxt = 0; k = 0; n = 0
        for l in lines[i0:i1]:
            real = not l.endswith(':') and l[0] not in ';@'
            if l == '@PAD' or (real and addr >= nxt):
                out.append(('P', n)); n += 1; addr += 4
                if l != '@PAD': nxt += 4096
            if l == '@PAD': continue
            out.append(l)
            if real: addr += size[k]; k += 1
        res = []
        for l in out:
            if isinstance(l, tuple): res += [f'L_pad{l[1]}:', f's_cbranch_execz ' + (f'L_pad{l[1]+3}' if l[1] + 3 < n else 'L_padret')]
            else: res.append(l)
        self.hot = addr
        return lines[:i0] + res + [l for l in lines[i1:] if l != '@PAD']
    def build(self):
        a = self.a; o = self.o
        self.start(); self.gemm0()
        a(f's_cmp_lg_u32 {sSLOW}, 0'); a('s_cbranch_scc1 ' + ('L_slow' if o['slowcopy'] else 'L_exit'))
        self.body()
        a.raw('L_hotend:')
        if o['slowcopy']: self.slow()
        a.label('L_exit')
        return self.wrap(self.pads(a.text().rstrip('\n').split('\n')))

if __name__ == '__main__':
    o = eval('dict(' + (sys.argv[2] if len(sys.argv) > 2 else '') + ')')
    g = G(**o); t = g.build(); open(sys.argv[1], 'w').write(t)
    print('lines', t.count('\n'), 'bytes', len(t), 'nops', g.a.nops, g.names)
```

```python
import sys, math, struct, subprocess, re
from asmlib import *
NAME = 'interleave_layers__sliding_local_dilated__moe_arch_mod__prompt'
WP = 0x10000; WOP = 0x200000; CAND = 0x2C0000; STAMP = 0x300000; FL = 0x340000; XF = 0x380000; XF2 = 0x3A0000
TB = 0x400000
oOB = 0; oOR = 65536; oST = oOR + 8192; oX1 = oST + 8192; oGB = oX1 + 73728; LS = 65536
oHX = oGB + 32768; oHS = oHX + 9216; BLK = oGB + LS + 32768
gPY = 0; gCZ = 640; gNR = 896
WSN = 0x1000000; OOB = 0x40000000; MAT = 5308416
assert TB + 32 * BLK <= WSN and CAND + LS + 65536 <= STAMP
LH = 73728; HP = 1168; GATE = 84352; UP = GATE + 36864; SCR = UP + 36864
HW = SCR; NM = HW + 2048; ZR = NM + 1280; WRL = ZR + 1152; WIN = WRL + 1152; CB = WIN + 16; SWL = CB + 64
assert SWL + 4 <= 163840 and LH + 9 * HP <= GATE
sX, sWS, sOUT, sWQ, sWO, sWR, sWG, sWU, sWD, sCD, sWS1 = [s(8 + 4 * i, 4) for i in range(11)]
sWL = (sWS, sWS1)
t0, t1, t2, t3, t4 = 's3', 's4', 's5', 's6', 's7'
_n = [52]
def S1():
    _n[0] += 1; return f's{_n[0]-1}'
def S2():
    _n[0] += _n[0] & 1; _n[0] += 2; return s(_n[0] - 2, 2)
sMK = [S2() for _ in range(4)]; sSV = S2(); sCM = S2(); sBIAS = S2()
(sXCD, sLI, sCG, sW, sT, sJ, sP, sNON, sSW, sF, sCNT, sCID, sRED, sKEY, sM, sSTD, sTB, sTP, sOBs, sORs, sSTs, sGB, sGU, sGL, sWB,
 sSLOT, sOWN, sSLOW, sOUTo, sFN) = [S1() for _ in range(30)]
sWDo = sF; sTAG = sP
assert _n[0] <= 96
vL, vXe, vXo, vHe, vHo, vL16, vI, vG = range(8)
vM = 8; vPM = 12; vSEL = 14; vSTAMP = 16; vOB = 17; vDUM = 18; vRA = 19
vA, vB, vC, vD, vE, vF = 22, 23, 24, 25, 26, 27
PAIR = 28; RSK = 38; CS = 44; RES = 58; ACC2 = 28; WRP = 48
XFB = 68; ACC = 108; WDF = 188
Qb, Kb, Vb, Rb = ACC, ACC + 20, ACC + 40, ACC + 60
def Wf(ks, n): return (256 + 16 * ks if ks < 16 else 224 + 16 * (ks - 16)) + 4 * n
BIG = 0xf149f2ca
ONES = 0x3f803f80
LOG2E = math.log2(math.e)
def f32(x): return '0x%08x' % struct.unpack('<I', struct.pack('<f', x))[0]
def sb(srd): return int(srd[2:srd.index(':')])

class G:
    def __init__(self, **o):
        self.o = dict(stamps=False, padto=0, probe='', noffn=False, force=False, slowcopy=True, pads=True,
                      depth=3, osc='', wostep=12, pre=True, nt='', kf=14, kx=4, wopf=14, pois='s', xpre=0, xlate=1, touch=7, tm=1, bar1=False, xall=False, odef=1, defer=0, msel='cg', mks=(0, 2, 4, 6, 8, 10, 12, 14), kb=6, wom=(1 << 36) - 1,
                      pf=(('s', 2, '', 0, 8), ('t', 2, '', 24, 4), ('s', 0, 'non', 0, 42), ('g', 1, 'all', 0, 9), ('p', 1, 'all', 288, 9)), gate='x', up='x', gux=3,
                      wpf=(), gst=(), wsc=' sc1', h1=2, h2=5, h3=8, h4=14, h5=17, hA=8, hB=11, hC=16, p2n=6, p2g=2, p2r=8, p2w=True, xq=(10, 10), xr=3, tred=2, inl=True, val=1, valo=False, xsc=' sc1', kg=-1, dec=False, valx=0, wo0=(0, 0), idl=(2, 2), stw=(1, 1), rp=(3, 6, 15, 17), xh3=True, ring=(19, 40))
        assert all(k in self.o for k in o), o
        self.o.update(o)
        self.a = Asm(); self.names = []; self.nl = 0; self.colds = []; self.sp = ''; self.sx = ''; self.wdn = 0
    def L(self, p='L'):
        self.nl += 1; return f'{p}_{self.nl}'
    def stamp(self, name):
        a = self.a
        if name == self.o['probe']: a.wlg(0); a('s_memrealtime s[98:99]'); a.wlg(0)
        if not self.o['stamps']: return
        a.wlg(0); a('s_memtime s[0:1]'); a.wlg(0)
        if name not in self.names: self.names.append(name)
        a(f'v_writelane_b32 {v(vSTAMP)}, s0, {self.names.index(name)}')
    def only(self, cond, fn):
        L = self.L(); self.a(cond); self.a(f's_cbranch_scc0 {L}'); fn(); self.a.label(L)
    def w(self, k, fn): self.only(f's_cmp_eq_u32 {sW}, {k}', fn)
    def exec(self, m):
        a = self.a
        if m == -1 or m < (1 << 31): a(f's_mov_b64 exec, {m}')
        else: a(f's_mov_b32 exec_lo, 0x{m & 0xffffffff:x}'); a(f's_mov_b32 exec_hi, 0x{m >> 32:x}')
    def tick(self): self.a(f's_sub_u32 {sCNT}, {sCNT}, 1'); self.a('s_cbranch_scc1 L_exit')
    def poll(self, issue, check):
        a = self.a; L = self.L('P'); a.label(L); self.tick(); issue(); check(); a(f's_cbranch_vccnz {L}')
    def verify(self, issue, check):
        a = self.a; Lc, Lr = self.L('C'), self.L('R')
        if self.o['inl']:
            a(f's_branch {Lc}'); a.label(Lr); self.tick(); a.wvm(0); issue(); a.wvm(0)
            a.label(Lc); check(); a('s_nop 0'); a.out.pop(); a.raw(f's_cbranch_vccnz {Lr}'); return
        a.label(Lc); check(); a(f's_cbranch_vccnz {Lr}')
        def cold(): a.label(Lr); self.tick(); a.wall(); issue(); a.wall(); a(f's_branch {Lc}')
        self.colds.append(cold)
    def run(self, f):
        if callable(f): return f()
        for y in f: tk = self.a(y)
        return tk
    def xsum(self, rs, tmp, op='v_add_f32', full=True, sws=('v_permlane32_swap_b32', 'v_permlane16_swap_b32')):
        a = self.a
        for sw in sws:
            if full:
                for k, r in enumerate(rs): a(f'v_mov_b32 {v(tmp+k)}, {v(r)}')
            for k, r in enumerate(rs): a(f'{sw} {v(r)}, {v(tmp+k)}')
            for k, r in enumerate(rs): a(f'{op} {v(r)}, {v(r)}, {v(tmp+k)}')
    def dpp(self, op, rs, mods):
        for m in mods:
            for r in rs: self.a(f'{op}_dpp {v(r)}, {v(r)}, {v(r)} {m} row_mask:0xf bank_mask:0xf')
    def maxu(self, d, rs, first=True):
        rs = list(rs); r = []
        if first: r.append(f'v_max3_u32 {v(d)}, {v(rs[0])}, {v(rs[1])}, {v(rs[2])}' if len(rs) % 2 else f'v_max_u32 {v(d)}, {v(rs[0])}, {v(rs[1])}'); rs = rs[3:] if len(rs) % 2 else rs[2:]
        for k in range(0, len(rs), 2): r.append(f'v_max3_u32 {v(d)}, {v(d)}, {v(rs[k])}, {v(rs[k+1])}')
        return r
    def div9(self, q, x):
        return [f'v_mul_u32_u24 {v(q)}, 7282, {v(x)}', f'v_lshrrev_b32 {v(q)}, 16, {v(q)}']

    def srd(self, lst):
        for srd, n in lst: self.a(f's_mov_b32 s{sb(srd)+2}, {n}'); self.a(f's_mov_b32 s{sb(srd)+3}, 0x20000')
    def common(self):
        a = self.a
        a(f's_load_dword {sNON}, s[{sb(sWS)}:{sb(sWS)+1}], 0')
        self.srd(((sWS, WSN), (sOUT, 2359296), (sWS1, WSN - LS)))
        a(f'''s_cmp_lt_u32 {sLI}, {0 if self.o["noffn"] else 18}
        s_cselect_b32 {sFN}, {MAT}, 0''')
        self.srd(((sWD, sFN), (sWG, sFN), (sWU, sFN)))
        a(f'''s_add_u32 s{sb(sWS1)}, s{sb(sWS)}, {LS}
        s_addc_u32 s{sb(sWS1)+1}, s{sb(sWS)+1}, 0
        s_mov_b32 {sCNT}, 20000
        s_mov_b32 {sSLOW}, {1 if self.o["force"] else 0}
        s_mul_i32 {sF}, {sXCD}, 18
        s_add_u32 {sF}, {sF}, {sLI}
        s_sub_u32 {sRED}, {sLI}, 24
        s_lshl_b32 {sRED}, {sRED}, 3
        s_add_u32 {sRED}, {sRED}, {sXCD}
        s_cmp_eq_u32 {sW}, 0
        s_cselect_b32 {sRED}, {sRED}, 99
        s_mul_i32 {sTB}, {sT}, {BLK}
        s_add_u32 {sTB}, {sTB}, {TB}
        s_cmp_eq_u32 {sJ}, 0
        s_cselect_b32 {t0}, 0, {BLK}
        s_cselect_b32 s{sb(sBIAS)}, 0x{BIG:x}, 0
        s_mov_b32 s{sb(sBIAS)+1}, s{sb(sBIAS)}
        s_sub_u32 {sTP}, {sTB}, {t0}
        s_lshl_b32 {t0}, {sCG}, 2
        s_add_u32 {t0}, {t0}, {sW}
        s_mul_i32 {sWB}, {t0}, 62208
        s_add_u32 {sWB}, {sWB}, {WP}
        s_lshl_b32 {t1}, {t0}, 9
        s_add_u32 {sOBs}, {t1}, {sTB}
        s_lshl_b32 {t1}, {t0}, 8
        s_add_u32 {t1}, {t1}, {sTB}
        s_add_u32 {sORs}, {t1}, {oOR}
        s_add_u32 {sSTs}, {t1}, {oST}
        s_lshl_b32 {t1}, {t0}, 10
        s_add_u32 {t1}, {t1}, {sTB}
        s_add_u32 {sGB}, {t1}, {oGB}
        s_lshr_b32 {t1}, {sW}, 1
        s_mul_i32 {t1}, {t1}, 294912
        s_and_b32 {t2}, {sW}, 1
        s_mul_i32 {t2}, {t2}, 36864
        s_add_u32 {t1}, {t1}, {t2}
        s_lshl_b32 {t2}, {sF}, 6
        s_add_u32 {sGU}, {t1}, {t2}
        s_lshl_b32 {sGL}, {sW}, 10
        s_mul_i32 {sWDo}, {sF}, 36864
        s_add_u32 {sWDo}, {sWDo}, {sGL}
        s_lshl_b32 {t0}, {sJ}, 2
        s_add_u32 {t0}, {t0}, {sW}
        s_lshl_b32 {t0}, {t0}, 5
        s_add_u32 {t0}, {t0}, {sP}
        s_lshl_b32 {t0}, {t0}, 3
        s_add_u32 {t0}, {t0}, {sCG}
        s_mul_i32 {sOUTo}, {t0}, 144''')
    def nonce(self):
        self.a(f's_mul_i32 {sNON}, {sNON}, 1664525'); self.a(f's_add_u32 {sNON}, {sNON}, 1013904223'); self.a(f's_and_b32 {sNON}, {sNON}, -16')
    def wrsum(self):
        a = self.a
        a(f'v_add_u32 {v(vA)}, {WRL}, {v(vL16)}'); a(f'ds_read_b128 v[56:59], {v(vA)}'); a(f'ds_read_b128 v[60:63], {v(vA)} offset:1024')
        a(f's_mov_b32 {t0}, {ONES}')
        for k in range(8):
            if k == 4: self.exec(0xff)
            a(f'v_dot2_f32_bf16 {v(vA)}, v{56+k}, {t0}, {v(vA) if k else 0}')
        self.exec(-1)
        self.dpp('v_add_f32', [vA], ['row_ror:8', 'row_ror:4', 'row_ror:2', 'row_ror:1']); self.xsum([vA], vB)
        a(f'v_mov_b32 {v(vB)}, {SWL}'); a(f'ds_write_b32 {v(vB)}, {v(vA)}')
    def poisonL(self, lay, P, pol):
        st = lambda k: f'buffer_store_dwordx4 {v(P,4)}, {v(P+4)}, {sWL[lay]}, {sTB} offen offset:{1024*k}{pol}'
        def last(): self.a('s_mov_b32 exec_hi, 0'); self.tk_p = self.a(st(2)); self.exec(-1)
        return [[f'v_mov_b32 {v(P+k)}, -1' for k in range(4)],
                [f's_lshl_b32 s1, {sCG}, 2', f's_add_u32 s1, s1, {sW}', f's_mul_i32 s1, s1, {oX1 // 32}', f'v_add_u32 {v(P+4)}, s1, {v(vL16)}'], [st(0)], [st(1)], last]
    def poisonG(self, lay, P):
        return [[f's_cmp_lt_u32 {sRED}, 36', f's_cselect_b32 s1, {0 if lay else 0xff000000}, 0', f's_or_b32 s1, s1, 0xffff00', f's_cmp_lt_u32 {sLI}, 18', f's_cselect_b32 exec_lo, -1, 0',
                 f's_cselect_b32 exec_hi, 0xffffff, s1', f'buffer_store_dwordx4 {v(P,4)}, {v(vL16)}, {sWL[lay]}, {sGB} offen sc1', 's_mov_b64 exec, -1']]
    def xfaddr(self, d):
        return [f's_lshl_b32 {d}, {sT}, 3', f's_add_u32 {d}, {d}, {sCG}', f's_lshl_b32 {d}, {d}, 2', f's_add_u32 {d}, {d}, {sW}', f's_lshl_b32 {d}, {d}, 7', f's_add_u32 {d}, {d}, {XF}']
    def x1pre(self, P):
        st = lambda k: f'buffer_store_dwordx4 {v(P,4)}, {v(P+5)}, {sWS}, {sTB} offen offset:{512*k}{self.o["xsc"]}'
        return [[f's_lshl_b32 s1, {sW}, 4', f's_add_u32 s1, s1, {sCG}', f's_mul_i32 s1, s1, 1152', f's_add_u32 s1, s1, {oX1}', f'v_bfe_u32 {v(P+5)}, v0, 3, 1', f'v_mul_u32_u24 {v(P+5)}, {9216-128}, {v(P+5)}',
                 f'v_lshl_add_u32 {v(P+5)}, {v(vI)}, 4, {v(P+5)}', f'v_lshl_add_u32 {v(P+5)}, {v(vG)}, 7, {v(P+5)}', f'v_add_u32 {v(P+5)}, s1, {v(P+5)}'],
                [st(0)], [st(1)], ['s_mov_b64 exec, 0xffff', st(2), 's_mov_b64 exec, -1']]
    def valid(self, lay, r):
        b = 0 if self.o['valo'] else oOR; n = (oX1 - b) // 4096
        return [[f's_lshl_b32 s1, {sCG}, 2', f's_add_u32 s1, s1, {sW}', f's_mul_i32 s1, s1, {n}', f's_add_u32 s1, s1, {b // 128}', f'v_min_u32 {v(r)}, {n-1}, v0', f'v_add_lshl_u32 {v(r)}, {v(r)}, s1, 7'],
                lambda: self.a.untracked(f'buffer_load_dword {v(vDUM)}, {v(r)}, {sWL[lay]}, {sTB} offen sc1')]
    def validx(self, r):
        def ld(): self.exec(0x01ff01ff); self.a.untracked(f'buffer_load_dword {v(vDUM)}, {v(r)}, {sWS}, {sTB} offen sc1'); self.exec(-1)
        return [[f's_lshl_b32 s1, {sW}, 4', f's_add_u32 s1, s1, {sCG}', f's_mul_i32 s1, s1, 1152', f's_add_u32 s1, s1, {oX1}', f'v_mul_u32_u24 {v(r)}, 9216, {v(vG)}',
                 f'v_lshl_add_u32 {v(r)}, {v(vI)}, 7, {v(r)}', f'v_add_u32 {v(r)}, s1, {v(r)}'], ld]
    def pfetch(self, pos, r0, w0=0):
        a = self.a; U = []
        if self.o['noffn']: return U
        for p, mat, who, row0, R in self.o['pf']:
            if p != pos: continue
            if mat == 2:
                for j in range(R):
                    k = 1024 * (row0 + j * (4 - w0) - w0)
                    U.append([f's_add_u32 m0, {sGL}, {UP + k}', f's_add_u32 s1, {sWDo}, 0x{k & 0xffffffff:x}', f'buffer_load_dwordx4 {v(vL16)}, {sWD}, s1 offen{self.o["nt"]} lds'])
                self.wdn += R * (4 - w0); continue
            n = -(-9 * R // (4 - w0)); srd = (sWG, sWU)[mat]
            for j in range(-(-n // 64)):
                U.append([f'v_add_u32 {v(r0)}, {64*j}, v0', f'v_min_u32 {v(r0)}, {n-1}, {v(r0)}'])
                U.append([f's_mul_i32 s1, {sW}, {n}', f's_sub_u32 s1, s1, {w0*n}', f'v_add_u32 {v(r0)}, s1, {v(r0)}', f'v_min_u32 {v(r0)}, {9*R-1}, {v(r0)}'])
                U.append(self.div9(r0 + 1, r0))
                U.append([f'v_mul_u32_u24 {v(r0+1)}, 8064, {v(r0+1)}', f'v_lshl_add_u32 {v(r0)}, {v(r0)}, 7, {v(r0+1)}'])
                def ld(srd=srd, who=who, R=R, base=(row0 - (18 * R if who == 'non' else 0)) * 8):
                    a(f's_mul_i32 s1, {sLI}, {R*8}'); a(f's_add_u32 s1, s1, {sXCD}')
                    if base: a(f's_add_u32 s1, s1, 0x{base & 0xffffffff:x}')
                    a(f's_mul_i32 s1, s1, 1152')
                    if who != 'ffn': a(f's_mov_b32 s{sb(srd)+2}, {MAT}' if who == 'all' else f's_xor_b32 s{sb(srd)+2}, {sFN}, {MAT}')
                    a.untracked(f'buffer_load_dword {v(vDUM)}, {v(r0)}, {srd}, s1 offen{self.o["nt"]}')
                    if who != 'ffn': a(f's_mov_b32 s{sb(srd)+2}, {sFN}')
                U.append(ld)
        return U

    def start(self):
        a = self.a; o = self.o; nt = o['nt']
        Lx, Lwo, Lw2, Lj, Lxt, Lwt, Lf = [self.L() for _ in range(7)]
        a('s_cmp_ge_u32 s2, 256'); a('s_cbranch_scc1 L_exit')
        if o['stamps'] or o['padto']: a('s_memrealtime s[100:101]'); a('s_memtime s[96:97]'); a(f'v_mov_b32 {v(vSTAMP)}, 0')
        def ld(l):
            for srd, off in l: a(f's_load_dwordx2 s[{sb(srd)}:{sb(srd)+1}], s[0:1], {off}')
        ld(((sWQ, 8), (sX, 0), (sWO, 16), (sWS, 80)))
        a(f's_getpc_b64 s[{sb(sCD)}:{sb(sCD)+1}]'); a.raw('L_pc:')
        a(f's_lshr_b32 {sLI}, s2, 3'); self.srd(((sCD, 'L_hotend-L_pc'),))
        a(f"""v_lshrrev_b32 v1, 4, v0
        v_lshlrev_b32 v1, 7, v1
        s_lshl_b32 {t0}, {sLI}, 11""")
        tkc = a.untracked(f'buffer_load_dword {v(vDUM)}, v1, {sCD}, {t0} offen')
        a(f"""v_lshrrev_b32 v2, 6, v0
        s_and_b32 {sXCD}, s2, 7
        v_readfirstlane_b32 {sW}, v2""")
        ld(((sWD, 56), (sWG, 40), (sWU, 48), (sWR, 32), (sOUT, 64)))
        a(f"""v_and_b32 v0, 63, v0
        s_and_b32 {sCG}, {sLI}, 7
        s_lshr_b32 {t0}, {sLI}, 3
        s_lshl_b32 {sT}, {sXCD}, 2
        s_add_u32 {sT}, {sT}, {t0}
        s_lshr_b32 {sP}, {sT}, 4
        s_and_b32 {sJ}, {sT}, 15
        v_lshlrev_b32 {v(vL16)}, 4, v0""")
        self.srd(((sX, 2359296),))
        a(f's_cmp_lg_u32 {sW}, 0'); a(f's_cbranch_scc1 {Lx}')
        WOL = GATE + 9216
        for x in self.div9(vA, 0): a(x)
        self.srd(((sWO, 663552), (sWQ, 1990656)))
        a(f"""s_mul_i32 {t4}, {sCG}, 144
        s_mov_b32 m0, {GATE}
        v_mul_u32_u24 v67, {1152-144}, {v(vA)}
        v_add_u32 v67, v67, {v(vL16)}
        s_cmp_ge_u32 {sT}, 27
        s_cbranch_scc1 {Lwo}""")
        a(f"""s_mul_i32 {sM}, {sT}, 43
        s_lshr_b32 {sM}, {sM}, 7
        s_mul_i32 {sKEY}, {sM}, 3
        s_sub_u32 {sKEY}, {sT}, {sKEY}
        v_mul_u32_u24 {v(vA)}, {3456-144}, {v(vA)}
        v_add_u32 {v(vA)}, {v(vA)}, {v(vL16)}
        s_mul_i32 {t3}, {sM}, {64*3456}
        s_add_u32 {t3}, {t3}, {t4}
        s_mul_i32 {t2}, {sKEY}, 1152
        s_add_u32 {t3}, {t3}, {t2}""")
        self.stamp('start')
        for q in range(10):
            if q: a(f's_add_u32 m0, m0, 1008'); a(f's_add_u32 {t3}, {t3}, {7*3456}')
            if q == 9: self.exec(0x1ff)
            tkw = a(f'buffer_load_dwordx4 {v(vA)}, {sWQ}, {t3} offen{nt} lds')
        def woload(lds, step):
            self.exec(o['wom'])
            for q in range(4):
                a(f's_mov_b32 m0, {lds + 576*q}')
                if q: a(f's_add_u32 {t3}, {t3}, {step}')
                tk = a(f'buffer_load_dwordx4 v67, {sWO}, {t3} offen{nt} lds')
            return tk
        a.label(Lw2)
        a(f"""s_and_b32 {t2}, {sT}, 1
        s_mul_i32 {t3}, {sT}, 9
        s_add_u32 {t3}, {t3}, {t2}
        s_mul_i32 {t3}, {t3}, 2304
        s_add_u32 {t3}, {t3}, {t4}""")
        if o['xlate'] == 3:
            self.exec(-1)
            a(f"""s_lshl_b32 {t0}, {sJ}, 7
            s_add_u32 {t0}, {t0}, {sP}
            s_mul_i32 {t1}, {sCG}, 18
            s_add_u32 {t0}, {t0}, {t1}
            s_sub_u32 {t0}, {t0}, 16
            s_mul_i32 {t0}, {t0}, 1152
            v_mul_u32_u24 {v(vB)}, 7282, v0
            v_lshrrev_b32 {v(vB)}, 16, {v(vB)}
            v_mul_u32_u24 {v(vB)}, 1152, {v(vB)}
            v_lshl_add_u32 {v(vB)}, v0, 7, {v(vB)}
            v_add_u32 {v(vB)}, {t0}, {v(vB)}
            v_add_u32 {v(vC)}, {7*2304}, {v(vB)}""")
            a.untracked(f'buffer_load_dword {v(vDUM)}, {v(vB)}, {sX}, 0 offen')
            self.exec((1 << 18) - 2); a.untracked(f'buffer_load_dword {v(vDUM)}, {v(vC)}, {sX}, 0 offen')
        tko = woload(WOL, 4*1152)
        self.exec(-1); a(f's_branch {Lj}')
        st = (a.vm, a.lg); a.label(Lwo)
        a(f"""s_sub_u32 {sM}, {sT}, 27
        s_min_u32 {sM}, {sM}, 3
        s_mul_i32 {t3}, {sM}, {144*1152}
        s_add_u32 {t3}, {t3}, {16*1152}
        s_add_u32 {t3}, {t3}, {t4}""")
        self.stamp('start')
        woload(GATE, 36*1152)
        a(f's_branch {Lw2}')
        a.label(Lx)
        self.srd(((sWR, 1152),))
        a(f"""s_lshl_b32 {t0}, {sJ}, 7
        s_add_u32 {t0}, {t0}, {sP}
        s_mul_i32 {t0}, {t0}, 1152
        v_min_u32 {v(vB)}, 26, v0
        s_mul_i32 {t1}, {sCG}, 3
        s_add_u32 {t1}, {t1}, {sW}
        s_mul_i32 {t1}, {t1}, {3*2304}
        s_add_u32 {t1}, {t1}, {t0}
        s_sub_u32 {t1}, {t1}, {11*2304}""")
        for x in self.div9(vA, vB): a(x)
        a(f"""v_mul_u32_u24 {v(vA)}, 1152, {v(vA)}
        v_lshl_add_u32 {v(vA)}, {v(vB)}, 7, {v(vA)}
        v_add_u32 v67, {t1}, {v(vA)}""")
        self.stamp('start')
        xpf = lambda: a.untracked(f'buffer_load_dword {v(vDUM)}, v67, {sX}, 0 offen')
        if o['pois'] == 'e':
            self.srd(((sWS, WSN),))
            for k in range(4): a(f'v_mov_b32 v{40+k}, -1')
            a(f"""s_mul_i32 {t1}, {sT}, {BLK}
            s_mul_i32 {t2}, {sCG}, 10240
            s_add_u32 {t1}, {t1}, {t2}
            s_mul_i32 {t2}, {sW}, 3072
            s_add_u32 {t2}, {t2}, {TB - 3072}
            s_add_u32 {t1}, {t1}, {t2}""")
            for k in range(3): a(f'buffer_store_dwordx4 v[40:43], {v(vL16)}, {sWS}, {t1} offen offset:{1024*k}')
            self.w(3, lambda: a(f'buffer_store_dwordx4 v[40:43], {v(vL16)}, {sWS}, {t1} offen offset:3072'))
        if o['xlate'] == 0: xpf()
        if o['touch'] & 4: self.exec(o['tm']); xpf(); self.exec(-1)
        if o['touch'] & 3:
            self.srd(((sWS, WSN),))
            def tc():
                a(f"""s_lshl_b32 {t1}, {sXCD}, 3
                s_add_u32 {t1}, {t1}, {sCG}
                s_lshl_b32 {t1}, {t1}, 2
                s_lshr_b32 {t2}, {sLI}, 3
                s_add_u32 {t1}, {t1}, {t2}
                s_lshl_b32 {t1}, {t1}, 10
                s_add_u32 {t1}, {t1}, {FL}
                v_min_u32 {v(vA)}, {7 if o['touch'] & 2 else 0}, v0
                v_lshl_add_u32 {v(vA)}, {v(vA)}, 7, {t1}
                s_mul_i32 {t1}, {sT}, {BLK}
                s_add_u32 {t1}, {t1}, {TB + oHS}
                v_writelane_b32 {v(vA)}, {t1}, 62
                v_writelane_b32 {v(vA)}, 0, 63""")
                a.untracked(f'buffer_load_dword {v(vDUM)}, {v(vA)}, {sWS}, 0 offen sc1')
            self.w(1, tc)
        def wr():
            a(f's_mov_b32 m0, {WRL}'); a(f'buffer_load_dwordx4 {v(vL16)}, {sWR}, 0 offen lds')
            self.exec(0xff); a(f'buffer_load_dwordx4 {v(vL16)}, {sWR}, 0 offen offset:1024 lds'); self.exec(-1)
        self.w(2, wr)
        a(f"""s_sub_u32 {t4}, {sW}, 1
        s_mul_i32 {sM}, {t4}, {3*9216}
        s_lshl_b32 {sCID}, {sM}, 1
        s_add_u32 {sCID}, {sCID}, {t0}
        s_cmp_eq_u32 {sJ}, 0
        s_cselect_b32 {t2}, 0, 18432
        s_sub_u32 {t2}, {t0}, {t2}
        s_add_u32 {sSTD}, {sCID}, 36864
        s_cmp_eq_u32 {sW}, 3
        s_cselect_b32 {sSTD}, {t2}, {sSTD}
        s_cselect_b32 {sKEY}, {HP - 1024}, 0
        s_add_u32 {sKEY}, {sKEY}, 896""")
        a.label(Lj)
        a(f'v_and_b32 {v(vI)}, 15, v0'); a(f'v_lshrrev_b32 {v(vG)}, 4, v0')
        self.common(); self.consts()
        a(f's_cmp_lg_u32 {sW}, 0'); a(f's_cbranch_scc1 {Lxt}')
        a(f"""v_bfe_u32 v30, v0, 2, 2
        v_and_b32 v31, 3, v0
        v_lshrrev_b32 v28, 3, v0
        v_mul_u32_u24 v28, {32768-128}, v28
        v_add_u32 v28, v28, {v(vL16)}
        v_lshlrev_b32 v29, 7, v0
        v_lshrrev_b32 v33, 1, {v(vG)}
        v_and_b32 v34, 1, {v(vG)}
        v_lshl_add_u32 v36, v34, 3, v30
        v_mul_u32_u24 v36, 144, v36
        v_add_u32 v36, {GATE}, v36
        v_and_b32 v35, 1, v0
        v_lshl_add_u32 v44, v31, 4, v36
        v_lshl_add_u32 v44, v33, 3, v44
        v_lshl_add_u32 v45, v35, 3, v36
        v_lshlrev_b32 v38, 7, {v(vG)}
        v_lshl_add_u32 v38, {v(vI)}, 4, v38
        v_add_u32 v38, 4096, v38
        v_lshl_add_u32 v39, v33, 9, {v(vL16)}
        s_mul_i32 {sSTD}, {sCG}, 82944
        s_add_u32 {sSTD}, {sSTD}, {WOP}""")
        def woaddr(idx, add):
            a(f"""s_lshr_b32 {t0}, {idx}, 1
            s_mul_i32 {t0}, {t0}, 4608
            s_add_u32 {sSLOT}, {sSTD}, {t0}
            s_and_b32 {t0}, {idx}, 1
            s_lshl_b32 {t0}, {t0}, 8""")
            if add: a(f's_add_u32 {sSLOT}, {sSLOT}, {add}')
            a(f's_add_u32 {sSLOT}, {sSLOT}, {t0}'); a(f's_add_u32 {sCID}, {sSLOT}, {t0}')
        def word(lds, B):
            for p in range(3):
                for jh in range(2): a(f'ds_read_b64_tr_b16 {v(B+4*p+2*jh, 2)}, v{45 if p == 2 else 44} offset:{lds - GATE + 576*jh + 64*p}')
        def wost(B):
            for p in range(2): a(f'buffer_store_dwordx4 {v(B+4*p,4)}, v39, {sWS}, {sCID} offen offset:{2048*p} sc1')
            self.exec(0x00ff00ff); a(f'buffer_store_dwordx4 {v(B+8,4)}, v38, {sWS}, {sSLOT} offen sc1'); self.exec(-1)
        a(f's_cmp_ge_u32 {sT}, 27'); a(f's_cbranch_scc1 {Lwt}')
        a(f"""v_lshl_add_u32 v32, {v(vG)}, 3, v30
        v_mul_u32_u24 v32, 144, v32
        v_lshl_add_u32 v40, v31, 3, v32
        v_add_u32 v40, {GATE}, v40
        v_lshrrev_b32 v33, 1, v31
        v_mul_u32_u24 v33, {4608-144}, v33
        v_mul_u32_u24 v34, 72, v31
        v_add3_u32 v41, v32, v33, v34
        v_add_u32 v41, {GATE+32}, v41
        v_bfe_u32 v33, v0, 1, 2
        v_mul_u32_u24 v33, 62208, v33
        v_bfe_u32 v34, v0, 3, 1
        v_mul_u32_u24 v34, 3456, v34
        v_lshlrev_b32 v35, 6, v35
        v_add3_u32 v42, v33, v34, v35
        v_lshl_add_u32 v42, {v(vG)}, 4, v42
        s_mul_i32 {t3}, {sM}, 6912
        s_add_u32 {t3}, {t3}, {sWB}
        s_lshl_b32 {t4}, {sKEY}, 10
        s_add_u32 {t1}, {t3}, {t4}
        s_lshl_b32 {t4}, {sKEY}, 7
        s_add_u32 {t2}, {t3}, {t4}""")
        a.wait(tkw)
        self.stamp('wld')
        for e in range(9):
            hd, kl = e >> 1, e & 1
            for jh in range(2):
                a(f'ds_read_b64_tr_b16 {v(ACC+4*e+2*jh, 2)}, ' + (f'v40 offset:{(32*kl + 4*jh)*144 + 72*(hd>>1) + 40*(hd&1)}' if e < 8 else f'v41 offset:{576*jh}'))
        for e in range(8):
            if e > 1 and not e & 1: a(f's_add_u32 {t1}, {t1}, 62208')
            a(f'buffer_store_dwordx4 {v(ACC+4*e,4)}, {v(vL16)}, {sWS}, {t1} offen offset:{3456*(e&1)} sc1')
            if e == 3: a.wait(tko); word(WOL, XFB)
        a(f'buffer_store_dwordx4 {v(ACC+32,4)}, v42, {sWS}, {t2} offen offset:3072 sc1')
        a.wlg(0)
        a.label(Lf)
        woaddr(sT, 0); wost(XFB)
        self.stamp('wst')
        if o['bar1']: a('s_barrier')
        self.nonce()
        a(f"""s_lshl_b32 {t1}, {sCG}, 12
        s_add_u32 {t1}, {t1}, {FL}
        s_lshl_b32 {t2}, {sT}, 7
        s_add_u32 {t2}, {t2}, {t1}
        s_lshl_b32 {t3}, {sXCD}, 15
        s_add_u32 {t1}, {t1}, {t3}
        v_mov_b32 v32, {sNON}
        v_mov_b32 v33, {sNON}
        v_mov_b32 v34, {sNON}
        v_mov_b32 v35, {sNON}""")
        a.wvm(0)
        a(f'buffer_store_dwordx4 v[32:35], v28, {sWS}, {t2} offen sc1')
        self.stamp('wfl')
        if o['pois'] == 's':
            for u in self.poisonL(0, 40, '') + (self.poisonG(0, 40) if o['kg'] < 0 else []): self.run(u)
        a.wvm(0)
        self.stamp('wack')
        a('s_mov_b32 exec_hi, 0')
        self.poll(lambda: a(f'buffer_load_dword v30, v29, {sWS}, {t1} offen sc1'), lambda: a(f'v_cmp_ne_u32 vcc, {sNON}, v30'))
        self.exec(-1)
        self.stamp('wpoll')
        a('s_branch L_main')

        a.label(Lwt)
        woaddr(sM, 16*4608)
        a.wait(tko)
        self.stamp('wld')
        word(GATE, ACC); word(WOL, XFB); wost(ACC)
        a.wlg(0); a(f's_branch {Lf}')

        a.label(Lxt)
        XV = 66
        if o['xlate'] == 1: xpf()
        if o['pre']:
            def pre():
                a(f"""v_lshrrev_b32 v38, 5, v0
                v_mul_u32_u24 v38, {LS - 32*256}, v38
                v_lshl_add_u32 v38, v0, 8, v38
                s_lshl_b32 {t0}, {sXCD}, 13
                s_add_u32 {t0}, {t0}, {CAND}""")
                a.untracked(f'buffer_load_dword {v(vDUM)}, v38, {sWS}, {t0} offen sc1')
        self.ones()
        def hz():
            a(f'v_mov_b32 v36, 0\nv_mov_b32 v37, 0\nv_mov_b32 v38, 0\nv_mov_b32 v39, 0\nv_add_u32 {v(vA)}, {HW}, {v(vL16)}')
            a(f'ds_write_b128 {v(vA)}, v[36:39]'); a(f'ds_write_b128 {v(vA)}, v[36:39] offset:1024')
        self.w(1, hz)
        a(f"""v_lshrrev_b32 {v(vA)}, 3, v0
        v_and_b32 {v(vB)}, 7, v0
        v_and_b32 v{XV}, 6, {v(vA)}
        v_xor_b32 v{XV}, v{XV}, {v(vB)}
        v_mul_u32_u24 {v(vB)}, 2304, {v(vA)}
        v_lshl_add_u32 v{XV}, v{XV}, 4, {v(vB)}
        s_mul_i32 {t2}, {sW}, 96
        s_add_u32 {t2}, {t2}, {NM + 64 - 96}
        v_lshl_add_u32 v64, v0, 2, {t2}
        v_and_b32 v46, 6, v0
        v_xor_b32 v46, v46, {v(vA)}
        v_and_b32 {v(vB)}, 7, v0
        v_lshl_add_u32 {v(vB)}, {v(vB)}, 7, {sM}
        v_lshl_add_u32 v46, v46, 4, {v(vB)}
        v_lshlrev_b32 v55, 2, {v(vG)}
        v_sub_u32 v55, {v(vI)}, v55
        s_add_u32 {t2}, {sKEY}, 128""")
        for k in range(4): a(f'v_mov_b32 {v(WDF+k)}, {ONES}')
        for b in range(1, 9): a(f'v_add_u32 v{46+b}, {t2}, v{45+b}')
        self.nonce()
        if o['xlate'] == 2: xpf()
        def chain():
            if not o['pads']: return
            a.wait(tkc); a.wlg(0)
            for l in ('s_mov_b64 exec, 0', f's_cmp_eq_u32 {sW}, 2', 's_cbranch_scc1 L_pad1', f's_cmp_eq_u32 {sW}, 3', 's_cbranch_scc1 L_pad2', 's_branch L_pad0', 'L_padret:'): a.raw(l)
            self.exec(-1)
            self.stamp('chain')
        if not o['xall']: chain()
        tx = {}
        def xl(k, b):
            def f():
                if k == 1 and b == 0: a(f's_add_u32 {sCID}, {sCID}, 18432')
                a(f's_add_u32 m0, {sM}, {9216*k + 896*b}' if k < 2 or not b else f's_add_u32 m0, m0, {sKEY}')
                tx[k] = a(f'buffer_load_dwordx4 v{XV}, {sX}, {sCID if k < 2 else sSTD} offen offset:{128*b}{nt} lds')
            return f
        def rd(k):
            a.wait(tx[k])
            for b in range(9): a(f'ds_read_b128 {v(ACC + 36*(k&1) + 4*b, 4)}, ' + (f'v46 offset:{9216*k + 1024*b}' if k < 2 else f'v{46+b} offset:18432'))
        def dots(k, U):
            S = WDF + 4 + 8*k
            self.weave([f'v_mfma_f32_16x16x32_bf16 {v(S+4*h,4)}, {v(ACC + 36*(k&1) + 4*b, 4) if h else v(WDF,4)}, {v(ACC + 36*(k&1) + 4*b, 4)}, {v(S+4*h,4) if b else 0}'
                        for b in range(9) for h in range(2)], U)
        a.wvm(0)
        self.stamp('prepld')
        for b in range(o['xpre']): xl(0, b)()
        if o['bar1']: a('s_barrier')
        for b in range(o['xpre'], 9): xl(0, b)()
        self.w(2, self.wrsum)
        for b in range(9): xl(1, b)()
        X2 = [xl(2, b) for b in range(9)]
        U = self.poisonL(0, 40, '') + (self.poisonG(0, 40) if o['kg'] < 0 else []) if o['pois'] == 's' else []
        if o['pre']: U.append(lambda: (a(f's_lshl_b32 {t1}, {sLI}, 2'), a(f's_add_u32 {t1}, {t1}, {sW}'), self.only(f's_cmp_eq_u32 {t1}, {31*4+1}', pre)))
        U += self.pfetch('s', 36, 1)
        if o['xall']:
            while X2: X2.pop(0)()
            X2 = U; U = []
        self.stamp('prepst')
        if o['xall']: chain()
        rd(0); dots(0, X2)
        rd(1); dots(1, U + self.pfetch('t', 36, 1)); rd(2)
        self.stamp('xin')
        def fin(U):
            dots(2, U)
            for r in range(4):
                a(f'v_cmp_eq_u32 vcc, {r}, v55')
                if r == 0:
                    for k in range(3): a(f'v_mov_b32 v{28+2*k}, {v(WDF+4+8*k)}')
                for k in range(3): a(f'v_cndmask_b32 v{29+2*k}, {v(29+2*k) if r else 0}, {v(WDF+8+8*k+r)}, vcc')
            self.dpp('v_add_f32', range(28, 34), ['row_ror:8']); self.xsum([29, 31, 33], 34)
            a(f's_mov_b32 {t0}, {f32(1/576)}'); a(f'v_mov_b32 v40, {f32(1e-5)}')
            for op in range(5):
                for S in (28, 30, 32):
                    a([f'v_mul_f32 {v(S)}, {f32(-1/576)}, {v(S)}', f'v_fma_f32 {v(S+1)}, {v(S+1)}, {t0}, v40', f'v_fma_f32 {v(S+1)}, -{v(S)}, {v(S)}, {v(S+1)}',
                       f'v_max_f32 {v(S+1)}, v40, {v(S+1)}', f'v_rsq_f32 {v(S+1)}, {v(S+1)}'][op])
            a(f's_cmp_eq_u32 {sW}, 3'); a(f's_cselect_b32 {t2}, 288, 0'); a(f's_cselect_b32 {t4}, 320, 0'); a(f'v_subrev_u32 v41, {t2}, v64'); a(f'v_subrev_u32 v42, {t4}, v64')
            def put():
                self.exec(0xff)
                for k in range(2): a(f'ds_write2_b32 v64, v{28+2*k}, v{29+2*k} offset0:{8*k} offset1:{80+8*k}')
                for r in (41, 42): a(f'ds_write2_b32 v{r}, v32, v33 offset0:16 offset1:96')
                self.exec(-1)
            self.only(f's_cmp_lg_u32 {sW}, 0', put)
        self.fin = fin
        if not o['defer']: fin([])
        self.stamp('flag0')
        a('s_branch L_main')
        a.raw('L_startend:')
        a.raw('.p2align 12')
        a.label('L_main')
        a.barrier()
        self.stamp('h0')

    def ones(self):
        a = self.a
        def f():
            a(f'v_mul_u32_u24 {v(vA)}, {HP}, v0'); a(f'v_add_u32 {v(vA)}, {LH + 1024}, {v(vA)}')
            for k in range(4): a(f'v_mov_b32 {v(XFB+k)}, {ONES}')
            self.exec(0x1ff); a(f'ds_write_b128 {v(vA)}, {v(XFB,4)}'); self.exec(-1)
        self.w(2, f)

    def gu(self, mat, q):
        return [f's_add_u32 m0, {sGL}, {(UP if mat else GATE) + 4096*q}', f's_add_u32 s1, {sGU}, {589824*q}',
                f'buffer_load_dwordx4 {v(vD if mat else vC)}, {sWU if mat else sWG}, s1 offen{self.o["nt"]} lds']
    def gu_at(self, pos):
        return [self.gu(m, q) for m, k in ((0, self.o['gate']), (1, self.o['up'])) if k == pos for q in range(9)]

    def consts(self):
        a = self.a
        a(f'''v_lshrrev_b32 v28, 3, {v(vI)}
        v_mul_u32_u24 v28, 9216, v28
        v_and_b32 v29, 7, {v(vI)}
        v_and_b32 v31, 6, v29
        v_xor_b32 v32, v31, {v(vG)}
        v_lshlrev_b32 v32, 4, v32
        v_lshl_add_u32 v32, v29, 7, v32
        v_add_u32 {v(vXe)}, v32, v28
        v_xor_b32 {v(vXo)}, 64, {v(vXe)}
        v_cmp_gt_u32 vcc, 8, {v(vI)}
        v_mov_b32 v33, {LH + 1024}
        v_add_u32 v34, {LH - 9216}, {v(vXe)}
        v_add_u32 v35, {LH - 9216}, {v(vXo)}
        v_cndmask_b32 {v(vHe)}, v34, v33, vcc
        v_cndmask_b32 {v(vHo)}, v35, v33, vcc''')
        a(f's_mul_i32 {t0}, {sCG}, 9'); a(f's_mul_i32 {t1}, {sW}, 18432')
        a(f'v_lshl_add_u32 v33, v29, 7, v28'); a(f'v_add_u32 v33, {t1}, v33')
        for P in range(3):
            a(f's_add_u32 {t2}, {t0}, {4*P}')
            if P < 2: a(f'v_add_u32 v34, {t2}, {v(vG)}')
            else: a(f'v_mov_b32 v34, {t2}')
            a(f'''v_lshrrev_b32 v35, 3, v34
            v_and_b32 v34, 7, v34
            v_xor_b32 v34, v34, v31
            v_lshl_add_u32 v35, v35, 10, v33
            v_lshl_add_u32 {v(vRA+P)}, v34, 4, v35''')
        a(f'v_and_b32 v34, 1, {v(vG)}'); a(f'v_lshl_add_u32 {v(vRA+2)}, v34, 3, {v(vRA+2)}')
        a(f'''v_bfe_u32 v35, v0, 2, 2
        v_lshl_add_u32 v35, {v(vG)}, 3, v35
        v_mul_u32_u24 v35, 9216, v35
        v_xor_b32 v36, v34, v0
        v_and_b32 v36, 3, v36
        v_lshl_add_u32 {v(vC)}, v36, 4, v35
        v_xor_b32 {v(vD)}, 32, {v(vC)}
        v_lshlrev_b32 {v(vF)}, 4, {v(vG)}
        v_lshl_add_u32 {v(vF)}, {v(vI)}, 6, {v(vF)}
        v_mov_b32 v35, {OOB}
        v_cmp_gt_u32 vcc, 6, {v(vI)}
        s_lshl_b32 {t1}, {sT}, 12
        s_add_u32 {t1}, {t1}, {XF}
        v_cndmask_b32 {v(vF)}, v35, {v(vF)}, vcc
        v_min_u32 v37, 31, v0
        v_lshl_add_u32 {v(vE)}, v37, 7, {t1}''')
        a(f'''v_lshlrev_b32 v34, 14, v34
        v_lshrrev_b32 v35, 1, {v(vG)}
        v_lshl_add_u32 v34, v35, 8, v34
        v_lshl_add_u32 {v(vOB)}, {v(vI)}, 4, v34''')
        a(f'v_mov_b32 v36, 0x{BIG:x}'); a('v_mov_b32 v37, 0xffff'); a('v_mov_b32 v38, 0xffff0000')
        for r in range(4):
            a(f'''v_lshl_add_u32 v34, {v(vG)}, 2, {r}
            v_cmp_le_u32 {sMK[r]}, v34, {v(vI)}
            v_sub_u32 v35, {v(vI)}, v34
            v_and_b32 v35, 8, v35
            v_cmp_eq_u32 vcc, 0, v35
            v_cndmask_b32 v{40+r}, 0, v{37+(r&1)}, {sMK[r]}
            v_cndmask_b32 {v(vM+r)}, v36, 0, vcc''')
        a(f'v_or_b32 {v(vPM)}, v40, v41'); a(f'v_or_b32 {v(vPM+1)}, v42, v43')
        a(f'''v_and_b32 v34, 0x33, v0
        v_mov_b32 v35, 0x3f80
        v_mov_b32 v36, 0x3f800000
        v_cmp_eq_u32 vcc, 16, v34
        v_cndmask_b32 {v(vSEL)}, 0, v35, vcc
        v_cmp_eq_u32 vcc, 17, v34
        v_cndmask_b32 {v(vSEL)}, {v(vSEL)}, v36, vcc
        v_cmp_eq_u32 vcc, 18, v34
        v_cndmask_b32 {v(vSEL+1)}, 0, v35, vcc''')

    def xread(self, ks, t, d):
        if t == 0: return f'ds_read_b128 {v(d,4)}, {v(vHo if ks & 1 else vHe)} offset:{HP*(ks>>1)}'
        return f'ds_read_b128 {v(d,4)}, {v(vXo if ks & 1 else vXe)} offset:{18432*(t-1) + 1024*(ks>>1)}'
    def mm(self, ks, t, n, x):
        d = ACC + 20 * n + 4 * t; w = v(Wf(ks, n), 4); x = v(x, 4)
        A, B = (x, w) if n == 2 else (w, x)
        return f'v_mfma_f32_16x16x32_bf16 {v(d,4)}, {A}, {B}, {v(d,4) if ks else 0}'
    def weave(self, mms, fill):
        n = len(mms)
        for k, m in enumerate(mms):
            self.a(m)
            if fill and (k % 2 or len(fill) > (n - k) // 2): self.run(fill.pop(0))
        while fill: self.run(fill.pop(0))
    def wd_units(self):
        assert self.wdn >= 36 or self.o['noffn']
        U = [[f'v_bfe_u32 {v(vA)}, v0, 2, 2', f'v_lshl_add_u32 {v(vA)}, {v(vG)}, 3, {v(vA)}', f'v_mul_u32_u24 {v(vA)}, 1152, {v(vA)}'],
             [f'v_and_b32 {v(vB)}, 3, v0', f'v_lshl_add_u32 {v(vA)}, {v(vB)}, 3, {v(vA)}', f's_mul_i32 {t0}, {sW}, 288', f's_add_u32 {t0}, {t0}, {UP}', f'v_add_u32 {v(vA)}, {t0}, {v(vA)}']]
        for n in range(9): U.append([f'ds_read_b64_tr_b16 {v(WDF+4*n+2*jh,2)}, {v(vA)} offset:{32*n + 4608*jh}' for jh in range(2)])
        return U
    def gemm0(self):
        a = self.a; o = self.o; D = o['depth']
        def wload(ks):
            r = [[f's_add_u32 {t3}, {sWB}, {3456*ks}', f'buffer_load_dwordx4 {v(Wf(ks,0),4)}, {v(vL16)}, {sWS}, {t3} offen{o["wsc"]}']]
            for n in (1, 2): r.append([f'buffer_load_dwordx4 {v(Wf(ks,n),4)}, {v(vL16)}, {sWS}, {t3} offen offset:{1024*n}{o["wsc"]}'])
            r.append([f'buffer_load_dwordx4 {v(Wf(ks,3),4)}, {v(vF)}, {sWS}, {t3} offen offset:3072{o["wsc"]}'])
            return r
        xb = lambda ks, t: XFB + 20 * (ks & 1) + 4 * t
        extra = {ks: [] for ks in range(18)}; hook = {}
        def wpf(j):
            a(f's_add_u32 s1, {sM if j == 4 else sKEY}, {3456*4*j}')
            a.untracked(f'buffer_load_dword {v(vDUM)}, v{52 if j == 4 else 49}, {sWS}, s1 offen{o["wsc"]}')
        if o['wpf']:
            a(f'''s_and_b32 {t4}, {sT}, 3
            s_mul_i32 {sKEY}, {t4}, 3456
            s_add_u32 {sKEY}, {sKEY}, {sWB}
            s_mul_i32 {t4}, {t4}, {14*128}
            s_min_u32 {t4}, {t4}, {40*128}
            s_add_u32 {sM}, {t4}, {sWB}
            v_min_u32 v49, 26, v0
            v_lshlrev_b32 v49, 7, v49
            v_min_u32 v52, {13*128}, v49''')
        W0 = sum((wload(ks) for ks in range(D)), [])
        if o['defer']:
            n0, n1 = o['defer']
            for x in W0[:n0]: self.run(x)
            self.fin(W0[n0:n1]); W0 = W0[n1:]; self.stamp('fin')
            hook[o['kb']] = lambda: a('s_barrier')
        for t in range(5): a(self.xread(0, t, xb(0, t)))
        for x in W0: self.run(x)
        for j, k in enumerate(o['wpf']):
            if k >= 0: extra[k].append(lambda j=j: wpf(j + 1))
        M = self.pfetch('m', 56)
        if M:
            Md = [u for u in M if not callable(u) and 'lds' in u[-1]]; Ms = [u for u in M if callable(u)]; assert len(Ms) <= 1
            for u in M:
                if u not in Md and u not in Ms: self.run(u)
            a({'cg': f's_mov_b32 {sOWN}, {sCG}', 'q': f's_lshr_b32 {sOWN}, {sLI}, 3', 'x': f's_mov_b32 {sOWN}, {sXCD}', 'c4': f's_and_b32 {sOWN}, {sCG}, 3', 'c2': f's_and_b32 {sOWN}, {sCG}, 1'}[o['msel']])
            def burst():
                for u in Ms: self.run(u)
                if Md: self.only(f's_cmp_lt_u32 {sLI}, 18', lambda: [self.run(u) for u in Md])
            for k, ks in enumerate(o['mks']): extra[ks].append(lambda k=k: self.only(f's_cmp_eq_u32 {sOWN}, {k}', burst))
        a(f'''s_getreg_b32 {t0}, hwreg(HW_REG_XCC_ID, 0, 4)
        s_or_b32 {t0}, {t0}, {sNON}
        v_mov_b32 v46, {t0}
        s_lshl_b32 {t1}, {sT}, 3
        s_add_u32 {t1}, {t1}, {sCG}
        s_lshl_b32 {t1}, {t1}, 2
        s_add_u32 {t1}, {t1}, {sW}
        s_lshl_b32 {t1}, {t1}, 7
        s_add_u32 {t1}, {t1}, {XF}''')
        if o['pois'] == 'g':
            for k, u in enumerate(self.poisonL(0, 40, '')): extra[1 + k].append(u)
        if o['kg'] >= 0: extra[o['kg']] += [[f'v_mov_b32 v{40+k}, -1' for k in range(4)]] + self.poisonG(0, 40)
        def xf():
            if o['pois'] == 'g': a.wait(self.tk_p)
            self.exec(0xff); a(f'buffer_store_dwordx4 v[46:49], {v(vL16)}, {sWS}, {t1} offen sc1'); self.exec(-1)
        extra[o['kx']].append(xf)
        if o['up'] != 'x':
            hook[2] = lambda: a('s_barrier')
            for k, u in enumerate(self.wd_units()): extra[2 + k * 3 // 4].append(u)
        fl = lambda: a(f'buffer_load_dword v54, {v(vE)}, {sWS}, 0 offen sc1')
        extra[o['kf']].append(fl)
        def chk():
            Lr, Lk = self.L('R'), self.L('C')
            a('v_cmp_ne_u32 vcc, v54, v46'); a(f's_cbranch_vccnz {Lr}'); a.label(Lk)
            def cold():
                a.label(Lr); a.wall()
                self.poll(fl, lambda: (a('v_xor_b32 v47, v54, v46'), a('v_cmp_lt_u32 vcc, 15, v47')))
                a('v_cmp_ne_u32 vcc, 0, v47'); a(f's_cbranch_vccz {Lk}'); a(f's_mov_b32 {sSLOW}, 1'); a(f's_branch {Lk}')
            self.colds.append(cold)
        hook[o['kf'] + D] = chk
        if o['val']: V = self.valid(0, 55); extra[o['kf']].append(V[0]); extra[o['kf'] + D].insert(0, V[1])
        kt = 18 - D
        if o['wopf']:
            extra[o['wopf'] - 1].append([f'v_min_u32 v53, 41, v0', f'v_lshlrev_b32 v53, 7, v53'])
            def wp():
                a(f'''s_and_b32 s1, {sT}, 3
                s_lshl_b32 {t4}, {sCG}, 2
                s_add_u32 s1, s1, {t4}
                s_mul_i32 s1, s1, 20736
                s_mul_i32 {t4}, {sW}, 5120
                s_add_u32 s1, s1, {t4}
                s_add_u32 s1, s1, {WOP}''')
                a.untracked(f'buffer_load_dword {v(vDUM)}, v53, {sWS}, s1 offen sc1')
            extra[o['wopf']].append(wp)
        if o['valx']: V = self.validx(57); extra[o['valx'] - 1].append(V[0]); extra[o['valx']].append(V[1])
        extra[kt] += self.pfetch('g', 50)
        for q, u in enumerate(self.gu_at('g')): extra[kt + q * D // 18].append(u)
        for ks in range(18):
            if ks in hook: hook[ks]()
            if ks in o['gst']: self.stamp(f'g{ks}')
            fill = []
            if ks + 1 < 18: fill += [[self.xread(ks + 1, t, xb(ks + 1, t))] for t in range(5)]
            if ks + D < 18: fill += wload(ks + D)
            fill += extra[ks]
            if ks == 17: fill += [[x] for x in self.pre_attn()]
            self.weave([self.mm(ks, t, n, xb(ks, t)) for t in range(5) for n in range(4)], fill)
        self.stamp('gemm0')
    HB = staticmethod(lambda ks: XFB + 16 + 4 * (ks % 6))
    def phase2(self, extra):
        pa = [[x] for x in self.pre_attn()]; k0 = 18 - (len(pa) + 1) // 2
        assert len(extra) <= 3 * k0
        for ks in range(18):
            fill = [[self.xread(ks + 5, 0, self.HB(ks + 5))]] if ks + 5 < 18 else []
            src, n = (extra, 3) if ks < k0 else (pa, 2)
            fill += src[:n]; del src[:n]
            self.weave([self.mm(ks, 0, n, self.HB(ks)) for n in range(4)], fill)
    def gemm1(self):
        a = self.a; o = self.o; sx = self.sx
        xb = lambda ks, t: XFB + 16 * (1 - (ks & 1)) + 4 * (t - 1)
        extra = {ks: [] for ks in range(18)}
        q0, q1 = o['xq']; assert q1 >= 2 * (o['h3'] // 2 + 1)
        for k, q in enumerate(range(q0, q1)): extra[k // o['xr']].append(lambda q=q: setattr(self, 'tk_x', self.x1piece(q)))
        U1 = [(lambda q=q: setattr(self, 'tk_gu', self.x1piece(q))) for q in range(q1, 18)]
        self.xlate = []
        if o['xh3']: self.xlate, U1 = U1, []
        U = self.pfetch('x', 64)
        for u in self.gu_at('x'): U.append(lambda u=u: setattr(self, 'tk_gu', self.run(u)))
        fa = self.ffn_addr(); U += U1
        ks = 0
        while U:
            n = max(0, o['gux'] - len(extra[ks])); extra[ks] += U[:n]; del U[:n]; ks += 1
        P = XFB + 32; k0, k1, k2, k3 = o['rp']; sp = self.sp
        R = [[f'v_mov_b32 {v(P+k)}, -1' for k in range(4)], [f'buffer_store_dwordx4 {v(P,4)}, {v(vOB)}, {sWS}, {sOBs} offen{sp}'],
             [f's_add_u32 s1, {sOBs}, 32768', f'buffer_store_dwordx4 {v(P,4)}, {v(vOB)}, {sWS}, s1 offen{sp}'],
             lambda: (self.exec(0xffff), setattr(self, 'tk_p', a(f'buffer_store_dwordx4 {v(P,4)}, {v(vL16)}, {sWS}, {sORs} offen{sp}')), self.exec(-1))]
        extra[k0] += R[:2]; extra[k0 + 1] += R[2:]
        def rf():
            a.wait(self.tk_p); self.run(self.xfaddr('s1')); self.exec(0xff); a(f'buffer_store_dwordx4 {v(P,4)}, {v(vL16)}, {sWS}, s1 offen{sp}'); self.exec(-1)
        extra[k1] += [rf] + self.poisonG(1, P)
        fl = lambda: a(f'buffer_load_dword {v(P+5)}, {v(P+4)}, {sWS}, 0 offen sc1')
        extra[k2] += [[f's_lshl_b32 s1, {sT}, 12', f's_add_u32 s1, s1, {XF}', f'v_min_u32 {v(P+4)}, 31, v0', f'v_lshl_add_u32 {v(P+4)}, {v(P+4)}, 7, s1'], fl]
        self.rchk = lambda: self.verify(fl, lambda: a(f'v_cmp_ne_u32 vcc, -1, {v(P+5)}'))
        extra[o['h3'] - 1] += [fa[k:k+2] for k in range(0, len(fa), 2)]
        assert ks <= o['h3'], ks
        hook = self.hooks()
        for t in range(1, 5): a(self.xread(0, t, xb(0, t)))
        for ks in range(18):
            if ks in hook: hook[ks]()
            fill = [[self.xread(ks + 1, t, xb(ks + 1, t))] for t in range(1, 5)] if ks < 17 else [[self.xread(k, 0, self.HB(k))] for k in range(5)]
            self.weave([self.mm(ks, t, n, xb(ks, t)) for t in range(1, 5) for n in range(4)], fill + extra[ks])
        if 18 in hook: hook[18]()
        self.stamp('ph1')
        a(f's_cmp_lg_u32 {sOWN}, 0'); a(f's_cbranch_scc1 L_patch{sx}')
        self.phase2([])
        a.label(f'L_patched{sx}')
        self.colds.insert(0, self.patch)
        self.stamp('gemm1')
    def pre_attn(self):
        r = [f'v_lshlrev_b32 {v(vA)}, 2, {v(vI)}', f'v_add_u32 {v(vA)}, {NM}, {v(vA)}',
             f'v_lshlrev_b32 {v(vB)}, 4, {v(vG)}', f'v_add_u32 {v(vB)}, {NM}, {v(vB)}']
        r += [f'ds_read_b128 {v(RES,4)}, {v(vRA)}', f'ds_read_b128 {v(RES+4,4)}, {v(vRA+1)}', f'ds_read_b64 {v(RES+8,2)}, {v(vRA+2)}']
        r += [f'ds_read2_b32 {v(PAIR+2*t,2)}, {v(vA)} offset0:{16*t} offset1:{80+16*t}' for t in range(5)]
        return r + self.vform(0) + self.vform(1)
    def vform(self, t):
        d = XFB + 8 * (t & 1)
        return [f'ds_read_b128 {v(d,4)}, {v(vB)} offset:{64*t}', f'ds_read_b128 {v(d+4,4)}, {v(vB)} offset:{320+64*t}']

    def attn(self, lay):
        a0 = self.a; o = self.o; W = sWS
        a0.barrier()
        self.stamp(f'abar{lay}')
        a0(f's_mul_i32 {t0}, {sW}, 20480'); a0(f's_mul_i32 {t1}, {sCG}, 82944'); a0(f's_add_u32 {t1}, {t1}, {t0}')
        wo = []
        for q in range(21):
            x = []
            if q % 4 == 0: x += [f's_add_u32 m0, {t0}, {1024*q}', f's_add_u32 {t2}, {t1}, {WOP + 1024*q}']
            x.append(f'buffer_load_dwordx4 {v(vL16)}, {sWS}, {t2} offen offset:{1024*(q%4)} sc1 lds')
            wo.append(x)
        dma = list(wo); post = []
        if lay == 0:
            dma += self.gu_at('a'); post += self.gu_at('o')
        cnt = [0]; self.tk_wo = None
        def drain(l):
            x = l.pop(0); tk = self.run(x)
            if x is wo[-1]: self.tk_wo = tk
        def a(t):
            for l in t.strip().split('\n'):
                a0(l.strip()); cnt[0] += 1
                if cnt[0] >= o['wo0'][lay] and cnt[0] % (o['wostep'][lay] if type(o['wostep']) is tuple else o['wostep']) == 0 and dma: drain(dma)
        csQ, csK, csR, csV = CS, CS + 4, CS + 8, CS + 12
        for t in range(5): a(f'v_mul_f32 {v(RSK+t)}, {f32(18**-0.5 * LOG2E)}, {v(PAIR+2*t+1)}')
        a(f'v_mov_b32 {v(csV)}, {v(Vb)}\nv_mov_b32 {v(csV+1)}, {v(Vb)}')
        for cs, b in ((csR, Rb), (csK, Kb), (csQ, Qb)):
            for r in range(4): a(f'v_mov_b32_dpp {v(cs+r)}, {v(b+r)} row_newbcast:0 row_mask:0xf bank_mask:0xf')
        a(f'v_permlane32_swap_b32 {v(csV)}, {v(csV+1)}')
        SC = XFB + 20
        def fold(t):
            P = v(PAIR + 2 * t, 2); kp = v(RSK + (t & ~1), 2); ks_ = f'op_sel:[0,{t&1}] op_sel_hi:[1,{t&1}]'
            q, k, vv, r = Qb + 4*t, Kb + 4*t, Vb + 4*t, Rb + 4*t
            for b, cs in ((r, csR), (k, csK)) + (((q, csQ),) if t else ()):
                for h in (0, 2): a(f'v_pk_fma_f32 {v(b+h,2)}, {v(cs+h,2)}, {P}, {v(b+h,2)} op_sel_hi:[1,0,1]')
            a(f'v_pk_mul_f32 {v(r,2)}, {v(r,2)}, {P} op_sel:[0,1] op_sel_hi:[1,1]')
            a(f'v_pk_mul_f32 {v(r+2,2)}, {v(r+2,2)}, {kp} {ks_}')
            for h in (0, 2): a(f'v_pk_mul_f32 {v(k+h,2)}, {v(k+h,2)}, {kp} {ks_}')
            nm = XFB + 8 * (t & 1)
            if t:
                for h in (0, 2): a(f'v_pk_mul_f32 {v(q+h,2)}, {v(q+h,2)}, {P} op_sel:[0,1] op_sel_hi:[1,1]')
            for h in (0, 2): a(f'v_pk_fma_f32 {v(vv+h,2)}, {v(nm+h,2)}, {v(csV,2)}, {v(vv+h,2)} op_sel_hi:[1,0,1]')
            for h in (0, 2): a(f'v_pk_mul_f32 {v(vv+h,2)}, {v(vv+h,2)}, {v(nm+4+h,2)}')
            if t: a(f'v_cvt_pk_bf16_f32 {v(q)}, {v(q)}, {v(q+1)}\nv_cvt_pk_bf16_f32 {v(q+1)}, {v(q+2)}, {v(q+3)}')
            a(f'v_cvt_pk_bf16_f32 {v(q+2)}, {v(r)}, {v(r+1)}\nv_mov_b32 {v(q+3)}, 0x3f80')
            a(f'v_cvt_pk_bf16_f32 {v(k)}, {v(k)}, {v(k+1)}\nv_cvt_pk_bf16_f32 {v(k+1)}, {v(k+2)}, {v(k+3)}')
            if t: a(f'v_mfma_f32_16x16x32_bf16 {v(q-4,4)}, {v(k-4,4)}, {v(q,4)}, {v(vM,4)}')
            a(f'v_cvt_pk_bf16_f32 {v(k+2)}, {v(r+2)}, {v(r+3)}\nv_mov_b32 {v(k+3)}, 0')
            a(f'v_mfma_f32_16x16x16_bf16 {v(r,4)}, {v(q+2,2)}, {v(vSEL,2)}, 0')
            a(f'v_cvt_pk_bf16_f32 {v(Vb+2*t)}, {v(vv)}, {v(vv+1)}\nv_cvt_pk_bf16_f32 {v(Vb+2*t+1)}, {v(vv+2)}, {v(vv+3)}')
            if t: a(f'v_mfma_f32_16x16x32_bf16 {v(SC+4*(t-1),4)}, {v(k,4)}, {v(q,4)}, {v(vM,4)}')
            if t + 2 < 5:
                for x in self.vform(t + 2): a(x)
        for t in range(5): fold(t)
        self.stamp(f'fold{lay}')
        MX = XFB + 16
        for h in (0, 2): a(f'v_pk_add_f32 {v(Qb+h,2)}, {v(Qb+h,2)}, {sBIAS}')
        for t in range(4):
            sc_ = SC + 4*t
            for r in range(4): a(f'v_cndmask_b32 {v(sc_+r)}, {v(Qb+4*t+r)}, {v(sc_+r)}, {sMK[r]}')
            a(f'v_max3_f32 {v(MX+t)}, {v(sc_)}, {v(sc_+1)}, {v(sc_+2)}\nv_max_f32 {v(MX+t)}, {v(MX+t)}, {v(sc_+3)}')
        vr = []
        for t in range(5):
            r = Rb + 4*t
            vr += [f'v_cvt_pk_bf16_f32 {v(Rb+2*t)}, {v(r)}, {v(r+1)}', f'v_cvt_pk_bf16_f32 {v(Rb+2*t+1)}, {v(r+2)}, {v(r+3)}']
        a(f'''v_permlane32_swap_b32 {v(MX)}, {v(MX+1)}
        {vr[0]}
        v_permlane32_swap_b32 {v(MX+2)}, {v(MX+3)}
        v_max_f32 {v(MX)}, {v(MX)}, {v(MX+1)}
        v_max_f32 {v(MX+2)}, {v(MX+2)}, {v(MX+3)}
        {vr[1]}
        {vr[2]}
        v_permlane16_swap_b32 {v(MX)}, {v(MX+2)}
        v_max_f32 {v(MX)}, {v(MX)}, {v(MX+2)}
        v_mov_b32 {v(MX+2)}, {v(MX)}
        {vr[3]}
        {vr[4]}
        v_permlane16_swap_b32 {v(MX)}, {v(MX+2)}
        v_mov_b32 {v(MX+1)}, {v(MX)}
        v_mov_b32 {v(MX+3)}, {v(MX+2)}
        {vr[5]}
        v_permlane32_swap_b32 {v(MX)}, {v(MX+1)}
        v_permlane32_swap_b32 {v(MX+2)}, {v(MX+3)}''')
        for x in vr[6:]: a(x)
        for t in range(4):
            sc_ = SC + 4*t
            for h in (0, 2): a(f'v_pk_add_f32 {v(sc_+h,2)}, {v(sc_+h,2)}, {v(MX+(t&~1),2)} op_sel:[0,{t&1}] op_sel_hi:[1,{t&1}] neg_lo:[0,1] neg_hi:[0,1]')
        def pv(t, k):
            p = Kb + 4*t
            return f'v_mfma_f32_16x16x32_bf16 {v((SC if k else XFB)+4*t,4)}, {v((Vb if k else Rb)+2*t,4)}, {v(p,4)}, 0'
        for t in range(4):
            sc_ = SC + 4*t; p = Kb + 4*t
            for r in range(4):
                a(f'v_exp_f32 {v(sc_+r)}, {v(sc_+r)}')
                if t and r in (1, 2): a(pv(t - 1, r - 1))
            a(f'v_cvt_pk_bf16_f32 {v(p+2)}, {v(sc_)}, {v(sc_+1)}\nv_cvt_pk_bf16_f32 {v(p+3)}, {v(sc_+2)}, {v(sc_+3)}')
            for h in range(2): a(f'v_bfi_b32 {v(p+h)}, {v(vPM+h)}, 0, {v(p+2+h)}')
            for h in range(2): a(f'v_and_b32 {v(p+2+h)}, {v(vPM+h)}, {v(p+2+h)}')
        OP = Qb
        a(f'v_rcp_f32 {v(XFB+2)}, {v(XFB+2)}\nv_rcp_f32 {v(XFB+6)}, {v(XFB+6)}')
        a(pv(3, 0)); a(f'v_rcp_f32 {v(XFB+10)}, {v(XFB+10)}'); a(pv(3, 1))
        a(f's_mul_i32 {t4}, {sW}, 252\ns_sub_u32 {t4}, {sORs}, {t4}\ns_add_u32 {t3}, {sOBs}, 32768')
        for t in range(4):
            d = SC + 4*t; e = XFB + 4*t
            if t == 2: a(f'v_rcp_f32 {v(XFB+14)}, {v(XFB+14)}')
            for b in (d, d + 2, e): a(f'v_pk_mul_f32 {v(b,2)}, {v(b,2)}, {v(e+2,2)} op_sel_hi:[1,0]')
            a(f'v_cvt_pk_bf16_f32 {v(OP+2*t)}, {v(d)}, {v(d+1)}\nv_cvt_pk_bf16_f32 {v(OP+2*t+1)}, {v(d+2)}, {v(d+3)}')
            a(f'v_cvt_pk_bf16_f32 {v(OP+8+t)}, {v(e)}, {v(e+1)}')
            if t == 2:
                while dma: drain(dma)
                for h in range(2): a(f'v_permlane16_swap_b32 {v(OP+h)}, {v(OP+2+h)}')
                a(f'buffer_store_dwordx4 {v(OP,4)}, {v(vOB)}, {W}, {sOBs} offen{self.sp}')
        a = a0
        for t in (1, 2): a(f'v_mov_b32_dpp {v(OP+8)}, {v(OP+8+t)} quad_perm:[0,1,2,3] row_mask:{1<<t} bank_mask:0xf')
        for h in range(2): a(f'v_permlane16_swap_b32 {v(OP+4+h)}, {v(OP+6+h)}')
        a(f'v_mov_b32_dpp {v(OP+8)}, {v(OP+11)} quad_perm:[0,1,2,3] row_mask:8 bank_mask:0xf')
        a(f'buffer_store_dwordx4 {v(OP+4,4)}, {v(vOB)}, {W}, {t3} offen{self.sp}')
        self.tk_o = a(f'buffer_store_dword {v(OP+8)}, {v(vL16)}, {W}, {t4} offen{self.sp}')
        self.stamp(f'attn{lay}')
        while post: drain(post)

    def p2(self, lay):
        a = self.a; o = self.o; W = sWS; sp = self.sp; xp = sp or o['xsc']
        a(f's_add_u32 {sTAG}, {sNON}, {lay}')
        AD = ACC + 72
        NS = o['ring'][lay] if lay or o['up'] == 'x' else 10
        slot = lambda k: (XFB + 4 * (k % NS)) if k % NS < 10 else ((224 if lay else WDF) + 4 * (k % NS - 10))
        if lay:
            a(f's_lshl_b32 {t0}, {sW}, 6'); a(f's_add_u32 {t0}, {t0}, {NM + 640 + 64}'); a(f'v_lshl_add_u32 {v(vA)}, {v(vI)}, 2, {t0}')
            a(f'ds_read2_b32 {v(AD+4,2)}, {v(vA)} offset0:0 offset1:80')
        a(f'''v_lshlrev_b32 {v(vE)}, 10, {v(vG)}
        v_lshl_add_u32 {v(vE)}, {v(vI)}, 4, {v(vE)}
        s_lshl_b32 {t0}, {sW}, 14
        s_add_u32 {t0}, {t0}, {sTB}
        s_lshl_b32 {t2}, {sW}, 8
        s_add_u32 {t2}, {t2}, {sTB}
        s_add_u32 {t2}, {t2}, {oOR}
        s_add_u32 {t3}, {t2}, 4096
        v_add_u32 {v(AD)}, {9*4608}, {v(vL16)}
        v_and_b32 {v(AD+1)}, 7, v0
        v_lshlrev_b32 {v(AD+1)}, 4, {v(AD+1)}
        v_lshl_add_u32 {v(AD+1)}, {v(vG)}, 7, {v(AD+1)}
        v_add_u32 {v(AD+2)}, {9*4608}, {v(AD+1)}''')
        def init():
            for k in range(10):
                a(f'v_lshlrev_b32 {v(ACC2+2*k)}, 16, {v(RES+k)}'); a(f'v_and_b32 {v(ACC2+2*k+1)}, 0xffff0000, {v(RES+k)}')
                if lay: a(f'v_pk_fma_f32 {v(ACC2+2*k,2)}, {v(ACC2+2*k,2)}, {v(AD+4,2)}, {v(AD+4,2)} op_sel:[0,0,1] op_sel_hi:[1,0,1]')
        init()
        order = [16, 17] + list(range(16))
        def wread(k):
            ks, n = order[k // 5], k % 5; hi = ks >= 9
            ad = (AD + 2 if hi else AD + 1) if n == 4 else (AD if hi else vL16)
            return f'ds_read_b128 {v(slot(k), 4)}, {v(ad)} offset:{4608*(ks - 9*hi) + 1024*n}'
        def oload(ks):
            if ks % 4 == 0: a(f's_add_u32 {t1}, {t0}, {1024*ks}')
            a(f'buffer_load_dwordx4 {v(ACC+4*ks,4)}, {v(vL16)}, {W}, {t1} offen offset:{1024*(ks%4)} sc1')
        N0 = o['p2n']; G0 = o['p2g']
        def first():
            for ks in range(2): a(f'buffer_load_dwordx4 {v(ACC+64+4*ks,4)}, {v(vE)}, {W}, {t3 if ks else t2} offen sc1')
            for ks in range(G0): oload(ks)
        Lp, Lr, Lq, Lg = [self.L() for _ in range(4)]
        a.wait(self.tk_wo); a.barrier()
        self.stamp(f'oack{lay}')
        n1 = min(o['p2r'], NS - 1)
        for k in range(n1): a(wread(k))
        if sp or o['p2w']: a.wait(self.tk_o)
        first()
        for k in range(n1, NS - 1): a(wread(k))
        a.label(Lp)
        for x in self.maxu(AD + 3, range(ACC + 64, ACC + 72)): a(x)
        a(f'v_cmp_eq_u32 vcc, -1, {v(AD+3)}'); a(f's_cbranch_vccz {Lg}')
        a.label(Lq); self.tick(); a.wvm(0); first(); a.wvm(0); a(f's_branch {Lp}')
        a.label(Lg)
        for ks in range(G0, N0): oload(ks)
        self.stamp(f'ogate{lay}')
        U = [[f's_mul_i32 {t4}, {sCG}, 144', f's_add_u32 {t4}, {t4}, {WRL}', f'v_lshl_add_u32 {v(vA)}, {v(vG)}, 4, {t4}'],
             [f'v_and_b32 {v(vB)}, 1, {v(vG)}', f'v_lshl_add_u32 {v(vB)}, {v(vB)}, 3, {t4}'],
             [f'ds_read_b128 {v(WRP,4)}, {v(vA)}'], [f'ds_read_b128 {v(WRP+4,4)}, {v(vA)} offset:64'], [f'ds_read_b64 {v(WRP+8,2)}, {v(vB)} offset:128']]
        if lay == 0:
            x = f'''v_lshrrev_b32 {v(vA)}, 3, {v(vI)}
            v_mul_u32_u24 {v(vA)}, 9216, {v(vA)}
            v_add_u32 {v(vXe)}, {v(vA)}, {v(AD+1)}
            v_add_u32 {v(vXo)}, 512, {v(vXe)}
            v_cmp_gt_u32 vcc, 8, {v(vI)}
            v_mov_b32 {v(vA)}, {LH + 1024}
            v_add_u32 {v(vHe)}, {LH - 9216}, {v(vXe)}
            v_add_u32 {v(vHo)}, {LH - 9216}, {v(vXo)}
            v_cndmask_b32 {v(vHe)}, {v(vHe)}, {v(vA)}, vcc
            v_cndmask_b32 {v(vHo)}, {v(vHo)}, {v(vA)}, vcc
            s_lshl_b32 {t4}, {sW}, 4
            s_add_u32 {t4}, {t4}, {sCG}
            s_mul_i32 {t4}, {t4}, 1152
            v_add_u32 {v(vRA)}, {t4}, {v(vXe)}
            v_add_u32 {v(vRA+1)}, 512, {v(vRA)}
            v_lshlrev_b32 {v(vA)}, 7, {v(vG)}
            v_sub_u32 {v(vA)}, {v(vRA)}, {v(vA)}
            v_and_b32 {v(vB)}, 1, {v(vG)}
            v_lshl_add_u32 {v(vA)}, {v(vB)}, 3, {v(vA)}
            v_add_u32 {v(vRA+2)}, 1024, {v(vA)}'''
        else: x = f'v_mul_u32_u24 {v(vXe)}, 2304, {v(vI)}\nv_lshl_add_u32 {v(vXe)}, {v(vG)}, 4, {v(vXe)}'
        U += [[l.strip()] for l in x.split('\n')]
        V = (self.pfetch('p', vA) + self.gu_at('p')) if lay == 0 else []
        for k in range(90):
            kk, n = divmod(k, 5); ks = order[kk]
            if k + NS - 1 < 90: a(wread(k + NS - 1))
            a(f'v_mfma_f32_16x16x32_bf16 {v(ACC2+4*n,4)}, {v(slot(k),4)}, {v(ACC+4*ks,4)}, {v(ACC2+4*n,4)}')
            if n == 0 and kk + N0 < 16: oload(kk + N0)
            elif ks < 16 and n in (2, 3): a(f'v_max3_u32 {v(AD+3)}, {v(AD+3)}, {v(ACC+4*ks+2*n-4)}, {v(ACC+4*ks+2*n-3)}')
            elif U: self.run(U.pop(0))
            elif V and kk + N0 >= 16: self.run(V.pop(0))
        assert not U
        for u in V: self.run(u)
        a(f'v_cmp_eq_u32 vcc, -1, {v(AD+3)}'); a(f's_cbranch_vccnz {Lr}')
        def cold():
            a.label(Lr); init()
            for k in range(NS - 1): a(wread(k))
            a.wall(); a(f's_branch {Lq}')
        self.colds.append(cold)
        self.stamp(f'p2{lay}')
        XP = ACC; S = ACC + 12
        a(f's_mov_b32 {t0}, {ONES}')
        if lay == 0: a(f's_add_u32 {t1}, {sTB}, {oX1}')
        def dot(k, first=False):
            for j, x in enumerate((t0, v(XP+k), v(WRP+k))): a(f'v_dot2_f32_bf16 {v(S+j)}, {v(XP+k)}, {x}, {0 if first else v(S+j)}')
        for k in range(10):
            a(f'v_cvt_pk_bf16_f32 {v(XP+k)}, {v(ACC2+2*k)}, {v(ACC2+2*k+1)}')
            if lay == 0 and k in (3, 7): a(f'buffer_store_dwordx4 {v(XP+k-3,4)}, {v(vRA)}, {sWS}, {t1} offen offset:{128*(k-3)}{xp}')
        dot(0, True); a('s_mov_b32 exec_hi, 0'); dot(8); dot(9); self.exec(-1)
        if lay == 0:
            for h in range(2): a(f'v_permlane16_swap_b32 {v(XP+8+h)}, {v(XP+10+h)}')
            self.exec(0xffff); tk = a(f'buffer_store_dwordx4 {v(XP+8,4)}, {v(vRA)}, {sWS}, {t1} offen offset:1024{xp}'); self.exec(-1)
        for k in range(1, 8): dot(k)
        a(f'v_mov_b32 {v(S+3)}, {sTAG}')
        self.xsum([S, S+1, S+2], S + 4, full=False)
        if lay == 0 and not o['dec']: a.wait(tk)
        self.exec(0xffff); self.tk_st = a(f'buffer_store_dwordx4 {v(S,4)}, {v(vL16)}, {W}, {sSTs} offen{sp}'); self.exec(-1)
        self.stamp(f'st{lay}')

    def x1piece(self, q):
        a = self.a; off = 9216 * (q & 1) + 1024 * (q >> 1)
        a(f's_add_u32 m0, {sSW}, {off}'); a(f's_add_u32 s1, {sWB}, {off}')
        return a(f'buffer_load_dwordx4 {v(vL16)}, {sWS}, s1 offen sc1 lds')
    def gstat(self, S, n):
        a = self.a
        for k in range(n): a(f'v_add_f32 {v(S+k)}, {v(S+k)}, {v(S+4+k)}')
        self.xsum(list(range(S, S + n)), S + 4)
        a(f'''v_mul_f32 {v(S)}, {f32(-1/576)}, {v(S)}
        v_mul_f32 {v(S+1)}, {f32(1/576)}, {v(S+1)}
        v_fma_f32 {v(S+1)}, -{v(S)}, {v(S)}, {v(S+1)}
        v_max_f32 {v(S+1)}, 0, {v(S+1)}
        v_add_f32 {v(S+4)}, {f32(1e-5)}, {v(S+1)}
        v_rsq_f32 {v(S+3)}, {v(S+4)}''')
    def lnc(self, S):
        a = self.a
        a(f'''v_add_f32 {v(S+5)}, 1.0, {v(S+3)}
        v_mul_f32 {v(S+6)}, {v(S+5)}, {v(S+5)}
        v_mul_f32 {v(S+6)}, {v(S+6)}, {v(S+1)}
        v_add_f32 {v(S+6)}, {f32(1e-5)}, {v(S+6)}
        v_rsq_f32 {v(S+6)}, {v(S+6)}
        v_mul_f32 {v(S+6)}, {v(S+6)}, {v(S+5)}''')

    def router(self, lay):
        a = self.a; o = self.o; W = sWL[lay]
        S = ACC + 20; K = S + 8; ZP = ACC; ZT = ACC + 40; H = ACC + 60
        a(f'''s_lshl_b32 {t1}, {sW}, 8
        s_add_u32 {t1}, {t1}, {sTB}
        s_add_u32 {t1}, {t1}, {oST}
        s_add_u32 {t2}, {t1}, 4096''')
        def main():
            a(f'buffer_load_dwordx4 {v(S,4)}, {v(vE)}, {sWS}, {t1} offen sc1'); a(f'buffer_load_dwordx4 {v(S+4,4)}, {v(vE)}, {sWS}, {t2} offen sc1')
        def check():
            a(f'v_cmp_ne_u32 {sSV}, {sTAG}, {v(S+3)}'); a(f'v_cmp_ne_u32 vcc, {sTAG}, {v(S+7)}'); a(f's_or_b64 vcc, vcc, {sSV}')
        if lay == 0:
            a.barrier(); self.ones()
            a(f's_mul_i32 {sSW}, {sW}, 18432'); a(f's_add_u32 {sWB}, {sTB}, {oX1}'); a(f's_add_u32 {sWB}, {sWB}, {sSW}')
            idle = self.wd_units() if o['up'] == 'x' else []
        else:
            idle = [[f'ds_read_b64_tr_b16 {v(256+4*ks+2*jh,2)}, {v(vC)} offset:{1024*(2*ks+jh)}' for jh in range(2)] for ks in range(18)]
        dec = o['dec'] and lay == 0
        h = len(idle) * o['idl'][lay] // 6
        for u in idle[:h]: self.run(u)
        if dec:
            self.run(self.xfaddr(t3))
            a(f'''s_lshl_b32 s1, {sCG}, 9
            s_sub_u32 s1, {t3}, s1
            v_min_u32 {v(H+8)}, 7, v0
            v_lshl_add_u32 {v(H+8)}, {v(H+8)}, 9, s1
            v_mov_b32 {v(H+9)}, -1''')
        if not dec and o['stw'][lay]: a.wait(self.tk_st)
        main()
        for u in idle[h:]: self.run(u)
        a(f'v_mov_b32 {v(H+7)}, {SWL}'); a(f'ds_read_b32 {v(H+7)}, {v(H+7)}')
        a(f'''v_lshlrev_b32 {v(vA)}, 4, {v(vG)}
        v_mov_b32 {v(K+3)}, {sNON}
        s_lshl_b32 {t0}, {sW}, 4
        v_or_b32 {v(K+5)}, {t0}, {v(vI)}
        s_add_u32 {t0}, {t0}, {CB}
        v_mov_b32 {v(vB)}, {t0}
        v_and_b32 {v(H+5)}, 3, v0
        v_lshlrev_b32 {v(H+5)}, 4, {v(H+5)}
        v_add_u32 {v(H+5)}, {CB}, {v(H+5)}
        v_lshrrev_b32 {v(H+6)}, 2, v0
        v_lshlrev_b32 {v(H+6)}, 13, {v(H+6)}
        s_lshl_b32 {t0}, {sT}, 8
        s_add_u32 {t0}, {t0}, {CAND}
        s_mov_b32 {t4}, -64''')
        self.verify(main, check)
        self.stamp(f'gath{lay}')
        if dec:
            a.wvm(0); self.exec(1); a(f'buffer_store_dword {v(H+9)}, {v(vL16)}, {sWS}, {t3} offen offset:16{self.sp}'); self.exec(-1)
            xt = lambda: a(f'buffer_load_dword {v(H+10)}, {v(H+8)}, {sWS}, 0 offen offset:16 sc1')
        if lay == 0:
            for q in range(0 if dec else 4): tka = self.x1piece(q)
            def hx():
                a(f's_add_u32 {t1}, {sTB}, {oHX - 7*9216}')
                self.exec(0xff00ff00ff00ff00)
                for k in range(2): a(f'buffer_store_dwordx4 {v(ACC+4*k,4)}, {v(vRA)}, {sWS}, {t1} offen offset:{512*k} sc1')
                self.exec(0xff00); a(f'buffer_store_dwordx4 {v(ACC+8,4)}, {v(vRA)}, {sWS}, {t1} offen offset:1024 sc1'); self.exec(-1)
            if not o['xsc']: self.w(3, hx)
        self.gstat(S, 3)
        a(f'''v_fma_f32 {v(K)}, {v(S)}, {v(H+7)}, {v(S+2)}
        v_mul_f32 {v(K)}, {v(K)}, {v(S+3)}
        v_ashrrev_i32 {v(K+4)}, 31, {v(K)}
        v_lshrrev_b32 {v(K+4)}, 1, {v(K+4)}
        v_xor_b32 {v(K)}, {v(K)}, {v(K+4)}
        v_and_or_b32 {v(K)}, {v(K)}, {t4}, {v(K+5)}''')
        zz = [f'v_mov_b32 {v(K+6)}, {v(S+3)}', f'v_mul_f32 {v(K+7)}, {v(S)}, {v(S+3)}', f'v_mul_f32 {v(K+2)}, {v(S+4)}, {v(S+3)}', f'v_sub_f32 {v(K+1)}, 0, {v(S)}']
        for k in (8, 9, 0, 1, 2, 3, 4, 5, 6, 7):
            zz.append(f'v_pk_fma_f32 {v(ZT+2*k,2)}, {v(ACC2+2*k,2)}, {v(K+6,2)}, {v(K+6,2)} op_sel:[0,0,1] op_sel_hi:[1,0,1]')
        for j, m in enumerate(('row_ror:8', 'row_ror:4', 'row_ror:2', 'row_ror:1')):
            x = K + 4 if j else K
            a(zz.pop(0)); a(zz.pop(0)); a(f'v_max_i32_dpp {v(K+4)}, {v(x)}, {v(x)} {m} row_mask:0xf bank_mask:0xf')
        a(f'v_cmp_eq_u32 {sCM}, {v(K)}, {v(K+4)}')
        a(zz.pop(0)); a(zz.pop(0))
        a(f's_and_b64 exec, {sCM}, 0xffff'); a(f'ds_write_b128 {v(vB)}, {v(K,4)}'); self.exec(-1)
        for x in zz: a(x)
        if dec: xt()
        def cs():
            a.barrier()
            def f():
                a(f'ds_read_b128 {v(H,4)}, {v(H+5)}')
                a(f'v_max_i32_dpp {v(H+4)}, {v(H)}, {v(H)} quad_perm:[1,0,3,2] row_mask:0xf bank_mask:0xf')
                a(f'v_max_i32_dpp {v(H+4)}, {v(H+4)}, {v(H+4)} quad_perm:[2,3,0,1] row_mask:0xf bank_mask:0xf')
                a(f'v_cmp_eq_u32 vcc, {v(H)}, {v(H+4)}'); a('s_mov_b32 exec_hi, 0'); a('s_mov_b32 exec_lo, vcc_lo')
                a(f'buffer_store_dwordx4 {v(H,4)}, {v(H+6)}, {W}, {t0} offen sc1'); self.exec(-1)
            self.w(0, f)
        self.only(f's_cmp_eq_u32 {sCG}, 0', cs)
        for k in (8, 9, 0, 1, 2, 3, 4, 5, 6, 7): a(f'v_cvt_pk_bf16_f32 {v(ZP+k)}, {v(ZT+2*k)}, {v(ZT+2*k+1)}')
        for h in range(2): a(f'v_permlane16_swap_b32 {v(ZP+8+h)}, {v(ZP+10+h)}')
        a(f's_mov_b64 exec, {sCM}')
        for P in range(2): a(f'buffer_store_dwordx4 {v(ZP+4*P,4)}, {v(vA)}, {W}, {sGB} offen offset:{gCZ + 64*P} sc1')
        a(f's_and_b64 exec, {sCM}, 0xffff')
        a(f'buffer_store_dwordx4 {v(ZP+8,4)}, {v(vA)}, {W}, {sGB} offen offset:{gCZ + 128} sc1')
        self.exec(-1)
        self.stamp(f'cand{lay}')
        if lay == 0:
            if dec:
                self.verify(xt, lambda: a(f'v_cmp_ne_u32 vcc, -1, {v(H+10)}')); self.stamp('xt')
                for q in range(4): tka = self.x1piece(q)
            for q in range(4, o['xq'][0]): self.tk_x = self.x1piece(q)
            self.lnc(S)
            a(f's_lshl_b32 {t0}, {sW}, 6'); a(f's_add_u32 {t0}, {t0}, {NM + 64}'); a(f'v_lshl_add_u32 {v(vB)}, {v(vI)}, 2, {t0}')
            a(f'v_mov_b32 v60, {v(S)}'); a(f'v_mov_b32 v61, {v(S+6)}'); a(f'v_mov_b32 v62, 0'); a(f'v_mov_b32 v63, {sNON}')
            self.exec(0xffff)
            a(f'ds_write2_b32 {v(vB)}, {v(S)}, {v(S+6)} offset0:0 offset1:80')
            a(f'ds_write2_b32 {v(vB)}, {v(S+5)}, {v(K+7)} offset0:160 offset1:240')
            self.exec(-1)
            a.wait(tka); a.barrier()
            self.stamp('xa')
        else:
            OPK = ACC + 68
            a(f'v_add_f32 {v(K+6)}, 1.0, {v(K+6)}')
            for k in range(10): a(f'v_pk_fma_f32 {v(ZT+2*k,2)}, {v(ACC2+2*k,2)}, {v(K+6,2)}, {v(K+6,2)} op_sel:[0,0,1] op_sel_hi:[1,0,1]')
            for k in (8, 9, 0, 1, 2, 3, 4, 5, 6, 7): a(f'v_cvt_pk_bf16_f32 {v(OPK+k)}, {v(ZT+2*k)}, {v(ZT+2*k+1)}')
            for h in range(2): a(f'v_permlane16_swap_b32 {v(OPK+8+h)}, {v(OPK+10+h)}')
            a(f's_not_b64 {sSV}, {sCM}')
            if o['odef'] < 4: self.only(f's_cmp_ge_u32 {sW}, {o["odef"]}', lambda: self.outst(sSV))

    def outst(self, m):
        a = self.a; OPK = ACC + 68; f = self.o['osc']
        a(f's_mov_b64 exec, {m}')
        for P in range(2): a(f'buffer_store_dwordx4 {v(OPK+4*P,4)}, {v(vXe)}, {sOUT}, {sOUTo} offen offset:{64*P}{f}')
        a(f's_and_b64 exec, {m}, 0xffff')
        a(f'buffer_store_dwordx4 {v(OPK+8,4)}, {v(vXe)}, {sOUT}, {sOUTo} offen offset:128{f}')
        self.exec(-1)

    C = 28; Z = 40
    def cand_addr(self):
        a = self.a; C = self.C; Z = self.Z
        a(f'v_and_b32 {v(C+10)}, 31, v0'); a(f'v_lshlrev_b32 {v(C+10)}, 8, {v(C+10)}')
        for x in self.div9(Z + 10, 0): a(x)
        a(f'v_mul_u32_u24 {v(Z+10)}, {4096-144}, {v(Z+10)}'); a(f'v_add_u32 {v(Z+10)}, {v(Z+10)}, {v(vL16)}')
        for k in range(4): a(f'v_mov_b32 {v(Z+4+k)}, 0')
        a(f'v_mov_b32 {v(C+9)}, {WIN}')
    def cand_load(self, lay):
        a = self.a; C = self.C; a(f's_lshl_b32 s1, {sXCD}, 13'); a(f's_add_u32 s1, s1, {CAND}')
        a(f'buffer_load_dwordx4 {v(C,4)}, {v(C+10)}, {sWL[lay]}, s1 offen sc1')
    def cand_check(self): self.a(f'v_cmp_ne_u32 vcc, {sNON}, {v(self.C+3)}')
    def row_load(self, W, d, va, sa, vb, off):
        a = self.a
        a(f'buffer_load_dwordx4 {v(d,4)}, {v(va)}, {W}, {sa} offen sc1'); a(f's_add_u32 s1, {sa}, {off}')
        self.exec(0xff); a(f'buffer_load_dwordx4 {v(d+4,4)}, {v(vb)}, {W}, s1 offen sc1'); self.exec(-1)
    def z_load(self, lay): self.row_load(sWL[lay], self.Z, self.Z + 10, t1, vL16, 7*4096 + 16)
    def row_check(self, d):
        for x in self.maxu(d + 8, range(d, d + 8)): self.a(x)
        self.a(f'v_cmp_eq_u32 vcc, -1, {v(d+8)}')
    def argmax(self, lay):
        a = self.a; C = self.C
        for k, m in enumerate(('row_ror:8', 'row_ror:4', 'row_ror:2', 'row_ror:1')):
            x = C + 8 if k else C
            a(f'v_max_i32_dpp {v(C+8)}, {v(x)}, {v(x)} {m} row_mask:0xf bank_mask:0xf')
            if k == 0: a(f'v_mov_b32 {v(C+3)}, v0')
        a(f'v_readlane_b32 {t0}, {v(C+8)}, 0'); a(f'v_readlane_b32 {t1}, {v(C+8)}, 16'); a(f's_max_i32 {sKEY}, {t0}, {t1}')
        a(f'v_cmp_eq_u32 vcc, {sKEY}, {v(C)}')
        a(f'''s_bfe_u32 {t2}, {sKEY}, 0x20004
        s_lshl_b32 {t2}, {t2}, 10
        s_add_u32 {t2}, {t2}, {TB + oGB + gCZ}
        s_ff1_i32_b32 {t0}, vcc_lo
        s_mul_i32 {t1}, {t0}, {BLK}
        s_add_u32 {t1}, {t1}, {t2}''')
    def winput(self):
        a = self.a; C = self.C
        a(f's_lshl_b64 exec, 1, {t0}'); a(f'ds_write_b128 {v(C+9)}, {v(C,4)}'); self.exec(-1)
    def zput(self):
        a = self.a; Z = self.Z
        a(f'v_add_u32 {v(Z+8)}, {ZR}, {v(vL16)}'); a(f'ds_write_b128 {v(Z+8)}, {v(Z,4)}')
        self.exec(0xff); a(f'ds_write_b128 {v(Z+8)}, {v(Z+4,4)} offset:1024'); self.exec(-1)
    def winread(self):
        a = self.a; C = self.C
        a(f'v_mov_b32 {v(C+4)}, {WIN}'); a(f'ds_read_b128 {v(C,4)}, {v(C+4)}')
        for k, r in enumerate((sKEY, sM, sSTD, sCID)): a(f'v_readfirstlane_b32 {r}, {v(C+k)}')
        a(f'''s_sub_u32 {t0}, {sCID}, {sT}
        s_lshl_b32 {t0}, {t0}, 6
        s_and_b32 {t2}, {sKEY}, 63
        s_add_u32 {t0}, {t0}, 16
        s_add_u32 {sSLOT}, {t0}, {t2}''')
    def ffn_addr(self):
        return [l.strip() for l in f'''v_bfe_u32 {v(vC)}, v0, 1, 1
        v_lshlrev_b32 {v(vD)}, 1, {v(vC)}
        v_and_or_b32 {v(vD)}, {v(vG)}, 1, {v(vD)}
        v_xor_b32 {v(vD)}, {sW}, {v(vD)}
        v_mul_u32_u24 {v(vC)}, 36864, {v(vC)}
        v_lshl_add_u32 {v(vC)}, {v(vD)}, 4, {v(vC)}
        v_lshrrev_b32 {v(vD)}, 2, v0
        v_lshl_add_u32 {v(vC)}, {v(vD)}, 6, {v(vC)}
        v_and_b32 {v(vD)}, 1, v0
        v_lshl_add_u32 {v(vC)}, {v(vD)}, 3, {v(vC)}
        v_add_u32 {v(vC)}, {GATE}, {v(vC)}
        v_lshlrev_b32 {v(vD)}, 4, {v(vG)}
        v_add_u32 {v(vD)}, {ZR}, {v(vD)}'''.split('\n')]
    def ffn(self, lay):
        a = self.a
        if lay == 0:
            D = 28; B0 = 36; NB = 4
            def rd(ks):
                b = B0 + 8 * (ks % NB)
                return [f'ds_read_b128 {v(b+4,4)}, {v(vD)} offset:{64*ks}'] + [f'ds_read_b64_tr_b16 {v(b+2*jh,2)}, {v(vC)} offset:{1024*(2*ks+jh)}' for jh in range(2)]
            ab = lambda ks: (B0 + 8 * (ks % NB), B0 + 8 * (ks % NB) + 4)
        else:
            D = 28; B0 = XFB; NB = 10
            rd = lambda ks: [f'ds_read_b128 {v(B0+4*(ks%NB),4)}, {v(vD)} offset:{64*ks}']
            ab = lambda ks: (256 + 4 * ks, B0 + 4 * (ks % NB))
        for ks in range(NB - 1):
            for x in rd(ks): a(x)
        a(f'''s_lshl_b32 {t0}, {sW}, 9
        s_add_u32 {t0}, {t0}, {HW + 144}
        v_lshl_add_u32 {v(vA)}, {v(vG)}, 3, {t0}
        v_lshlrev_b32 {v(vB)}, 9, {v(vG)}
        v_lshl_add_u32 {v(vB)}, {v(vI)}, 4, {v(vB)}
        v_add_u32 {v(vB)}, {HW}, {v(vB)}
        v_lshlrev_b32 {v(vE)}, 6, {v(vI)}
        v_lshl_add_u32 {v(vE)}, {v(vG)}, 4, {v(vE)}''')
        for ks in range(18):
            if ks + NB - 1 < 18:
                for x in rd(ks + NB - 1): a(x)
            A, B = ab(ks)
            a(f'v_mfma_f32_16x16x32_bf16 {v(D,4)}, {v(A,4)}, {v(B,4)}, {v(D,4) if ks else 0}')
            if lay == 0 and ks % 2 == 0 and ks // 2 < len(self.xlate): self.xlate[ks // 2]()
        for r in range(4): a(f'v_mul_f32 {v(D+8+r)}, {f32(-LOG2E)}, {v(D+r)}')
        for r in range(4): a(f'v_exp_f32 {v(D+8+r)}, {v(D+8+r)}')
        for r in range(4): a(f'v_permlane32_swap_b32 {v(D+r)}, {v(D+4+r)}')
        for r in range(4): a(f'v_add_f32 {v(D+8+r)}, 1.0, {v(D+8+r)}')
        for r in range(4): a(f'v_rcp_f32 {v(D+8+r)}, {v(D+8+r)}')
        for h in (0, 2): a(f'v_pk_mul_f32 {v(D+h,2)}, {v(D+h,2)}, {v(D+4+h,2)}')
        for h in (0, 2): a(f'v_pk_mul_f32 {v(D+h,2)}, {v(D+h,2)}, {v(D+8+h,2)}')
        a(f'v_cvt_pk_bf16_f32 {v(D)}, {v(D)}, {v(D+1)}\nv_cvt_pk_bf16_f32 {v(D+1)}, {v(D+2)}, {v(D+3)}')
        self.exec(0x10001); a(f'ds_write_b64 {v(vA)}, {v(D,2)}'); self.exec(-1)
        if lay == 0: a.wait(self.tk_gu)
        a.barrier()
        for n in range(9): a(f'ds_read_b128 {v(32+4*n,4)}, {v(vB)} offset:{16*(9-n)}')
        for n in range(9): a(f'v_mfma_f32_16x16x32_bf16 {v(D,4)}, {v(WDF+4*n,4)}, {v(32+4*n,4)}, {v(D,4) if n else 0}')
        self.exec(0x03ff03ff03ff03ff)
        a(f'buffer_store_dwordx4 {v(D,4)}, {v(vE)}, {sWL[lay]}, {sGB} offen sc1'); self.exec(-1)

    Y = 28
    def red_addr(self):
        a = self.a
        a(f'''s_mul_i32 {t2}, {sRED}, 7282
        s_lshr_b32 {t2}, {t2}, 16
        s_mul_i32 {t2}, {t2}, 7
        s_add_u32 {t2}, {t2}, {sRED}
        s_lshl_b32 {t2}, {t2}, 6
        s_add_u32 {t2}, {t2}, {TB + oGB + gPY}
        v_lshrrev_b32 {v(vA)}, 3, v0
        v_mul_u32_u24 {v(vA)}, {4*BLK}, {v(vA)}
        v_bfe_u32 {v(vB)}, v0, 2, 1
        v_lshl_add_u32 {v(vA)}, {v(vB)}, 12, {v(vA)}
        v_and_b32 {v(vB)}, 3, v0
        v_lshl_add_u32 {v(vA)}, {v(vB)}, 4, {v(vA)}
        v_lshlrev_b32 {v(vB)}, 3, {v(vB)}
        s_lshl_b32 {t3}, {sRED}, 5
        v_add_u32 {v(vE)}, {t3}, {v(vB)}
        v_lshrrev_b32 {v(vF)}, 4, {v(vE)}''')
        for x in self.div9(vF, vF): a(x)
        a(f'''v_mul_u32_u24 {v(vF)}, {4096-144}, {v(vF)}
        v_add_u32 {v(vF)}, {v(vF)}, {v(vE)}
        s_ashr_i32 {t0}, {sKEY}, 31
        s_lshr_b32 {t0}, {t0}, 1
        s_xor_b32 {t0}, {t0}, {sKEY}
        v_mov_b32 {v(vE)}, {f32(-LOG2E)}
        v_mul_f32 {v(vE)}, {t0}, {v(vE)}
        v_exp_f32 {v(vE)}, {v(vE)}
        v_add_f32 {v(vE)}, 1.0, {v(vE)}
        v_rcp_f32 {v(vE)}, {v(vE)}''')
    def red_load(self, lay):
        a = self.a; Y = self.Y; W = sWL[lay]
        a(f'buffer_load_dwordx2 {v(Y+36,2)}, {v(vF)}, {W}, {t1} offen sc1')
        for q in range(9):
            a(f's_add_u32 s1, {t2}, {(q >> 2)*BLK + (q & 3)*8192}'); a(f'buffer_load_dwordx4 {v(Y+4*q,4)}, {v(vA)}, {W}, s1 offen sc1')
    def red_check(self):
        Y = self.Y
        for x in self.maxu(Y + 38, [Y + 36, Y + 37] + list(range(Y, Y + 36))): self.a(x)
        self.a(f'v_cmp_eq_u32 vcc, -1, {v(Y+38)}')
    def red_sum(self, lay):
        a = self.a; Y = self.Y; Z = Y + 36
        for q in range(1, 9):
            for h in (0, 2): a(f'v_pk_add_f32 {v(Y+h,2)}, {v(Y+h,2)}, {v(Y+4*q+h,2)}')
        a(f'v_lshlrev_b32 {v(Y+8)}, 16, {v(Z)}\nv_and_b32 {v(Y+9)}, 0xffff0000, {v(Z)}\nv_lshlrev_b32 {v(Y+10)}, 16, {v(Z+1)}\nv_and_b32 {v(Y+11)}, 0xffff0000, {v(Z+1)}')
        self.dpp('v_add_f32', range(Y, Y + 4), ['row_ror:8', 'row_ror:4'])
        a(f'v_mov_b32 {v(Z)}, {sSTD}'); a(f'v_add_f32 {v(Z)}, 1.0, {v(Z)}')
        for r in range(4): a(f'v_fma_f32 {v(Y+8+r)}, {v(Y+8+r)}, {v(Z)}, {sM}')
        self.xsum(list(range(Y, Y + 4)), Y + 4, full=False)
        for r in range(4): a(f'v_fma_f32 {v(Y+r)}, {v(Y+r)}, {v(vE)}, {v(Y+8+r)}')
        a(f'v_cvt_pk_bf16_f32 {v(Y)}, {v(Y)}, {v(Y+1)}\nv_cvt_pk_bf16_f32 {v(Y+1)}, {v(Y+2)}, {v(Y+3)}')
        self.exec(0xf)
        if lay == 0: a(f'buffer_store_dwordx2 {v(Y,2)}, {v(vB)}, {sWS}, {sGB} offen offset:{gNR} sc1')
        else:
            a(f'buffer_store_dwordx2 {v(Y,2)}, {v(vB)}, {sOUT}, {t4} offen{self.o["osc"]}')
            def nn():
                self.exec(1); a(f'v_mov_b32 {v(vC)}, {sNON}'); a(f'buffer_store_dword {v(vC)}, {v(vB)}, {sWS}, 0 offen sc1')
            self.only(f's_cmp_eq_u32 {sRED}, 0', nn)
        self.exec(-1)

    def hooks(self):
        a = self.a; o = self.o; Z = self.Z; h = {}
        def add(ks, f):
            g = h.get(ks)
            h[ks] = (lambda: (g(), f())) if g else f
        red = lambda f: self.only(f's_cmp_lt_u32 {sRED}, 36', f)
        add(o['h1'], lambda: self.w(0, lambda: (self.cand_addr(), self.cand_load(0))))
        def xb():
            a.wait(self.tk_x)
            def hs():
                a(f's_lshl_b32 {t0}, {sCG}, 7'); a(f's_add_u32 {t0}, {t0}, {sTB}'); a(f's_add_u32 {t0}, {t0}, {oHS - 128}')
                self.exec(0xff00); a(f'buffer_store_dwordx4 v[60:63], {v(vL16)}, {sWS}, {t0} offen sc1'); self.exec(-1)
            self.w(3, hs)
            a('s_barrier'); self.stamp('xb')
        add(3, xb)
        def h2():
            self.verify(lambda: self.cand_load(0), self.cand_check); self.argmax(0)
            self.only(f's_cmp_lt_u32 {sLI}, 18', lambda: self.z_load(0)); self.winput()
        add(o['h2'], lambda: (self.w(0, h2), self.stamp('h2')))
        def h3():
            Lf, Lj = self.L(), self.L()
            a(f's_cmp_lt_u32 {sLI}, 18'); a(f's_cbranch_scc0 {Lf}')
            self.w(0, lambda: (self.verify(lambda: self.z_load(0), lambda: self.row_check(Z)), self.zput()))
            a.wait(self.tk_gu)
            a.barrier(); self.stamp('h3'); tk = self.tk_gu; self.ffn(0); a(f's_branch {Lj}')
            a.label(Lf); self.tk_gu = tk
            for u in self.xlate: u()
            a.wait(self.tk_gu); a.barrier(); a.label(Lj)
            self.winread()
            a(f'''s_cmp_eq_u32 {sJ}, 0
            s_cselect_b32 {t0}, 16, 8
            s_sub_u32 {t2}, {sSLOT}, {t0}
            s_sub_u32 {t0}, 80, {t0}
            s_cmp_lt_u32 {t2}, {t0}
            s_cselect_b32 {sOWN}, 1, 0''')
            self.stamp('ffn0')
        add(o['h3'], h3)
        assert o['hA'] >= o['h3']
        def hl(): a(f's_add_u32 s1, {sTP}, {oHS}'); a(f'buffer_load_dwordx4 v[60:63], {v(vL16)}, {sWS}, s1 offen sc1')
        add(o['hA'], lambda: self.w(2, hl))
        def hB():
            self.verify(hl, lambda: a(f'v_cmp_ne_u32 vcc, {sNON}, v63'))
            for q in range(9):
                a(f's_mov_b32 m0, {LH + HP*q}'); a(f's_add_u32 s1, {sTP}, {(oX1 + 7*9216 if o["xsc"] else oHX) + 1024*q}')
                self.tk_h = a(f'buffer_load_dwordx4 {v(vL16)}, {sWS}, s1 offen sc1 lds')
            a(f'v_lshlrev_b32 v64, 2, v0'); a(f'v_add_u32 v64, {NM}, v64')
            self.exec(0xffff); a(f'ds_write2_b32 v64, v60, v61 offset0:0 offset1:80'); self.exec(-1)
        add(o['hB'], lambda: (self.w(2, hB), self.stamp('hB')))
        add(o['hC'], lambda: (self.w(2, lambda: (a.wait(self.tk_h), a.wlg(0))), a('s_barrier'), self.stamp('hC')))
        add(o['rp'][3], lambda: (self.rchk(), self.stamp('rchk')))
        add(o['h4'], lambda: red(lambda: (self.red_addr(), self.red_load(0))))
        add(o['h5'], lambda: (red(lambda: (self.verify(lambda: self.red_load(0), self.red_check), self.red_sum(0))), self.stamp('red0')))
        return h

    def patch(self):
        a = self.a; Rr = self.Z; sx = self.sx
        a.label(f'L_patch{sx}')
        a.raw('@PAD')
        a.wlg(0)
        for k in range(4): a(f'v_mov_b32 {v(Rr+4+k)}, 0')
        a(f'''v_lshrrev_b32 {v(vA)}, 3, v0
        v_mul_u32_u24 v51, {HP - 128}, {v(vA)}
        s_mov_b32 {t0}, {LH + 1040}
        v_add3_u32 v51, v51, {v(vL16)}, {t0}
        v_and_b32 v52, 11, v0
        v_cmp_eq_u32 vcc, 1, v52
        v_lshl_add_u32 v52, {v(vG)}, 4, {t0}
        v_add_u32 v53, 64, v52
        v_cndmask_b32 {v(vHe)}, {v(vHe)}, v52, vcc
        v_cndmask_b32 {v(vHo)}, {v(vHo)}, v53, vcc''')
        def f():
            a(f'''s_mov_b32 {t3}, {TB + 3*BLK + oGB + gNR}
            v_bfe_u32 v50, v0, 1, 3
            v_mul_u32_u24 v50, {4*BLK}, v50
            v_lshl_add_u32 v50, {v(vG)}, 12, v50
            v_and_b32 v52, 1, v0
            v_lshl_add_u32 v50, v52, 4, v50
            s_lshr_b32 {t1}, {sSLOT}, 3
            s_sub_u32 {t1}, {t1}, 2
            s_mul_i32 {t1}, {t1}, 9216
            s_cmp_lt_u32 {sSLOT}, 16
            s_cselect_b32 {t1}, {LH}, {t1}
            s_cselect_b32 {t2}, {HP - 1024}, 0
            s_and_b32 {t0}, {sSLOT}, 7
            s_lshl_b32 {t0}, {t0}, 4
            s_add_u32 {t1}, {t1}, {t0}
            v_mul_u32_u24 {v(vA)}, {t2}, {v(vA)}
            v_lshl_add_u32 {v(vA)}, v0, 7, {v(vA)}
            v_add_u32 {v(vA)}, {t1}, {v(vA)}
            s_lshl_b32 {t2}, {t2}, 3
            v_add_u32 {v(vB)}, {t2}, {v(vA)}''')
            self.poll(lambda: self.row_load(sWS, Rr, 50, t3, 50, 16384), lambda: self.row_check(Rr))
            a(f'ds_write_b128 v51, {v(Rr,4)}'); a(f'ds_write_b128 {v(vA)}, {v(Rr,4)}')
            self.exec(0xff); a(f'ds_write_b128 v51, {v(Rr+4,4)} offset:{8*HP}'); a(f'ds_write_b128 {v(vB)}, {v(Rr+4,4)} offset:8192'); self.exec(-1)
        self.w(1, f)
        a.barrier()
        self.stamp('nr')
        for k in range(5): a(self.xread(k, 0, self.HB(k)))
        a(f'ds_read_b128 {v(Rr,4)}, v51'); self.exec(0xff); a(f'ds_read_b128 {v(Rr+4,4)}, v51 offset:{8*HP}'); self.exec(-1)
        S = Rr + 8; a(f's_mov_b32 {t3}, {ONES}')
        U = [[f'v_dot2_f32_bf16 {v(S)}, {v(Rr+k)}, {t3}, {v(S) if k else 0}', f'v_dot2_f32_bf16 {v(S+1)}, {v(Rr+k)}, {v(Rr+k)}, {v(S+1) if k else 0}'] for k in range(8)]
        U += [lambda m=m: self.dpp('v_add_f32', [S, S+1], [m]) for m in ('row_ror:8', 'row_ror:4', 'row_ror:2', 'row_ror:1')]
        U += [lambda w=w: self.xsum([S, S+1], S + 4, full=False, sws=(w,)) for w in ('v_permlane32_swap_b32', 'v_permlane16_swap_b32')]
        U += [[f'v_mul_f32 {v(S)}, {f32(-1/576)}, {v(S)}', f'v_mul_f32 {v(S+1)}, {f32(1/576)}, {v(S+1)}'],
              [f'v_fma_f32 {v(S+1)}, -{v(S)}, {v(S)}, {v(S+1)}', f'v_max_f32 {v(S+1)}, 0, {v(S+1)}'],
              [f'v_add_f32 {v(S+1)}, {f32(1e-5)}, {v(S+1)}', f'v_rsq_f32 {v(S+1)}, {v(S+1)}'],
              [f's_lshl_b32 {t0}, {sSLOT}, 2', f's_add_u32 {t0}, {t0}, {NM}', f'v_mov_b32 {v(vA)}, {t0}'], [f'v_mov_b32 {v(S+4)}, 1.0', f'v_mov_b32 {v(S+5)}, 0'],
              ['s_mov_b64 exec, 1', f'ds_write2_b32 {v(vA)}, {v(S)}, {v(S+1)} offset0:0 offset1:80', f'ds_write2_b32 {v(vA)}, {v(S+4)}, {v(S+5)} offset0:160 offset1:240', 's_mov_b64 exec, -1'],
              [f's_and_b32 {t1}, {sSLOT}, 15', f's_mov_b32 s{sb(sSV)}, 0x10001', f's_mov_b32 s{sb(sSV)+1}, 0x10001', f's_lshl_b64 {sSV}, {sSV}, {t1}', f's_not_b64 vcc, {sSV}'],
              [f's_lshr_b32 {t2}, {t1}, 2', f's_lshl_b32 {t2}, {t2}, 4', f's_mov_b64 {sSV}, 0xffff', f's_lshl_b64 {sSV}, {sSV}, {t2}', f's_and_b32 {t1}, {t1}, 3', f's_lshr_b32 {t0}, {sSLOT}, 4']]
        self.phase2(U)
        a(f'v_mov_b32 v40, {v(Vb+1)}'); a(f'v_mov_b32 v41, {v(Vb+1)}'); a('v_permlane32_swap_b32 v40, v41')
        Lt = [self.L() for _ in range(5)]
        for t in (0, 2, 3, 4): a(f's_cmp_eq_u32 {t0}, {t}'); a(f's_cbranch_scc1 {Lt[t]}')
        for t in range(1, 5):
            if t > 1: a.label(Lt[t])
            for b in (Qb, Kb, Rb):
                for r in range(4): a(f'v_cndmask_b32_dpp {v(b+4*t+r)}, {v(b+r)}, {v(b+4*t+r)}, vcc row_newbcast:1 row_mask:0xf bank_mask:0xf')
            for r in range(4):
                a(f's_cmp_eq_u32 {t1}, {r}'); a(f's_cselect_b64 vcc, {sSV}, 0'); a(f'v_cndmask_b32 {v(Vb+4*t+r)}, {v(Vb+4*t+r)}, v40, vcc')
            if t < 4: a(f's_branch {Lt[0]}')
        a.label(Lt[0])
        a.wall(); a('s_nop 3'); a(f's_branch L_patched{sx}')

    def tail(self):
        a = self.a; Z = self.Z
        def w0():
            self.cand_addr()
            self.poll(lambda: self.cand_load(1), self.cand_check); self.argmax(1)
            self.only(f's_cmp_lt_u32 {sLI}, 18', lambda: self.z_load(1)); self.winput()
            self.only(f's_cmp_lt_u32 {sLI}, 18', lambda: (self.verify(lambda: self.z_load(1), lambda: self.row_check(Z)), self.zput()))
        self.w(0, w0)
        a.barrier()
        self.stamp('win1')
        self.only(f's_cmp_lt_u32 {sLI}, 18', lambda: self.ffn(1))
        self.stamp('ffn1')
        if self.o['tred']:
            a(f's_lshl_b32 {sRED}, {sLI}, 3'); a(f's_add_u32 {sRED}, {sRED}, {sXCD}'); a(f's_cmp_eq_u32 {sW}, 0'); a(f's_cselect_b32 {sRED}, {sRED}, 99')
        self.winread()
        a(f'''s_cmp_lt_u32 {sW}, {self.o["odef"]}
        s_cselect_b64 {sSV}, -1, {sCM}
        s_lshr_b32 {t0}, {sSLOT}, 4
        s_sub_u32 {t0}, {t0}, 1
        s_cmp_eq_u32 {t0}, {sW}
        s_cselect_b64 {sCM}, {sCM}, 0''')
        def red():
            self.red_addr()
            a(f'''s_and_b32 {t0}, {sCID}, 15
            s_lshl_b32 {t0}, {t0}, 6
            s_and_b32 {t4}, {sKEY}, 63
            s_add_u32 {t0}, {t0}, {t4}
            s_lshl_b32 {t0}, {t0}, 1
            s_lshr_b32 {t4}, {sCID}, 4
            s_add_u32 {t0}, {t0}, {t4}
            s_mul_i32 {t0}, {t0}, 36
            s_add_u32 {t0}, {t0}, {sRED}
            s_lshl_b32 {t4}, {t0}, 5''')
            if self.o['tred'] == 1: a.wvm(0)
            self.poll(lambda: self.red_load(1), self.red_check); self.stamp('rpoll'); self.red_sum(1)
        self.only(f's_cmp_lt_u32 {sRED}, 36', red)
        self.only(f's_andn2_b64 {sSV}, {sSV}, {sCM}', lambda: self.outst(sSV))

    def body(self):
        a = self.a; o = self.o
        self.tk_gu = None
        self.attn(0); self.p2(0); self.router(0); self.gemm1(); self.attn(1); self.p2(1); self.router(1); self.tail()
        if o['stamps']:
            self.stamp('red1'); a.wall(); self.stamp('end')
            a('s_memrealtime s[4:5]'); a.wlg(0)
            for k, r in ((62, 's100'), (63, 's4'), (61, sCNT), (60, 's96'), (59, sSLOW)): a(f'v_writelane_b32 {v(vSTAMP)}, {r}, {k}')
            a(f's_lshl_b32 {t0}, s2, 2'); a(f's_add_u32 {t0}, {t0}, {sW}'); a(f's_lshl_b32 {t0}, {t0}, 8'); a(f's_add_u32 {t0}, {t0}, {STAMP}')
            a(f'v_lshlrev_b32 {v(vB)}, 2, v0'); a(f'buffer_store_dword {v(vSTAMP)}, {v(vB)}, {sWS}, {t0} offen')
        if o['padto']:
            if o['probe']: a(f's_cmp_eq_u32 {sW}, 0'); a('s_cselect_b32 s100, s98, s100')
            L = self.L(); a.wall(); a.label(L); a('s_memrealtime s[4:5]'); a.wlg(0); a('s_sub_u32 s4, s4, s100'); a(f's_cmp_lt_u32 s4, {o["padto"]}'); a(f's_cbranch_scc1 {L}')
        a('s_endpgm')
        while self.colds: self.colds.pop(0)()
    def slow(self):
        a = self.a
        a.label('L_slow'); a.wall()
        self.sp = ' sc1'; self.sx = '_s'
        for u in self.poisonL(0, 44, ' sc1'): self.run(u)
        a.wall(); a('s_barrier')
        def f():
            a(f'''s_lshl_b32 {t1}, {sT}, 10
            s_add_u32 {t1}, {t1}, {XF2}
            s_lshl_b32 {t2}, {sCG}, 7
            s_add_u32 {t2}, {t2}, {t1}
            v_mov_b32 v44, {sNON}
            v_lshlrev_b32 v45, 7, v0''')
            self.exec(1); a(f'buffer_store_dword v44, v45, {sWS}, {t2} offen sc1'); self.exec(0xff)
            self.poll(lambda: a(f'buffer_load_dword v46, v45, {sWS}, {t1} offen sc1'), lambda: a(f'v_cmp_ne_u32 vcc, {sNON}, v46'))
            self.exec(-1)
        self.w(0, f)
        self.body()

    def wrap(self, lines):
        K = NAME + '_kernel'
        head = open('header.txt').read()
        return (f'; @launch grid=(256,1,1) block=(256,1,1) lds=163840\n' + head +
                f'.amdgcn_target "amdgcn-amd-amdhsa--gfx950"\n.text\n.globl {K}\n.p2align 8\n.type {K},@function\n{K}:\n' + '\n'.join(lines) + '\ns_endpgm\n' +
                f'''
.section .rodata,"a"
.p2align 6
.amdhsa_kernel {K}
  .amdhsa_next_free_vgpr 512
  .amdhsa_next_free_sgpr 102
  .amdhsa_accum_offset 256
  .amdhsa_group_segment_fixed_size 0
  .amdhsa_kernarg_size 88
  .amdhsa_user_sgpr_count 2
  .amdhsa_user_sgpr_kernarg_segment_ptr 1
  .amdhsa_system_sgpr_workgroup_id_x 1
.end_amdhsa_kernel
''')
    def pads(self, lines):
        i0, i1 = lines.index('L_main:'), lines.index('L_hotend:')
        if not self.o['pads']: return [l for l in lines if l != '@PAD']
        ins = [l for l in lines[i0:i1] if not l.endswith(':') and l[0] not in ';@']
        src = '\n'.join(re.sub(r'^(s_c?branch\w*) .*', r'\1 0', l) for l in ins) + '\n'
        r = subprocess.run(['llvm-mc', '-triple=amdgcn-amd-amdhsa', '-mcpu=gfx950', '-show-encoding'], input=src, capture_output=True, text=True)
        size = [l.count('0x', l.index('encoding:')) for l in r.stdout.split('\n') if 'encoding:' in l]
        assert len(size) == len(ins), (len(size), len(ins), r.stderr[:400])
        out = []; addr = 0; nxt = 0; k = 0; n = 0
        for l in lines[i0:i1]:
            real = not l.endswith(':') and l[0] not in ';@'
            if l == '@PAD' or (real and addr >= nxt):
                out.append(('P', n)); n += 1; addr += 4
                if l != '@PAD': nxt += 4096
            if l == '@PAD': continue
            out.append(l)
            if real: addr += size[k]; k += 1
        res = []
        for l in out:
            if isinstance(l, tuple): res += [f'L_pad{l[1]}:', f's_cbranch_execz ' + (f'L_pad{l[1]+3}' if l[1] + 3 < n else 'L_padret')]
            else: res.append(l)
        self.hot = addr
        return lines[:i0] + res + [l for l in lines[i1:] if l != '@PAD']
    def build(self):
        a = self.a; o = self.o
        self.start(); self.gemm0()
        a(f's_cmp_lg_u32 {sSLOW}, 0'); a('s_cbranch_scc1 ' + ('L_slow' if o['slowcopy'] else 'L_exit'))
        self.body()
        a.raw('L_hotend:')
        if o['slowcopy']: self.slow()
        a.label('L_exit')
        return self.wrap(self.pads(a.text().rstrip('\n').split('\n')))

if __name__ == '__main__':
    o = eval('dict(' + (sys.argv[2] if len(sys.argv) > 2 else '') + ')')
    g = G(**o); t = g.build(); open(sys.argv[1], 'w').write(t)
    print('lines', t.count('\n'), 'bytes', len(t), 'nops', g.a.nops, g.names)
```

```python
import sys; sys.path.insert(0,'work')
from hx import *
import gen
for opt in (sys.argv[1:] or ['stamps=True', '']):
    g = gen.G(**eval('dict('+opt+')')); t = g.build(); open('k.s','w').write(t)
    co = assemble(t, gen.NAME+'_kernel', 11, 'k.co')
    print(opt, L.address_register_problem(co, gen.NAME+'_kernel'), 'nops', g.a.nops, subprocess.run('llvm-readelf -S k.co | grep -E "text"', shell=True, capture_output=True, text=True).stdout.split()[6])
```

```python
import sys, math, struct, subprocess, re
from asmlib import *
NAME = 'interleave_layers__sliding_local_dilated__moe_arch_mod__prompt'
WP = 0x10000; WOP = 0x200000; CAND = 0x2C0000; STAMP = 0x300000; FL = 0x340000; XF = 0x380000; XF2 = 0x3A0000
TB = 0x400000
oOB = 0; oOR = 65536; oST = oOR + 8192; oX1 = oST + 8192; oGB = oX1 + 73728; LS = 65536
oHX = oGB + 32768; oHS = oHX + 9216; BLK = oGB + LS + 32768
gPY = 0; gCZ = 640; gNR = 896
WSN = 0x1000000; OOB = 0x40000000; MAT = 5308416
assert TB + 32 * BLK <= WSN and CAND + LS + 65536 <= STAMP
LH = 73728; HP = 1168; GATE = 84352; UP = GATE + 36864; SCR = UP + 36864
HW = SCR; NM = HW + 2048; ZR = NM + 1280; WRL = ZR + 1152; WIN = WRL + 1152; CB = WIN + 16; SWL = CB + 64
assert SWL + 4 <= 163840 and LH + 9 * HP <= GATE
sX, sWS, sOUT, sWQ, sWO, sWR, sWG, sWU, sWD, sCD, sWS1 = [s(8 + 4 * i, 4) for i in range(11)]
sWL = (sWS, sWS1)
t0, t1, t2, t3, t4 = 's3', 's4', 's5', 's6', 's7'
_n = [52]
def S1():
    _n[0] += 1; return f's{_n[0]-1}'
def S2():
    _n[0] += _n[0] & 1; _n[0] += 2; return s(_n[0] - 2, 2)
sMK = [S2() for _ in range(4)]; sSV = S2(); sCM = S2(); sBIAS = S2()
(sXCD, sLI, sCG, sW, sT, sJ, sP, sNON, sSW, sF, sCNT, sCID, sRED, sKEY, sM, sSTD, sTB, sTP, sOBs, sORs, sSTs, sGB, sGU, sGL, sWB,
 sSLOT, sOWN, sSLOW, sOUTo, sFN) = [S1() for _ in range(30)]
sWDo = sF; sTAG = sP
assert _n[0] <= 96
vL, vXe, vXo, vHe, vHo, vL16, vI, vG = range(8)
vM = 8; vPM = 12; vSEL = 14; vSTAMP = 16; vOB = 17; vDUM = 18; vRA = 19
vA, vB, vC, vD, vE, vF = 22, 23, 24, 25, 26, 27
PAIR = 28; RSK = 38; CS = 44; RES = 58; ACC2 = 28; WRP = 48
XFB = 68; ACC = 108; WDF = 188
Qb, Kb, Vb, Rb = ACC, ACC + 20, ACC + 40, ACC + 60
def Wf(ks, n): return (256 + 16 * ks if ks < 16 else 224 + 16 * (ks - 16)) + 4 * n
BIG = 0xf149f2ca
ONES = 0x3f803f80
LOG2E = math.log2(math.e)
def f32(x): return '0x%08x' % struct.unpack('<I', struct.pack('<f', x))[0]
def sb(srd): return int(srd[2:srd.index(':')])

class G:
    def __init__(self, **o):
        self.o = dict(dbgt=False, stamps=False, padto=0, probe='', noffn=False, force=False, slowcopy=True, pads=True,
                      depth=3, osc='', wostep=12, pre=True, nt='', kf=14, kx=4, wopf=14, pois='s', xpre=0, xlate=1, touch=7, tm=1, bar1=False, xall=False, odef=1, defer=0, msel='cg', mks=(0, 2, 4, 6, 8, 10, 12, 14), kb=6, wom=(1 << 36) - 1,
                      pf=(('s', 2, '', 0, 8), ('t', 2, '', 24, 4), ('s', 0, 'non', 0, 42), ('g', 1, 'all', 0, 9), ('p', 1, 'all', 288, 9)), gate='x', up='x', gux=3,
                      wpf=(), gst=(), wsc=' sc1', h1=2, h2=5, h3=8, h4=14, h5=17, hA=8, hB=11, hC=16, p2n=6, p2g=2, p2r=8, p2w=True, xq=(10, 10), xr=3, tred=2, inl=True, val=1, valo=False, xsc=' sc1', kg=-1, dec=False, valx=0, wo0=(0, 0), idl=(2, 2), stw=(1, 1), rp=(3, 6, 15, 17), xh3=True, ring=(19, 40))
        assert all(k in self.o for k in o), o
        self.o.update(o)
        self.a = Asm(); self.names = []; self.nl = 0; self.colds = []; self.sp = ''; self.sx = ''; self.wdn = 0
    def L(self, p='L'):
        self.nl += 1; return f'{p}_{self.nl}'
    def stamp(self, name):
        a = self.a
        if name == self.o['probe']: a.wlg(0); a('s_memrealtime s[98:99]'); a.wlg(0)
        if not self.o['stamps']: return
        a.wlg(0); a('s_memtime s[0:1]'); a.wlg(0)
        if name not in self.names: self.names.append(name)
        a(f'v_writelane_b32 {v(vSTAMP)}, s0, {self.names.index(name)}')
    def only(self, cond, fn):
        L = self.L(); self.a(cond); self.a(f's_cbranch_scc0 {L}'); fn(); self.a.label(L)
    def w(self, k, fn): self.only(f's_cmp_eq_u32 {sW}, {k}', fn)
    def exec(self, m):
        a = self.a
        if m == -1 or m < (1 << 31): a(f's_mov_b64 exec, {m}')
        else: a(f's_mov_b32 exec_lo, 0x{m & 0xffffffff:x}'); a(f's_mov_b32 exec_hi, 0x{m >> 32:x}')
    def tick(self): self.a(f's_sub_u32 {sCNT}, {sCNT}, 1'); self.a('s_cbranch_scc1 L_exit')
    def poll(self, issue, check):
        a = self.a; L = self.L('P'); a.label(L); self.tick(); issue(); check(); a(f's_cbranch_vccnz {L}')
    def verify(self, issue, check):
        a = self.a; Lc, Lr = self.L('C'), self.L('R')
        if self.o['inl']:
            a(f's_branch {Lc}'); a.label(Lr); self.tick(); a.wvm(0); issue(); a.wvm(0)
            a.label(Lc); check(); a('s_nop 0'); a.out.pop(); a.raw(f's_cbranch_vccnz {Lr}'); return
        a.label(Lc); check(); a(f's_cbranch_vccnz {Lr}')
        def cold(): a.label(Lr); self.tick(); a.wall(); issue(); a.wall(); a(f's_branch {Lc}')
        self.colds.append(cold)
    def run(self, f):
        if callable(f): return f()
        for y in f: tk = self.a(y)
        return tk
    def xsum(self, rs, tmp, op='v_add_f32', full=True, sws=('v_permlane32_swap_b32', 'v_permlane16_swap_b32')):
        a = self.a
        for sw in sws:
            if full:
                for k, r in enumerate(rs): a(f'v_mov_b32 {v(tmp+k)}, {v(r)}')
            for k, r in enumerate(rs): a(f'{sw} {v(r)}, {v(tmp+k)}')
            for k, r in enumerate(rs): a(f'{op} {v(r)}, {v(r)}, {v(tmp+k)}')
    def dpp(self, op, rs, mods):
        for m in mods:
            for r in rs: self.a(f'{op}_dpp {v(r)}, {v(r)}, {v(r)} {m} row_mask:0xf bank_mask:0xf')
    def maxu(self, d, rs, first=True):
        rs = list(rs); r = []
        if first: r.append(f'v_max3_u32 {v(d)}, {v(rs[0])}, {v(rs[1])}, {v(rs[2])}' if len(rs) % 2 else f'v_max_u32 {v(d)}, {v(rs[0])}, {v(rs[1])}'); rs = rs[3:] if len(rs) % 2 else rs[2:]
        for k in range(0, len(rs), 2): r.append(f'v_max3_u32 {v(d)}, {v(d)}, {v(rs[k])}, {v(rs[k+1])}')
        return r
    def div9(self, q, x):
        return [f'v_mul_u32_u24 {v(q)}, 7282, {v(x)}', f'v_lshrrev_b32 {v(q)}, 16, {v(q)}']

    def srd(self, lst):
        for srd, n in lst: self.a(f's_mov_b32 s{sb(srd)+2}, {n}'); self.a(f's_mov_b32 s{sb(srd)+3}, 0x20000')
    def common(self):
        a = self.a
        a(f's_load_dword {sNON}, s[{sb(sWS)}:{sb(sWS)+1}], 0')
        self.srd(((sWS, WSN), (sOUT, 2359296), (sWS1, WSN - LS)))
        a(f'''s_cmp_lt_u32 {sLI}, {0 if self.o["noffn"] else 18}
        s_cselect_b32 {sFN}, {MAT}, 0''')
        self.srd(((sWD, sFN), (sWG, sFN), (sWU, sFN)))
        a(f'''s_add_u32 s{sb(sWS1)}, s{sb(sWS)}, {LS}
        s_addc_u32 s{sb(sWS1)+1}, s{sb(sWS)+1}, 0
        s_mov_b32 {sCNT}, 20000
        s_mov_b32 {sSLOW}, {1 if self.o["force"] else 0}
        s_mul_i32 {sF}, {sXCD}, 18
        s_add_u32 {sF}, {sF}, {sLI}
        s_sub_u32 {sRED}, {sLI}, 24
        s_lshl_b32 {sRED}, {sRED}, 3
        s_add_u32 {sRED}, {sRED}, {sXCD}
        s_cmp_eq_u32 {sW}, 0
        s_cselect_b32 {sRED}, {sRED}, 99
        s_mul_i32 {sTB}, {sT}, {BLK}
        s_add_u32 {sTB}, {sTB}, {TB}
        s_cmp_eq_u32 {sJ}, 0
        s_cselect_b32 {t0}, 0, {BLK}
        s_cselect_b32 s{sb(sBIAS)}, 0x{BIG:x}, 0
        s_mov_b32 s{sb(sBIAS)+1}, s{sb(sBIAS)}
        s_sub_u32 {sTP}, {sTB}, {t0}
        s_lshl_b32 {t0}, {sCG}, 2
        s_add_u32 {t0}, {t0}, {sW}
        s_mul_i32 {sWB}, {t0}, 62208
        s_add_u32 {sWB}, {sWB}, {WP}
        s_lshl_b32 {t1}, {t0}, 9
        s_add_u32 {sOBs}, {t1}, {sTB}
        s_lshl_b32 {t1}, {t0}, 8
        s_add_u32 {t1}, {t1}, {sTB}
        s_add_u32 {sORs}, {t1}, {oOR}
        s_add_u32 {sSTs}, {t1}, {oST}
        s_lshl_b32 {t1}, {t0}, 10
        s_add_u32 {t1}, {t1}, {sTB}
        s_add_u32 {sGB}, {t1}, {oGB}
        s_lshr_b32 {t1}, {sW}, 1
        s_mul_i32 {t1}, {t1}, 294912
        s_and_b32 {t2}, {sW}, 1
        s_mul_i32 {t2}, {t2}, 36864
        s_add_u32 {t1}, {t1}, {t2}
        s_lshl_b32 {t2}, {sF}, 6
        s_add_u32 {sGU}, {t1}, {t2}
        s_lshl_b32 {sGL}, {sW}, 10
        s_mul_i32 {sWDo}, {sF}, 36864
        s_add_u32 {sWDo}, {sWDo}, {sGL}
        s_lshl_b32 {t0}, {sJ}, 2
        s_add_u32 {t0}, {t0}, {sW}
        s_lshl_b32 {t0}, {t0}, 5
        s_add_u32 {t0}, {t0}, {sP}
        s_lshl_b32 {t0}, {t0}, 3
        s_add_u32 {t0}, {t0}, {sCG}
        s_mul_i32 {sOUTo}, {t0}, 144''')
    def nonce(self):
        self.a(f's_mul_i32 {sNON}, {sNON}, 1664525'); self.a(f's_add_u32 {sNON}, {sNON}, 1013904223'); self.a(f's_and_b32 {sNON}, {sNON}, -16')
    def wrsum(self):
        a = self.a
        a(f'v_add_u32 {v(vA)}, {WRL}, {v(vL16)}'); a(f'ds_read_b128 v[56:59], {v(vA)}'); a(f'ds_read_b128 v[60:63], {v(vA)} offset:1024')
        a(f's_mov_b32 {t0}, {ONES}')
        for k in range(8):
            if k == 4: self.exec(0xff)
            a(f'v_dot2_f32_bf16 {v(vA)}, v{56+k}, {t0}, {v(vA) if k else 0}')
        self.exec(-1)
        self.dpp('v_add_f32', [vA], ['row_ror:8', 'row_ror:4', 'row_ror:2', 'row_ror:1']); self.xsum([vA], vB)
        a(f'v_mov_b32 {v(vB)}, {SWL}'); a(f'ds_write_b32 {v(vB)}, {v(vA)}')
    def poisonL(self, lay, P, pol):
        st = lambda k: f'buffer_store_dwordx4 {v(P,4)}, {v(P+4)}, {sWL[lay]}, {sTB} offen offset:{1024*k}{pol}'
        def last(): self.a('s_mov_b32 exec_hi, 0'); self.tk_p = self.a(st(2)); self.exec(-1)
        return [[f'v_mov_b32 {v(P+k)}, -1' for k in range(4)],
                [f's_lshl_b32 s1, {sCG}, 2', f's_add_u32 s1, s1, {sW}', f's_mul_i32 s1, s1, {oX1 // 32}', f'v_add_u32 {v(P+4)}, s1, {v(vL16)}'], [st(0)], [st(1)], last]
    def poisonG(self, lay, P):
        return [[f's_cmp_lt_u32 {sRED}, 36', f's_cselect_b32 s1, {0 if lay else 0xff000000}, 0', f's_or_b32 s1, s1, 0xffff00', f's_cmp_lt_u32 {sLI}, 18', f's_cselect_b32 exec_lo, -1, 0',
                 f's_cselect_b32 exec_hi, 0xffffff, s1', f'buffer_store_dwordx4 {v(P,4)}, {v(vL16)}, {sWL[lay]}, {sGB} offen sc1', 's_mov_b64 exec, -1']]
    def xfaddr(self, d):
        return [f's_lshl_b32 {d}, {sT}, 3', f's_add_u32 {d}, {d}, {sCG}', f's_lshl_b32 {d}, {d}, 2', f's_add_u32 {d}, {d}, {sW}', f's_lshl_b32 {d}, {d}, 7', f's_add_u32 {d}, {d}, {XF}']
    def x1pre(self, P):
        st = lambda k: f'buffer_store_dwordx4 {v(P,4)}, {v(P+5)}, {sWS}, {sTB} offen offset:{512*k}{self.o["xsc"]}'
        return [[f's_lshl_b32 s1, {sW}, 4', f's_add_u32 s1, s1, {sCG}', f's_mul_i32 s1, s1, 1152', f's_add_u32 s1, s1, {oX1}', f'v_bfe_u32 {v(P+5)}, v0, 3, 1', f'v_mul_u32_u24 {v(P+5)}, {9216-128}, {v(P+5)}',
                 f'v_lshl_add_u32 {v(P+5)}, {v(vI)}, 4, {v(P+5)}', f'v_lshl_add_u32 {v(P+5)}, {v(vG)}, 7, {v(P+5)}', f'v_add_u32 {v(P+5)}, s1, {v(P+5)}'],
                [st(0)], [st(1)], ['s_mov_b64 exec, 0xffff', st(2), 's_mov_b64 exec, -1']]
    def valid(self, lay, r):
        b = 0 if self.o['valo'] else oOR; n = (oX1 - b) // 4096
        return [[f's_lshl_b32 s1, {sCG}, 2', f's_add_u32 s1, s1, {sW}', f's_mul_i32 s1, s1, {n}', f's_add_u32 s1, s1, {b // 128}', f'v_min_u32 {v(r)}, {n-1}, v0', f'v_add_lshl_u32 {v(r)}, {v(r)}, s1, 7'],
                lambda: self.a.untracked(f'buffer_load_dword {v(vDUM)}, {v(r)}, {sWL[lay]}, {sTB} offen sc1')]
    def validx(self, r):
        def ld(): self.exec(0x01ff01ff); self.a.untracked(f'buffer_load_dword {v(vDUM)}, {v(r)}, {sWS}, {sTB} offen sc1'); self.exec(-1)
        return [[f's_lshl_b32 s1, {sW}, 4', f's_add_u32 s1, s1, {sCG}', f's_mul_i32 s1, s1, 1152', f's_add_u32 s1, s1, {oX1}', f'v_mul_u32_u24 {v(r)}, 9216, {v(vG)}',
                 f'v_lshl_add_u32 {v(r)}, {v(vI)}, 7, {v(r)}', f'v_add_u32 {v(r)}, s1, {v(r)}'], ld]
    def pfetch(self, pos, r0, w0=0):
        a = self.a; U = []
        if self.o['noffn']: return U
        for p, mat, who, row0, R in self.o['pf']:
            if p != pos: continue
            if mat == 2:
                for j in range(R):
                    k = 1024 * (row0 + j * (4 - w0) - w0)
                    U.append([f's_add_u32 m0, {sGL}, {UP + k}', f's_add_u32 s1, {sWDo}, 0x{k & 0xffffffff:x}', f'buffer_load_dwordx4 {v(vL16)}, {sWD}, s1 offen{self.o["nt"]} lds'])
                self.wdn += R * (4 - w0); continue
            n = -(-9 * R // (4 - w0)); srd = (sWG, sWU)[mat]
            for j in range(-(-n // 64)):
                U.append([f'v_add_u32 {v(r0)}, {64*j}, v0', f'v_min_u32 {v(r0)}, {n-1}, {v(r0)}'])
                U.append([f's_mul_i32 s1, {sW}, {n}', f's_sub_u32 s1, s1, {w0*n}', f'v_add_u32 {v(r0)}, s1, {v(r0)}', f'v_min_u32 {v(r0)}, {9*R-1}, {v(r0)}'])
                U.append(self.div9(r0 + 1, r0))
                U.append([f'v_mul_u32_u24 {v(r0+1)}, 8064, {v(r0+1)}', f'v_lshl_add_u32 {v(r0)}, {v(r0)}, 7, {v(r0+1)}'])
                def ld(srd=srd, who=who, R=R, base=(row0 - (18 * R if who == 'non' else 0)) * 8):
                    a(f's_mul_i32 s1, {sLI}, {R*8}'); a(f's_add_u32 s1, s1, {sXCD}')
                    if base: a(f's_add_u32 s1, s1, 0x{base & 0xffffffff:x}')
                    a(f's_mul_i32 s1, s1, 1152')
                    if who != 'ffn': a(f's_mov_b32 s{sb(srd)+2}, {MAT}' if who == 'all' else f's_xor_b32 s{sb(srd)+2}, {sFN}, {MAT}')
                    a.untracked(f'buffer_load_dword {v(vDUM)}, {v(r0)}, {srd}, s1 offen{self.o["nt"]}')
                    if who != 'ffn': a(f's_mov_b32 s{sb(srd)+2}, {sFN}')
                U.append(ld)
        return U

    def start(self):
        a = self.a; o = self.o; nt = o['nt']
        Lx, Lwo, Lw2, Lj, Lxt, Lwt, Lf = [self.L() for _ in range(7)]
        a('s_cmp_ge_u32 s2, 256'); a('s_cbranch_scc1 L_exit')
        if o['stamps'] or o['padto']: a('s_memrealtime s[100:101]'); a('s_memtime s[96:97]'); a(f'v_mov_b32 {v(vSTAMP)}, 0')
        if o['dbgt']:
            Ld = self.L()
            a('s_memrealtime s[100:101]'); a('s_load_dwordx2 s[96:97], s[0:1], 72'); a('s_mov_b32 s98, 256'); a('s_mov_b32 s99, 0x20000')
            a('s_lshr_b32 s3, s2, 3'); a('s_mul_i32 s4, s3, 25'); a('s_lshr_b32 s4, s4, 8'); a('s_mul_i32 s5, s4, 31'); a('s_add_u32 s5, s5, 2'); a('s_mul_i32 s5, s5, 43'); a('s_lshr_b32 s5, s5, 7')
            a('s_and_b32 s6, s2, 7'); a('s_lshl_b32 s6, s6, 2'); a('s_add_u32 s6, s6, s4'); a('s_lshl_b32 s6, s6, 1'); a('v_mov_b32 v2, s6'); a.wlg(0); a('v_mov_b32 v3, s100')
            a('s_cmp_eq_u32 s5, s3'); a(f's_cbranch_scc0 {Ld}'); a('s_mov_b64 exec, 1'); a.untracked('buffer_store_short v3, v2, s[96:99], 0 offen'); a('s_mov_b64 exec, -1'); a.label(Ld)
        def ld(l):
            for srd, off in l: a(f's_load_dwordx2 s[{sb(srd)}:{sb(srd)+1}], s[0:1], {off}')
        ld(((sWQ, 8), (sX, 0), (sWO, 16), (sWS, 80)))
        a(f's_getpc_b64 s[{sb(sCD)}:{sb(sCD)+1}]'); a.raw('L_pc:')
        a(f's_lshr_b32 {sLI}, s2, 3'); self.srd(((sCD, 'L_hotend-L_pc'),))
        a(f"""v_lshrrev_b32 v1, 4, v0
        v_lshlrev_b32 v1, 7, v1
        s_lshl_b32 {t0}, {sLI}, 11""")
        tkc = a.untracked(f'buffer_load_dword {v(vDUM)}, v1, {sCD}, {t0} offen')
        a(f"""v_lshrrev_b32 v2, 6, v0
        s_and_b32 {sXCD}, s2, 7
        v_readfirstlane_b32 {sW}, v2""")
        ld(((sWD, 56), (sWG, 40), (sWU, 48), (sWR, 32), (sOUT, 64)))
        a(f"""v_and_b32 v0, 63, v0
        s_and_b32 {sCG}, {sLI}, 7
        s_lshr_b32 {t0}, {sLI}, 3
        s_lshl_b32 {sT}, {sXCD}, 2
        s_add_u32 {sT}, {sT}, {t0}
        s_lshr_b32 {sP}, {sT}, 4
        s_and_b32 {sJ}, {sT}, 15
        v_lshlrev_b32 {v(vL16)}, 4, v0""")
        self.srd(((sX, 2359296),))
        a(f's_cmp_lg_u32 {sW}, 0'); a(f's_cbranch_scc1 {Lx}')
        WOL = GATE + 9216
        for x in self.div9(vA, 0): a(x)
        self.srd(((sWO, 663552), (sWQ, 1990656)))
        a(f"""s_mul_i32 {t4}, {sCG}, 144
        s_mov_b32 m0, {GATE}
        v_mul_u32_u24 v67, {1152-144}, {v(vA)}
        v_add_u32 v67, v67, {v(vL16)}
        s_cmp_ge_u32 {sT}, 27
        s_cbranch_scc1 {Lwo}""")
        a(f"""s_mul_i32 {sM}, {sT}, 43
        s_lshr_b32 {sM}, {sM}, 7
        s_mul_i32 {sKEY}, {sM}, 3
        s_sub_u32 {sKEY}, {sT}, {sKEY}
        v_mul_u32_u24 {v(vA)}, {3456-144}, {v(vA)}
        v_add_u32 {v(vA)}, {v(vA)}, {v(vL16)}
        s_mul_i32 {t3}, {sM}, {64*3456}
        s_add_u32 {t3}, {t3}, {t4}
        s_mul_i32 {t2}, {sKEY}, 1152
        s_add_u32 {t3}, {t3}, {t2}""")
        self.stamp('start')
        for q in range(10):
            if q: a(f's_add_u32 m0, m0, 1008'); a(f's_add_u32 {t3}, {t3}, {7*3456}')
            if q == 9: self.exec(0x1ff)
            tkw = a(f'buffer_load_dwordx4 {v(vA)}, {sWQ}, {t3} offen{nt} lds')
        def woload(lds, step):
            self.exec(o['wom'])
            for q in range(4):
                a(f's_mov_b32 m0, {lds + 576*q}')
                if q: a(f's_add_u32 {t3}, {t3}, {step}')
                tk = a(f'buffer_load_dwordx4 v67, {sWO}, {t3} offen{nt} lds')
            return tk
        a.label(Lw2)
        a(f"""s_and_b32 {t2}, {sT}, 1
        s_mul_i32 {t3}, {sT}, 9
        s_add_u32 {t3}, {t3}, {t2}
        s_mul_i32 {t3}, {t3}, 2304
        s_add_u32 {t3}, {t3}, {t4}""")
        if o['xlate'] == 3:
            self.exec(-1)
            a(f"""s_lshl_b32 {t0}, {sJ}, 7
            s_add_u32 {t0}, {t0}, {sP}
            s_mul_i32 {t1}, {sCG}, 18
            s_add_u32 {t0}, {t0}, {t1}
            s_sub_u32 {t0}, {t0}, 16
            s_mul_i32 {t0}, {t0}, 1152
            v_mul_u32_u24 {v(vB)}, 7282, v0
            v_lshrrev_b32 {v(vB)}, 16, {v(vB)}
            v_mul_u32_u24 {v(vB)}, 1152, {v(vB)}
            v_lshl_add_u32 {v(vB)}, v0, 7, {v(vB)}
            v_add_u32 {v(vB)}, {t0}, {v(vB)}
            v_add_u32 {v(vC)}, {7*2304}, {v(vB)}""")
            a.untracked(f'buffer_load_dword {v(vDUM)}, {v(vB)}, {sX}, 0 offen')
            self.exec((1 << 18) - 2); a.untracked(f'buffer_load_dword {v(vDUM)}, {v(vC)}, {sX}, 0 offen')
        tko = woload(WOL, 4*1152)
        self.exec(-1); a(f's_branch {Lj}')
        st = (a.vm, a.lg); a.label(Lwo)
        a(f"""s_sub_u32 {sM}, {sT}, 27
        s_min_u32 {sM}, {sM}, 3
        s_mul_i32 {t3}, {sM}, {144*1152}
        s_add_u32 {t3}, {t3}, {16*1152}
        s_add_u32 {t3}, {t3}, {t4}""")
        self.stamp('start')
        woload(GATE, 36*1152)
        a(f's_branch {Lw2}')
        a.label(Lx)
        self.srd(((sWR, 1152),))
        a(f"""s_lshl_b32 {t0}, {sJ}, 7
        s_add_u32 {t0}, {t0}, {sP}
        s_mul_i32 {t0}, {t0}, 1152
        v_min_u32 {v(vB)}, 26, v0
        s_mul_i32 {t1}, {sCG}, 3
        s_add_u32 {t1}, {t1}, {sW}
        s_mul_i32 {t1}, {t1}, {3*2304}
        s_add_u32 {t1}, {t1}, {t0}
        s_sub_u32 {t1}, {t1}, {11*2304}""")
        for x in self.div9(vA, vB): a(x)
        a(f"""v_mul_u32_u24 {v(vA)}, 1152, {v(vA)}
        v_lshl_add_u32 {v(vA)}, {v(vB)}, 7, {v(vA)}
        v_add_u32 v67, {t1}, {v(vA)}""")
        self.stamp('start')
        xpf = lambda: a.untracked(f'buffer_load_dword {v(vDUM)}, v67, {sX}, 0 offen')
        if o['pois'] == 'e':
            self.srd(((sWS, WSN),))
            for k in range(4): a(f'v_mov_b32 v{40+k}, -1')
            a(f"""s_mul_i32 {t1}, {sT}, {BLK}
            s_mul_i32 {t2}, {sCG}, 10240
            s_add_u32 {t1}, {t1}, {t2}
            s_mul_i32 {t2}, {sW}, 3072
            s_add_u32 {t2}, {t2}, {TB - 3072}
            s_add_u32 {t1}, {t1}, {t2}""")
            for k in range(3): a(f'buffer_store_dwordx4 v[40:43], {v(vL16)}, {sWS}, {t1} offen offset:{1024*k}')
            self.w(3, lambda: a(f'buffer_store_dwordx4 v[40:43], {v(vL16)}, {sWS}, {t1} offen offset:3072'))
        if o['xlate'] == 0: xpf()
        if o['touch'] & 4: self.exec(o['tm']); xpf(); self.exec(-1)
        if o['touch'] & 3:
            self.srd(((sWS, WSN),))
            def tc():
                a(f"""s_lshl_b32 {t1}, {sXCD}, 3
                s_add_u32 {t1}, {t1}, {sCG}
                s_lshl_b32 {t1}, {t1}, 2
                s_lshr_b32 {t2}, {sLI}, 3
                s_add_u32 {t1}, {t1}, {t2}
                s_lshl_b32 {t1}, {t1}, 10
                s_add_u32 {t1}, {t1}, {FL}
                v_min_u32 {v(vA)}, {7 if o['touch'] & 2 else 0}, v0
                v_lshl_add_u32 {v(vA)}, {v(vA)}, 7, {t1}
                s_mul_i32 {t1}, {sT}, {BLK}
                s_add_u32 {t1}, {t1}, {TB + oHS}
                v_writelane_b32 {v(vA)}, {t1}, 62
                v_writelane_b32 {v(vA)}, 0, 63""")
                a.untracked(f'buffer_load_dword {v(vDUM)}, {v(vA)}, {sWS}, 0 offen sc1')
            self.w(1, tc)
        def wr():
            a(f's_mov_b32 m0, {WRL}'); a(f'buffer_load_dwordx4 {v(vL16)}, {sWR}, 0 offen lds')
            self.exec(0xff); a(f'buffer_load_dwordx4 {v(vL16)}, {sWR}, 0 offen offset:1024 lds'); self.exec(-1)
        self.w(2, wr)
        a(f"""s_sub_u32 {t4}, {sW}, 1
        s_mul_i32 {sM}, {t4}, {3*9216}
        s_lshl_b32 {sCID}, {sM}, 1
        s_add_u32 {sCID}, {sCID}, {t0}
        s_cmp_eq_u32 {sJ}, 0
        s_cselect_b32 {t2}, 0, 18432
        s_sub_u32 {t2}, {t0}, {t2}
        s_add_u32 {sSTD}, {sCID}, 36864
        s_cmp_eq_u32 {sW}, 3
        s_cselect_b32 {sSTD}, {t2}, {sSTD}
        s_cselect_b32 {sKEY}, {HP - 1024}, 0
        s_add_u32 {sKEY}, {sKEY}, 896""")
        a.label(Lj)
        a(f'v_and_b32 {v(vI)}, 15, v0'); a(f'v_lshrrev_b32 {v(vG)}, 4, v0')
        self.common(); self.consts()
        a(f's_cmp_lg_u32 {sW}, 0'); a(f's_cbranch_scc1 {Lxt}')
        a(f"""v_bfe_u32 v30, v0, 2, 2
        v_and_b32 v31, 3, v0
        v_lshrrev_b32 v28, 3, v0
        v_mul_u32_u24 v28, {32768-128}, v28
        v_add_u32 v28, v28, {v(vL16)}
        v_lshlrev_b32 v29, 7, v0
        v_lshrrev_b32 v33, 1, {v(vG)}
        v_and_b32 v34, 1, {v(vG)}
        v_lshl_add_u32 v36, v34, 3, v30
        v_mul_u32_u24 v36, 144, v36
        v_add_u32 v36, {GATE}, v36
        v_and_b32 v35, 1, v0
        v_lshl_add_u32 v44, v31, 4, v36
        v_lshl_add_u32 v44, v33, 3, v44
        v_lshl_add_u32 v45, v35, 3, v36
        v_lshlrev_b32 v38, 7, {v(vG)}
        v_lshl_add_u32 v38, {v(vI)}, 4, v38
        v_add_u32 v38, 4096, v38
        v_lshl_add_u32 v39, v33, 9, {v(vL16)}
        s_mul_i32 {sSTD}, {sCG}, 82944
        s_add_u32 {sSTD}, {sSTD}, {WOP}""")
        def woaddr(idx, add):
            a(f"""s_lshr_b32 {t0}, {idx}, 1
            s_mul_i32 {t0}, {t0}, 4608
            s_add_u32 {sSLOT}, {sSTD}, {t0}
            s_and_b32 {t0}, {idx}, 1
            s_lshl_b32 {t0}, {t0}, 8""")
            if add: a(f's_add_u32 {sSLOT}, {sSLOT}, {add}')
            a(f's_add_u32 {sSLOT}, {sSLOT}, {t0}'); a(f's_add_u32 {sCID}, {sSLOT}, {t0}')
        def word(lds, B):
            for p in range(3):
                for jh in range(2): a(f'ds_read_b64_tr_b16 {v(B+4*p+2*jh, 2)}, v{45 if p == 2 else 44} offset:{lds - GATE + 576*jh + 64*p}')
        def wost(B):
            for p in range(2): a(f'buffer_store_dwordx4 {v(B+4*p,4)}, v39, {sWS}, {sCID} offen offset:{2048*p} sc1')
            self.exec(0x00ff00ff); a(f'buffer_store_dwordx4 {v(B+8,4)}, v38, {sWS}, {sSLOT} offen sc1'); self.exec(-1)
        a(f's_cmp_ge_u32 {sT}, 27'); a(f's_cbranch_scc1 {Lwt}')
        a(f"""v_lshl_add_u32 v32, {v(vG)}, 3, v30
        v_mul_u32_u24 v32, 144, v32
        v_lshl_add_u32 v40, v31, 3, v32
        v_add_u32 v40, {GATE}, v40
        v_lshrrev_b32 v33, 1, v31
        v_mul_u32_u24 v33, {4608-144}, v33
        v_mul_u32_u24 v34, 72, v31
        v_add3_u32 v41, v32, v33, v34
        v_add_u32 v41, {GATE+32}, v41
        v_bfe_u32 v33, v0, 1, 2
        v_mul_u32_u24 v33, 62208, v33
        v_bfe_u32 v34, v0, 3, 1
        v_mul_u32_u24 v34, 3456, v34
        v_lshlrev_b32 v35, 6, v35
        v_add3_u32 v42, v33, v34, v35
        v_lshl_add_u32 v42, {v(vG)}, 4, v42
        s_mul_i32 {t3}, {sM}, 6912
        s_add_u32 {t3}, {t3}, {sWB}
        s_lshl_b32 {t4}, {sKEY}, 10
        s_add_u32 {t1}, {t3}, {t4}
        s_lshl_b32 {t4}, {sKEY}, 7
        s_add_u32 {t2}, {t3}, {t4}""")
        a.wait(tkw)
        self.stamp('wld')
        for e in range(9):
            hd, kl = e >> 1, e & 1
            for jh in range(2):
                a(f'ds_read_b64_tr_b16 {v(ACC+4*e+2*jh, 2)}, ' + (f'v40 offset:{(32*kl + 4*jh)*144 + 72*(hd>>1) + 40*(hd&1)}' if e < 8 else f'v41 offset:{576*jh}'))
        for e in range(8):
            if e > 1 and not e & 1: a(f's_add_u32 {t1}, {t1}, 62208')
            a(f'buffer_store_dwordx4 {v(ACC+4*e,4)}, {v(vL16)}, {sWS}, {t1} offen offset:{3456*(e&1)} sc1')
            if e == 3: a.wait(tko); word(WOL, XFB)
        a(f'buffer_store_dwordx4 {v(ACC+32,4)}, v42, {sWS}, {t2} offen offset:3072 sc1')
        a.wlg(0)
        a.label(Lf)
        woaddr(sT, 0); wost(XFB)
        self.stamp('wst')
        if o['bar1']: a('s_barrier')
        self.nonce()
        a(f"""s_lshl_b32 {t1}, {sCG}, 12
        s_add_u32 {t1}, {t1}, {FL}
        s_lshl_b32 {t2}, {sT}, 7
        s_add_u32 {t2}, {t2}, {t1}
        s_lshl_b32 {t3}, {sXCD}, 15
        s_add_u32 {t1}, {t1}, {t3}
        v_mov_b32 v32, {sNON}
        v_mov_b32 v33, {sNON}
        v_mov_b32 v34, {sNON}
        v_mov_b32 v35, {sNON}""")
        a.wvm(0)
        a(f'buffer_store_dwordx4 v[32:35], v28, {sWS}, {t2} offen sc1')
        self.stamp('wfl')
        if o['pois'] == 's':
            for u in self.poisonL(0, 40, '') + (self.poisonG(0, 40) if o['kg'] < 0 else []): self.run(u)
        a.wvm(0)
        self.stamp('wack')
        a('s_mov_b32 exec_hi, 0')
        self.poll(lambda: a(f'buffer_load_dword v30, v29, {sWS}, {t1} offen sc1'), lambda: a(f'v_cmp_ne_u32 vcc, {sNON}, v30'))
        self.exec(-1)
        self.stamp('wpoll')
        a('s_branch L_main')

        a.label(Lwt)
        woaddr(sM, 16*4608)
        a.wait(tko)
        self.stamp('wld')
        word(GATE, ACC); word(WOL, XFB); wost(ACC)
        a.wlg(0); a(f's_branch {Lf}')

        a.label(Lxt)
        XV = 66
        if o['xlate'] == 1: xpf()
        if o['pre']:
            def pre():
                a(f"""v_lshrrev_b32 v38, 5, v0
                v_mul_u32_u24 v38, {LS - 32*256}, v38
                v_lshl_add_u32 v38, v0, 8, v38
                s_lshl_b32 {t0}, {sXCD}, 13
                s_add_u32 {t0}, {t0}, {CAND}""")
                a.untracked(f'buffer_load_dword {v(vDUM)}, v38, {sWS}, {t0} offen sc1')
        self.ones()
        def hz():
            a(f'v_mov_b32 v36, 0\nv_mov_b32 v37, 0\nv_mov_b32 v38, 0\nv_mov_b32 v39, 0\nv_add_u32 {v(vA)}, {HW}, {v(vL16)}')
            a(f'ds_write_b128 {v(vA)}, v[36:39]'); a(f'ds_write_b128 {v(vA)}, v[36:39] offset:1024')
        self.w(1, hz)
        a(f"""v_lshrrev_b32 {v(vA)}, 3, v0
        v_and_b32 {v(vB)}, 7, v0
        v_and_b32 v{XV}, 6, {v(vA)}
        v_xor_b32 v{XV}, v{XV}, {v(vB)}
        v_mul_u32_u24 {v(vB)}, 2304, {v(vA)}
        v_lshl_add_u32 v{XV}, v{XV}, 4, {v(vB)}
        s_mul_i32 {t2}, {sW}, 96
        s_add_u32 {t2}, {t2}, {NM + 64 - 96}
        v_lshl_add_u32 v64, v0, 2, {t2}
        v_and_b32 v46, 6, v0
        v_xor_b32 v46, v46, {v(vA)}
        v_and_b32 {v(vB)}, 7, v0
        v_lshl_add_u32 {v(vB)}, {v(vB)}, 7, {sM}
        v_lshl_add_u32 v46, v46, 4, {v(vB)}
        v_lshlrev_b32 v55, 2, {v(vG)}
        v_sub_u32 v55, {v(vI)}, v55
        s_add_u32 {t2}, {sKEY}, 128""")
        for k in range(4): a(f'v_mov_b32 {v(WDF+k)}, {ONES}')
        for b in range(1, 9): a(f'v_add_u32 v{46+b}, {t2}, v{45+b}')
        self.nonce()
        if o['xlate'] == 2: xpf()
        def chain():
            if not o['pads']: return
            a.wait(tkc); a.wlg(0)
            for l in ('s_mov_b64 exec, 0', f's_cmp_eq_u32 {sW}, 2', 's_cbranch_scc1 L_pad1', f's_cmp_eq_u32 {sW}, 3', 's_cbranch_scc1 L_pad2', 's_branch L_pad0', 'L_padret:'): a.raw(l)
            self.exec(-1)
            self.stamp('chain')
        if not o['xall']: chain()
        tx = {}
        def xl(k, b):
            def f():
                if k == 1 and b == 0: a(f's_add_u32 {sCID}, {sCID}, 18432')
                a(f's_add_u32 m0, {sM}, {9216*k + 896*b}' if k < 2 or not b else f's_add_u32 m0, m0, {sKEY}')
                tx[k] = a(f'buffer_load_dwordx4 v{XV}, {sX}, {sCID if k < 2 else sSTD} offen offset:{128*b}{nt} lds')
            return f
        def rd(k):
            a.wait(tx[k])
            for b in range(9): a(f'ds_read_b128 {v(ACC + 36*(k&1) + 4*b, 4)}, ' + (f'v46 offset:{9216*k + 1024*b}' if k < 2 else f'v{46+b} offset:18432'))
        def dots(k, U):
            S = WDF + 4 + 8*k
            self.weave([f'v_mfma_f32_16x16x32_bf16 {v(S+4*h,4)}, {v(ACC + 36*(k&1) + 4*b, 4) if h else v(WDF,4)}, {v(ACC + 36*(k&1) + 4*b, 4)}, {v(S+4*h,4) if b else 0}'
                        for b in range(9) for h in range(2)], U)
        a.wvm(0)
        self.stamp('prepld')
        for b in range(o['xpre']): xl(0, b)()
        if o['bar1']: a('s_barrier')
        for b in range(o['xpre'], 9): xl(0, b)()
        self.w(2, self.wrsum)
        for b in range(9): xl(1, b)()
        X2 = [xl(2, b) for b in range(9)]
        U = self.poisonL(0, 40, '') + (self.poisonG(0, 40) if o['kg'] < 0 else []) if o['pois'] == 's' else []
        if o['pre']: U.append(lambda: (a(f's_lshl_b32 {t1}, {sLI}, 2'), a(f's_add_u32 {t1}, {t1}, {sW}'), self.only(f's_cmp_eq_u32 {t1}, {31*4+1}', pre)))
        U += self.pfetch('s', 36, 1)
        if o['xall']:
            while X2: X2.pop(0)()
            X2 = U; U = []
        self.stamp('prepst')
        if o['xall']: chain()
        rd(0); dots(0, X2)
        rd(1); dots(1, U + self.pfetch('t', 36, 1)); rd(2)
        self.stamp('xin')
        def fin(U):
            dots(2, U)
            for r in range(4):
                a(f'v_cmp_eq_u32 vcc, {r}, v55')
                if r == 0:
                    for k in range(3): a(f'v_mov_b32 v{28+2*k}, {v(WDF+4+8*k)}')
                for k in range(3): a(f'v_cndmask_b32 v{29+2*k}, {v(29+2*k) if r else 0}, {v(WDF+8+8*k+r)}, vcc')
            self.dpp('v_add_f32', range(28, 34), ['row_ror:8']); self.xsum([29, 31, 33], 34)
            a(f's_mov_b32 {t0}, {f32(1/576)}'); a(f'v_mov_b32 v40, {f32(1e-5)}')
            for op in range(5):
                for S in (28, 30, 32):
                    a([f'v_mul_f32 {v(S)}, {f32(-1/576)}, {v(S)}', f'v_fma_f32 {v(S+1)}, {v(S+1)}, {t0}, v40', f'v_fma_f32 {v(S+1)}, -{v(S)}, {v(S)}, {v(S+1)}',
                       f'v_max_f32 {v(S+1)}, v40, {v(S+1)}', f'v_rsq_f32 {v(S+1)}, {v(S+1)}'][op])
            a(f's_cmp_eq_u32 {sW}, 3'); a(f's_cselect_b32 {t2}, 288, 0'); a(f's_cselect_b32 {t4}, 320, 0'); a(f'v_subrev_u32 v41, {t2}, v64'); a(f'v_subrev_u32 v42, {t4}, v64')
            def put():
                self.exec(0xff)
                for k in range(2): a(f'ds_write2_b32 v64, v{28+2*k}, v{29+2*k} offset0:{8*k} offset1:{80+8*k}')
                for r in (41, 42): a(f'ds_write2_b32 v{r}, v32, v33 offset0:16 offset1:96')
                self.exec(-1)
            self.only(f's_cmp_lg_u32 {sW}, 0', put)
        self.fin = fin
        if not o['defer']: fin([])
        self.stamp('flag0')
        a('s_branch L_main')
        a.raw('L_startend:')
        a.raw('.p2align 12')
        a.label('L_main')
        a.barrier()
        self.stamp('h0')

    def ones(self):
        a = self.a
        def f():
            a(f'v_mul_u32_u24 {v(vA)}, {HP}, v0'); a(f'v_add_u32 {v(vA)}, {LH + 1024}, {v(vA)}')
            for k in range(4): a(f'v_mov_b32 {v(XFB+k)}, {ONES}')
            self.exec(0x1ff); a(f'ds_write_b128 {v(vA)}, {v(XFB,4)}'); self.exec(-1)
        self.w(2, f)

    def gu(self, mat, q):
        return [f's_add_u32 m0, {sGL}, {(UP if mat else GATE) + 4096*q}', f's_add_u32 s1, {sGU}, {589824*q}',
                f'buffer_load_dwordx4 {v(vD if mat else vC)}, {sWU if mat else sWG}, s1 offen{self.o["nt"]} lds']
    def gu_at(self, pos):
        return [self.gu(m, q) for m, k in ((0, self.o['gate']), (1, self.o['up'])) if k == pos for q in range(9)]

    def consts(self):
        a = self.a
        a(f'''v_lshrrev_b32 v28, 3, {v(vI)}
        v_mul_u32_u24 v28, 9216, v28
        v_and_b32 v29, 7, {v(vI)}
        v_and_b32 v31, 6, v29
        v_xor_b32 v32, v31, {v(vG)}
        v_lshlrev_b32 v32, 4, v32
        v_lshl_add_u32 v32, v29, 7, v32
        v_add_u32 {v(vXe)}, v32, v28
        v_xor_b32 {v(vXo)}, 64, {v(vXe)}
        v_cmp_gt_u32 vcc, 8, {v(vI)}
        v_mov_b32 v33, {LH + 1024}
        v_add_u32 v34, {LH - 9216}, {v(vXe)}
        v_add_u32 v35, {LH - 9216}, {v(vXo)}
        v_cndmask_b32 {v(vHe)}, v34, v33, vcc
        v_cndmask_b32 {v(vHo)}, v35, v33, vcc''')
        a(f's_mul_i32 {t0}, {sCG}, 9'); a(f's_mul_i32 {t1}, {sW}, 18432')
        a(f'v_lshl_add_u32 v33, v29, 7, v28'); a(f'v_add_u32 v33, {t1}, v33')
        for P in range(3):
            a(f's_add_u32 {t2}, {t0}, {4*P}')
            if P < 2: a(f'v_add_u32 v34, {t2}, {v(vG)}')
            else: a(f'v_mov_b32 v34, {t2}')
            a(f'''v_lshrrev_b32 v35, 3, v34
            v_and_b32 v34, 7, v34
            v_xor_b32 v34, v34, v31
            v_lshl_add_u32 v35, v35, 10, v33
            v_lshl_add_u32 {v(vRA+P)}, v34, 4, v35''')
        a(f'v_and_b32 v34, 1, {v(vG)}'); a(f'v_lshl_add_u32 {v(vRA+2)}, v34, 3, {v(vRA+2)}')
        a(f'''v_bfe_u32 v35, v0, 2, 2
        v_lshl_add_u32 v35, {v(vG)}, 3, v35
        v_mul_u32_u24 v35, 9216, v35
        v_xor_b32 v36, v34, v0
        v_and_b32 v36, 3, v36
        v_lshl_add_u32 {v(vC)}, v36, 4, v35
        v_xor_b32 {v(vD)}, 32, {v(vC)}
        v_lshlrev_b32 {v(vF)}, 4, {v(vG)}
        v_lshl_add_u32 {v(vF)}, {v(vI)}, 6, {v(vF)}
        v_mov_b32 v35, {OOB}
        v_cmp_gt_u32 vcc, 6, {v(vI)}
        s_lshl_b32 {t1}, {sT}, 12
        s_add_u32 {t1}, {t1}, {XF}
        v_cndmask_b32 {v(vF)}, v35, {v(vF)}, vcc
        v_min_u32 v37, 31, v0
        v_lshl_add_u32 {v(vE)}, v37, 7, {t1}''')
        a(f'''v_lshlrev_b32 v34, 14, v34
        v_lshrrev_b32 v35, 1, {v(vG)}
        v_lshl_add_u32 v34, v35, 8, v34
        v_lshl_add_u32 {v(vOB)}, {v(vI)}, 4, v34''')
        a(f'v_mov_b32 v36, 0x{BIG:x}'); a('v_mov_b32 v37, 0xffff'); a('v_mov_b32 v38, 0xffff0000')
        for r in range(4):
            a(f'''v_lshl_add_u32 v34, {v(vG)}, 2, {r}
            v_cmp_le_u32 {sMK[r]}, v34, {v(vI)}
            v_sub_u32 v35, {v(vI)}, v34
            v_and_b32 v35, 8, v35
            v_cmp_eq_u32 vcc, 0, v35
            v_cndmask_b32 v{40+r}, 0, v{37+(r&1)}, {sMK[r]}
            v_cndmask_b32 {v(vM+r)}, v36, 0, vcc''')
        a(f'v_or_b32 {v(vPM)}, v40, v41'); a(f'v_or_b32 {v(vPM+1)}, v42, v43')
        a(f'''v_and_b32 v34, 0x33, v0
        v_mov_b32 v35, 0x3f80
        v_mov_b32 v36, 0x3f800000
        v_cmp_eq_u32 vcc, 16, v34
        v_cndmask_b32 {v(vSEL)}, 0, v35, vcc
        v_cmp_eq_u32 vcc, 17, v34
        v_cndmask_b32 {v(vSEL)}, {v(vSEL)}, v36, vcc
        v_cmp_eq_u32 vcc, 18, v34
        v_cndmask_b32 {v(vSEL+1)}, 0, v35, vcc''')

    def xread(self, ks, t, d):
        if t == 0: return f'ds_read_b128 {v(d,4)}, {v(vHo if ks & 1 else vHe)} offset:{HP*(ks>>1)}'
        return f'ds_read_b128 {v(d,4)}, {v(vXo if ks & 1 else vXe)} offset:{18432*(t-1) + 1024*(ks>>1)}'
    def mm(self, ks, t, n, x):
        d = ACC + 20 * n + 4 * t; w = v(Wf(ks, n), 4); x = v(x, 4)
        A, B = (x, w) if n == 2 else (w, x)
        return f'v_mfma_f32_16x16x32_bf16 {v(d,4)}, {A}, {B}, {v(d,4) if ks else 0}'
    def weave(self, mms, fill):
        n = len(mms)
        for k, m in enumerate(mms):
            self.a(m)
            if fill and (k % 2 or len(fill) > (n - k) // 2): self.run(fill.pop(0))
        while fill: self.run(fill.pop(0))
    def wd_units(self):
        assert self.wdn >= 36 or self.o['noffn']
        U = [[f'v_bfe_u32 {v(vA)}, v0, 2, 2', f'v_lshl_add_u32 {v(vA)}, {v(vG)}, 3, {v(vA)}', f'v_mul_u32_u24 {v(vA)}, 1152, {v(vA)}'],
             [f'v_and_b32 {v(vB)}, 3, v0', f'v_lshl_add_u32 {v(vA)}, {v(vB)}, 3, {v(vA)}', f's_mul_i32 {t0}, {sW}, 288', f's_add_u32 {t0}, {t0}, {UP}', f'v_add_u32 {v(vA)}, {t0}, {v(vA)}']]
        for n in range(9): U.append([f'ds_read_b64_tr_b16 {v(WDF+4*n+2*jh,2)}, {v(vA)} offset:{32*n + 4608*jh}' for jh in range(2)])
        return U
    def gemm0(self):
        a = self.a; o = self.o; D = o['depth']
        def wload(ks):
            r = [[f's_add_u32 {t3}, {sWB}, {3456*ks}', f'buffer_load_dwordx4 {v(Wf(ks,0),4)}, {v(vL16)}, {sWS}, {t3} offen{o["wsc"]}']]
            for n in (1, 2): r.append([f'buffer_load_dwordx4 {v(Wf(ks,n),4)}, {v(vL16)}, {sWS}, {t3} offen offset:{1024*n}{o["wsc"]}'])
            r.append([f'buffer_load_dwordx4 {v(Wf(ks,3),4)}, {v(vF)}, {sWS}, {t3} offen offset:3072{o["wsc"]}'])
            return r
        xb = lambda ks, t: XFB + 20 * (ks & 1) + 4 * t
        extra = {ks: [] for ks in range(18)}; hook = {}
        def wpf(j):
            a(f's_add_u32 s1, {sM if j == 4 else sKEY}, {3456*4*j}')
            a.untracked(f'buffer_load_dword {v(vDUM)}, v{52 if j == 4 else 49}, {sWS}, s1 offen{o["wsc"]}')
        if o['wpf']:
            a(f'''s_and_b32 {t4}, {sT}, 3
            s_mul_i32 {sKEY}, {t4}, 3456
            s_add_u32 {sKEY}, {sKEY}, {sWB}
            s_mul_i32 {t4}, {t4}, {14*128}
            s_min_u32 {t4}, {t4}, {40*128}
            s_add_u32 {sM}, {t4}, {sWB}
            v_min_u32 v49, 26, v0
            v_lshlrev_b32 v49, 7, v49
            v_min_u32 v52, {13*128}, v49''')
        W0 = sum((wload(ks) for ks in range(D)), [])
        if o['defer']:
            n0, n1 = o['defer']
            for x in W0[:n0]: self.run(x)
            self.fin(W0[n0:n1]); W0 = W0[n1:]; self.stamp('fin')
            hook[o['kb']] = lambda: a('s_barrier')
        for t in range(5): a(self.xread(0, t, xb(0, t)))
        for x in W0: self.run(x)
        for j, k in enumerate(o['wpf']):
            if k >= 0: extra[k].append(lambda j=j: wpf(j + 1))
        M = self.pfetch('m', 56)
        if M:
            Md = [u for u in M if not callable(u) and 'lds' in u[-1]]; Ms = [u for u in M if callable(u)]; assert len(Ms) <= 1
            for u in M:
                if u not in Md and u not in Ms: self.run(u)
            a({'cg': f's_mov_b32 {sOWN}, {sCG}', 'q': f's_lshr_b32 {sOWN}, {sLI}, 3', 'x': f's_mov_b32 {sOWN}, {sXCD}', 'c4': f's_and_b32 {sOWN}, {sCG}, 3', 'c2': f's_and_b32 {sOWN}, {sCG}, 1'}[o['msel']])
            def burst():
                for u in Ms: self.run(u)
                if Md: self.only(f's_cmp_lt_u32 {sLI}, 18', lambda: [self.run(u) for u in Md])
            for k, ks in enumerate(o['mks']): extra[ks].append(lambda k=k: self.only(f's_cmp_eq_u32 {sOWN}, {k}', burst))
        a(f'''s_getreg_b32 {t0}, hwreg(HW_REG_XCC_ID, 0, 4)
        s_or_b32 {t0}, {t0}, {sNON}
        v_mov_b32 v46, {t0}
        s_lshl_b32 {t1}, {sT}, 3
        s_add_u32 {t1}, {t1}, {sCG}
        s_lshl_b32 {t1}, {t1}, 2
        s_add_u32 {t1}, {t1}, {sW}
        s_lshl_b32 {t1}, {t1}, 7
        s_add_u32 {t1}, {t1}, {XF}''')
        if o['pois'] == 'g':
            for k, u in enumerate(self.poisonL(0, 40, '')): extra[1 + k].append(u)
        if o['kg'] >= 0: extra[o['kg']] += [[f'v_mov_b32 v{40+k}, -1' for k in range(4)]] + self.poisonG(0, 40)
        def xf():
            if o['pois'] == 'g': a.wait(self.tk_p)
            self.exec(0xff); a(f'buffer_store_dwordx4 v[46:49], {v(vL16)}, {sWS}, {t1} offen sc1'); self.exec(-1)
        extra[o['kx']].append(xf)
        if o['up'] != 'x':
            hook[2] = lambda: a('s_barrier')
            for k, u in enumerate(self.wd_units()): extra[2 + k * 3 // 4].append(u)
        fl = lambda: a(f'buffer_load_dword v54, {v(vE)}, {sWS}, 0 offen sc1')
        extra[o['kf']].append(fl)
        def chk():
            Lr, Lk = self.L('R'), self.L('C')
            a('v_cmp_ne_u32 vcc, v54, v46'); a(f's_cbranch_vccnz {Lr}'); a.label(Lk)
            def cold():
                a.label(Lr); a.wall()
                self.poll(fl, lambda: (a('v_xor_b32 v47, v54, v46'), a('v_cmp_lt_u32 vcc, 15, v47')))
                a('v_cmp_ne_u32 vcc, 0, v47'); a(f's_cbranch_vccz {Lk}'); a(f's_mov_b32 {sSLOW}, 1'); a(f's_branch {Lk}')
            self.colds.append(cold)
        hook[o['kf'] + D] = chk
        if o['val']: V = self.valid(0, 55); extra[o['kf']].append(V[0]); extra[o['kf'] + D].insert(0, V[1])
        kt = 18 - D
        if o['wopf']:
            extra[o['wopf'] - 1].append([f'v_min_u32 v53, 41, v0', f'v_lshlrev_b32 v53, 7, v53'])
            def wp():
                a(f'''s_and_b32 s1, {sT}, 3
                s_lshl_b32 {t4}, {sCG}, 2
                s_add_u32 s1, s1, {t4}
                s_mul_i32 s1, s1, 20736
                s_mul_i32 {t4}, {sW}, 5120
                s_add_u32 s1, s1, {t4}
                s_add_u32 s1, s1, {WOP}''')
                a.untracked(f'buffer_load_dword {v(vDUM)}, v53, {sWS}, s1 offen sc1')
            extra[o['wopf']].append(wp)
        if o['valx']: V = self.validx(57); extra[o['valx'] - 1].append(V[0]); extra[o['valx']].append(V[1])
        extra[kt] += self.pfetch('g', 50)
        for q, u in enumerate(self.gu_at('g')): extra[kt + q * D // 18].append(u)
        for ks in range(18):
            if ks in hook: hook[ks]()
            if ks in o['gst']: self.stamp(f'g{ks}')
            fill = []
            if ks + 1 < 18: fill += [[self.xread(ks + 1, t, xb(ks + 1, t))] for t in range(5)]
            if ks + D < 18: fill += wload(ks + D)
            fill += extra[ks]
            if ks == 17: fill += [[x] for x in self.pre_attn()]
            self.weave([self.mm(ks, t, n, xb(ks, t)) for t in range(5) for n in range(4)], fill)
        self.stamp('gemm0')
    HB = staticmethod(lambda ks: XFB + 16 + 4 * (ks % 6))
    def phase2(self, extra):
        pa = [[x] for x in self.pre_attn()]; k0 = 18 - (len(pa) + 1) // 2
        assert len(extra) <= 3 * k0
        for ks in range(18):
            fill = [[self.xread(ks + 5, 0, self.HB(ks + 5))]] if ks + 5 < 18 else []
            src, n = (extra, 3) if ks < k0 else (pa, 2)
            fill += src[:n]; del src[:n]
            self.weave([self.mm(ks, 0, n, self.HB(ks)) for n in range(4)], fill)
    def gemm1(self):
        a = self.a; o = self.o; sx = self.sx
        xb = lambda ks, t: XFB + 16 * (1 - (ks & 1)) + 4 * (t - 1)
        extra = {ks: [] for ks in range(18)}
        q0, q1 = o['xq']; assert q1 >= 2 * (o['h3'] // 2 + 1)
        for k, q in enumerate(range(q0, q1)): extra[k // o['xr']].append(lambda q=q: setattr(self, 'tk_x', self.x1piece(q)))
        U1 = [(lambda q=q: setattr(self, 'tk_gu', self.x1piece(q))) for q in range(q1, 18)]
        self.xlate = []
        if o['xh3']: self.xlate, U1 = U1, []
        U = self.pfetch('x', 64)
        for u in self.gu_at('x'): U.append(lambda u=u: setattr(self, 'tk_gu', self.run(u)))
        fa = self.ffn_addr(); U += U1
        ks = 0
        while U:
            n = max(0, o['gux'] - len(extra[ks])); extra[ks] += U[:n]; del U[:n]; ks += 1
        P = XFB + 32; k0, k1, k2, k3 = o['rp']; sp = self.sp
        R = [[f'v_mov_b32 {v(P+k)}, -1' for k in range(4)], [f'buffer_store_dwordx4 {v(P,4)}, {v(vOB)}, {sWS}, {sOBs} offen{sp}'],
             [f's_add_u32 s1, {sOBs}, 32768', f'buffer_store_dwordx4 {v(P,4)}, {v(vOB)}, {sWS}, s1 offen{sp}'],
             lambda: (self.exec(0xffff), setattr(self, 'tk_p', a(f'buffer_store_dwordx4 {v(P,4)}, {v(vL16)}, {sWS}, {sORs} offen{sp}')), self.exec(-1))]
        extra[k0] += R[:2]; extra[k0 + 1] += R[2:]
        def rf():
            a.wait(self.tk_p); self.run(self.xfaddr('s1')); self.exec(0xff); a(f'buffer_store_dwordx4 {v(P,4)}, {v(vL16)}, {sWS}, s1 offen{sp}'); self.exec(-1)
        extra[k1] += [rf] + self.poisonG(1, P)
        fl = lambda: a(f'buffer_load_dword {v(P+5)}, {v(P+4)}, {sWS}, 0 offen sc1')
        extra[k2] += [[f's_lshl_b32 s1, {sT}, 12', f's_add_u32 s1, s1, {XF}', f'v_min_u32 {v(P+4)}, 31, v0', f'v_lshl_add_u32 {v(P+4)}, {v(P+4)}, 7, s1'], fl]
        self.rchk = lambda: self.verify(fl, lambda: a(f'v_cmp_ne_u32 vcc, -1, {v(P+5)}'))
        extra[o['h3'] - 1] += [fa[k:k+2] for k in range(0, len(fa), 2)]
        assert ks <= o['h3'], ks
        hook = self.hooks()
        for t in range(1, 5): a(self.xread(0, t, xb(0, t)))
        for ks in range(18):
            if ks in hook: hook[ks]()
            fill = [[self.xread(ks + 1, t, xb(ks + 1, t))] for t in range(1, 5)] if ks < 17 else [[self.xread(k, 0, self.HB(k))] for k in range(5)]
            self.weave([self.mm(ks, t, n, xb(ks, t)) for t in range(1, 5) for n in range(4)], fill + extra[ks])
        if 18 in hook: hook[18]()
        self.stamp('ph1')
        a(f's_cmp_lg_u32 {sOWN}, 0'); a(f's_cbranch_scc1 L_patch{sx}')
        self.phase2([])
        a.label(f'L_patched{sx}')
        self.colds.insert(0, self.patch)
        self.stamp('gemm1')
    def pre_attn(self):
        r = [f'v_lshlrev_b32 {v(vA)}, 2, {v(vI)}', f'v_add_u32 {v(vA)}, {NM}, {v(vA)}',
             f'v_lshlrev_b32 {v(vB)}, 4, {v(vG)}', f'v_add_u32 {v(vB)}, {NM}, {v(vB)}']
        r += [f'ds_read_b128 {v(RES,4)}, {v(vRA)}', f'ds_read_b128 {v(RES+4,4)}, {v(vRA+1)}', f'ds_read_b64 {v(RES+8,2)}, {v(vRA+2)}']
        r += [f'ds_read2_b32 {v(PAIR+2*t,2)}, {v(vA)} offset0:{16*t} offset1:{80+16*t}' for t in range(5)]
        return r + self.vform(0) + self.vform(1)
    def vform(self, t):
        d = XFB + 8 * (t & 1)
        return [f'ds_read_b128 {v(d,4)}, {v(vB)} offset:{64*t}', f'ds_read_b128 {v(d+4,4)}, {v(vB)} offset:{320+64*t}']

    def attn(self, lay):
        a0 = self.a; o = self.o; W = sWS
        a0.barrier()
        self.stamp(f'abar{lay}')
        a0(f's_mul_i32 {t0}, {sW}, 20480'); a0(f's_mul_i32 {t1}, {sCG}, 82944'); a0(f's_add_u32 {t1}, {t1}, {t0}')
        wo = []
        for q in range(21):
            x = []
            if q % 4 == 0: x += [f's_add_u32 m0, {t0}, {1024*q}', f's_add_u32 {t2}, {t1}, {WOP + 1024*q}']
            x.append(f'buffer_load_dwordx4 {v(vL16)}, {sWS}, {t2} offen offset:{1024*(q%4)} sc1 lds')
            wo.append(x)
        dma = list(wo); post = []
        if lay == 0:
            dma += self.gu_at('a'); post += self.gu_at('o')
        cnt = [0]; self.tk_wo = None
        def drain(l):
            x = l.pop(0); tk = self.run(x)
            if x is wo[-1]: self.tk_wo = tk
        def a(t):
            for l in t.strip().split('\n'):
                a0(l.strip()); cnt[0] += 1
                if cnt[0] >= o['wo0'][lay] and cnt[0] % (o['wostep'][lay] if type(o['wostep']) is tuple else o['wostep']) == 0 and dma: drain(dma)
        csQ, csK, csR, csV = CS, CS + 4, CS + 8, CS + 12
        for t in range(5): a(f'v_mul_f32 {v(RSK+t)}, {f32(18**-0.5 * LOG2E)}, {v(PAIR+2*t+1)}')
        a(f'v_mov_b32 {v(csV)}, {v(Vb)}\nv_mov_b32 {v(csV+1)}, {v(Vb)}')
        for cs, b in ((csR, Rb), (csK, Kb), (csQ, Qb)):
            for r in range(4): a(f'v_mov_b32_dpp {v(cs+r)}, {v(b+r)} row_newbcast:0 row_mask:0xf bank_mask:0xf')
        a(f'v_permlane32_swap_b32 {v(csV)}, {v(csV+1)}')
        SC = XFB + 20
        def fold(t):
            P = v(PAIR + 2 * t, 2); kp = v(RSK + (t & ~1), 2); ks_ = f'op_sel:[0,{t&1}] op_sel_hi:[1,{t&1}]'
            q, k, vv, r = Qb + 4*t, Kb + 4*t, Vb + 4*t, Rb + 4*t
            for b, cs in ((r, csR), (k, csK)) + (((q, csQ),) if t else ()):
                for h in (0, 2): a(f'v_pk_fma_f32 {v(b+h,2)}, {v(cs+h,2)}, {P}, {v(b+h,2)} op_sel_hi:[1,0,1]')
            a(f'v_pk_mul_f32 {v(r,2)}, {v(r,2)}, {P} op_sel:[0,1] op_sel_hi:[1,1]')
            a(f'v_pk_mul_f32 {v(r+2,2)}, {v(r+2,2)}, {kp} {ks_}')
            for h in (0, 2): a(f'v_pk_mul_f32 {v(k+h,2)}, {v(k+h,2)}, {kp} {ks_}')
            nm = XFB + 8 * (t & 1)
            if t:
                for h in (0, 2): a(f'v_pk_mul_f32 {v(q+h,2)}, {v(q+h,2)}, {P} op_sel:[0,1] op_sel_hi:[1,1]')
            for h in (0, 2): a(f'v_pk_fma_f32 {v(vv+h,2)}, {v(nm+h,2)}, {v(csV,2)}, {v(vv+h,2)} op_sel_hi:[1,0,1]')
            for h in (0, 2): a(f'v_pk_mul_f32 {v(vv+h,2)}, {v(vv+h,2)}, {v(nm+4+h,2)}')
            if t: a(f'v_cvt_pk_bf16_f32 {v(q)}, {v(q)}, {v(q+1)}\nv_cvt_pk_bf16_f32 {v(q+1)}, {v(q+2)}, {v(q+3)}')
            a(f'v_cvt_pk_bf16_f32 {v(q+2)}, {v(r)}, {v(r+1)}\nv_mov_b32 {v(q+3)}, 0x3f80')
            a(f'v_cvt_pk_bf16_f32 {v(k)}, {v(k)}, {v(k+1)}\nv_cvt_pk_bf16_f32 {v(k+1)}, {v(k+2)}, {v(k+3)}')
            if t: a(f'v_mfma_f32_16x16x32_bf16 {v(q-4,4)}, {v(k-4,4)}, {v(q,4)}, {v(vM,4)}')
            a(f'v_cvt_pk_bf16_f32 {v(k+2)}, {v(r+2)}, {v(r+3)}\nv_mov_b32 {v(k+3)}, 0')
            a(f'v_mfma_f32_16x16x16_bf16 {v(r,4)}, {v(q+2,2)}, {v(vSEL,2)}, 0')
            a(f'v_cvt_pk_bf16_f32 {v(Vb+2*t)}, {v(vv)}, {v(vv+1)}\nv_cvt_pk_bf16_f32 {v(Vb+2*t+1)}, {v(vv+2)}, {v(vv+3)}')
            if t: a(f'v_mfma_f32_16x16x32_bf16 {v(SC+4*(t-1),4)}, {v(k,4)}, {v(q,4)}, {v(vM,4)}')
            if t + 2 < 5:
                for x in self.vform(t + 2): a(x)
        for t in range(5): fold(t)
        self.stamp(f'fold{lay}')
        MX = XFB + 16
        for h in (0, 2): a(f'v_pk_add_f32 {v(Qb+h,2)}, {v(Qb+h,2)}, {sBIAS}')
        for t in range(4):
            sc_ = SC + 4*t
            for r in range(4): a(f'v_cndmask_b32 {v(sc_+r)}, {v(Qb+4*t+r)}, {v(sc_+r)}, {sMK[r]}')
            a(f'v_max3_f32 {v(MX+t)}, {v(sc_)}, {v(sc_+1)}, {v(sc_+2)}\nv_max_f32 {v(MX+t)}, {v(MX+t)}, {v(sc_+3)}')
        vr = []
        for t in range(5):
            r = Rb + 4*t
            vr += [f'v_cvt_pk_bf16_f32 {v(Rb+2*t)}, {v(r)}, {v(r+1)}', f'v_cvt_pk_bf16_f32 {v(Rb+2*t+1)}, {v(r+2)}, {v(r+3)}']
        a(f'''v_permlane32_swap_b32 {v(MX)}, {v(MX+1)}
        {vr[0]}
        v_permlane32_swap_b32 {v(MX+2)}, {v(MX+3)}
        v_max_f32 {v(MX)}, {v(MX)}, {v(MX+1)}
        v_max_f32 {v(MX+2)}, {v(MX+2)}, {v(MX+3)}
        {vr[1]}
        {vr[2]}
        v_permlane16_swap_b32 {v(MX)}, {v(MX+2)}
        v_max_f32 {v(MX)}, {v(MX)}, {v(MX+2)}
        v_mov_b32 {v(MX+2)}, {v(MX)}
        {vr[3]}
        {vr[4]}
        v_permlane16_swap_b32 {v(MX)}, {v(MX+2)}
        v_mov_b32 {v(MX+1)}, {v(MX)}
        v_mov_b32 {v(MX+3)}, {v(MX+2)}
        {vr[5]}
        v_permlane32_swap_b32 {v(MX)}, {v(MX+1)}
        v_permlane32_swap_b32 {v(MX+2)}, {v(MX+3)}''')
        for x in vr[6:]: a(x)
        for t in range(4):
            sc_ = SC + 4*t
            for h in (0, 2): a(f'v_pk_add_f32 {v(sc_+h,2)}, {v(sc_+h,2)}, {v(MX+(t&~1),2)} op_sel:[0,{t&1}] op_sel_hi:[1,{t&1}] neg_lo:[0,1] neg_hi:[0,1]')
        def pv(t, k):
            p = Kb + 4*t
            return f'v_mfma_f32_16x16x32_bf16 {v((SC if k else XFB)+4*t,4)}, {v((Vb if k else Rb)+2*t,4)}, {v(p,4)}, 0'
        for t in range(4):
            sc_ = SC + 4*t; p = Kb + 4*t
            for r in range(4):
                a(f'v_exp_f32 {v(sc_+r)}, {v(sc_+r)}')
                if t and r in (1, 2): a(pv(t - 1, r - 1))
            a(f'v_cvt_pk_bf16_f32 {v(p+2)}, {v(sc_)}, {v(sc_+1)}\nv_cvt_pk_bf16_f32 {v(p+3)}, {v(sc_+2)}, {v(sc_+3)}')
            for h in range(2): a(f'v_bfi_b32 {v(p+h)}, {v(vPM+h)}, 0, {v(p+2+h)}')
            for h in range(2): a(f'v_and_b32 {v(p+2+h)}, {v(vPM+h)}, {v(p+2+h)}')
        OP = Qb
        a(f'v_rcp_f32 {v(XFB+2)}, {v(XFB+2)}\nv_rcp_f32 {v(XFB+6)}, {v(XFB+6)}')
        a(pv(3, 0)); a(f'v_rcp_f32 {v(XFB+10)}, {v(XFB+10)}'); a(pv(3, 1))
        a(f's_mul_i32 {t4}, {sW}, 252\ns_sub_u32 {t4}, {sORs}, {t4}\ns_add_u32 {t3}, {sOBs}, 32768')
        for t in range(4):
            d = SC + 4*t; e = XFB + 4*t
            if t == 2: a(f'v_rcp_f32 {v(XFB+14)}, {v(XFB+14)}')
            for b in (d, d + 2, e): a(f'v_pk_mul_f32 {v(b,2)}, {v(b,2)}, {v(e+2,2)} op_sel_hi:[1,0]')
            a(f'v_cvt_pk_bf16_f32 {v(OP+2*t)}, {v(d)}, {v(d+1)}\nv_cvt_pk_bf16_f32 {v(OP+2*t+1)}, {v(d+2)}, {v(d+3)}')
            a(f'v_cvt_pk_bf16_f32 {v(OP+8+t)}, {v(e)}, {v(e+1)}')
            if t == 2:
                while dma: drain(dma)
                for h in range(2): a(f'v_permlane16_swap_b32 {v(OP+h)}, {v(OP+2+h)}')
                a(f'buffer_store_dwordx4 {v(OP,4)}, {v(vOB)}, {W}, {sOBs} offen{self.sp}')
        a = a0
        for t in (1, 2): a(f'v_mov_b32_dpp {v(OP+8)}, {v(OP+8+t)} quad_perm:[0,1,2,3] row_mask:{1<<t} bank_mask:0xf')
        for h in range(2): a(f'v_permlane16_swap_b32 {v(OP+4+h)}, {v(OP+6+h)}')
        a(f'v_mov_b32_dpp {v(OP+8)}, {v(OP+11)} quad_perm:[0,1,2,3] row_mask:8 bank_mask:0xf')
        a(f'buffer_store_dwordx4 {v(OP+4,4)}, {v(vOB)}, {W}, {t3} offen{self.sp}')
        self.tk_o = a(f'buffer_store_dword {v(OP+8)}, {v(vL16)}, {W}, {t4} offen{self.sp}')
        self.stamp(f'attn{lay}')
        while post: drain(post)

    def p2(self, lay):
        a = self.a; o = self.o; W = sWS; sp = self.sp; xp = sp or o['xsc']
        a(f's_add_u32 {sTAG}, {sNON}, {lay}')
        AD = ACC + 72
        NS = o['ring'][lay] if lay or o['up'] == 'x' else 10
        slot = lambda k: (XFB + 4 * (k % NS)) if k % NS < 10 else ((224 if lay else WDF) + 4 * (k % NS - 10))
        if lay:
            a(f's_lshl_b32 {t0}, {sW}, 6'); a(f's_add_u32 {t0}, {t0}, {NM + 640 + 64}'); a(f'v_lshl_add_u32 {v(vA)}, {v(vI)}, 2, {t0}')
            a(f'ds_read2_b32 {v(AD+4,2)}, {v(vA)} offset0:0 offset1:80')
        a(f'''v_lshlrev_b32 {v(vE)}, 10, {v(vG)}
        v_lshl_add_u32 {v(vE)}, {v(vI)}, 4, {v(vE)}
        s_lshl_b32 {t0}, {sW}, 14
        s_add_u32 {t0}, {t0}, {sTB}
        s_lshl_b32 {t2}, {sW}, 8
        s_add_u32 {t2}, {t2}, {sTB}
        s_add_u32 {t2}, {t2}, {oOR}
        s_add_u32 {t3}, {t2}, 4096
        v_add_u32 {v(AD)}, {9*4608}, {v(vL16)}
        v_and_b32 {v(AD+1)}, 7, v0
        v_lshlrev_b32 {v(AD+1)}, 4, {v(AD+1)}
        v_lshl_add_u32 {v(AD+1)}, {v(vG)}, 7, {v(AD+1)}
        v_add_u32 {v(AD+2)}, {9*4608}, {v(AD+1)}''')
        def init():
            for k in range(10):
                a(f'v_lshlrev_b32 {v(ACC2+2*k)}, 16, {v(RES+k)}'); a(f'v_and_b32 {v(ACC2+2*k+1)}, 0xffff0000, {v(RES+k)}')
                if lay: a(f'v_pk_fma_f32 {v(ACC2+2*k,2)}, {v(ACC2+2*k,2)}, {v(AD+4,2)}, {v(AD+4,2)} op_sel:[0,0,1] op_sel_hi:[1,0,1]')
        init()
        order = [16, 17] + list(range(16))
        def wread(k):
            ks, n = order[k // 5], k % 5; hi = ks >= 9
            ad = (AD + 2 if hi else AD + 1) if n == 4 else (AD if hi else vL16)
            return f'ds_read_b128 {v(slot(k), 4)}, {v(ad)} offset:{4608*(ks - 9*hi) + 1024*n}'
        def oload(ks):
            if ks % 4 == 0: a(f's_add_u32 {t1}, {t0}, {1024*ks}')
            a(f'buffer_load_dwordx4 {v(ACC+4*ks,4)}, {v(vL16)}, {W}, {t1} offen offset:{1024*(ks%4)} sc1')
        N0 = o['p2n']; G0 = o['p2g']
        def first():
            for ks in range(2): a(f'buffer_load_dwordx4 {v(ACC+64+4*ks,4)}, {v(vE)}, {W}, {t3 if ks else t2} offen sc1')
            for ks in range(G0): oload(ks)
        Lp, Lr, Lq, Lg = [self.L() for _ in range(4)]
        a.wait(self.tk_wo); a.barrier()
        self.stamp(f'oack{lay}')
        n1 = min(o['p2r'], NS - 1)
        for k in range(n1): a(wread(k))
        if sp or o['p2w']: a.wait(self.tk_o)
        first()
        for k in range(n1, NS - 1): a(wread(k))
        a.label(Lp)
        for x in self.maxu(AD + 3, range(ACC + 64, ACC + 72)): a(x)
        a(f'v_cmp_eq_u32 vcc, -1, {v(AD+3)}'); a(f's_cbranch_vccz {Lg}')
        a.label(Lq); self.tick(); a.wvm(0); first(); a.wvm(0); a(f's_branch {Lp}')
        a.label(Lg)
        for ks in range(G0, N0): oload(ks)
        self.stamp(f'ogate{lay}')
        U = [[f's_mul_i32 {t4}, {sCG}, 144', f's_add_u32 {t4}, {t4}, {WRL}', f'v_lshl_add_u32 {v(vA)}, {v(vG)}, 4, {t4}'],
             [f'v_and_b32 {v(vB)}, 1, {v(vG)}', f'v_lshl_add_u32 {v(vB)}, {v(vB)}, 3, {t4}'],
             [f'ds_read_b128 {v(WRP,4)}, {v(vA)}'], [f'ds_read_b128 {v(WRP+4,4)}, {v(vA)} offset:64'], [f'ds_read_b64 {v(WRP+8,2)}, {v(vB)} offset:128']]
        if lay == 0:
            x = f'''v_lshrrev_b32 {v(vA)}, 3, {v(vI)}
            v_mul_u32_u24 {v(vA)}, 9216, {v(vA)}
            v_add_u32 {v(vXe)}, {v(vA)}, {v(AD+1)}
            v_add_u32 {v(vXo)}, 512, {v(vXe)}
            v_cmp_gt_u32 vcc, 8, {v(vI)}
            v_mov_b32 {v(vA)}, {LH + 1024}
            v_add_u32 {v(vHe)}, {LH - 9216}, {v(vXe)}
            v_add_u32 {v(vHo)}, {LH - 9216}, {v(vXo)}
            v_cndmask_b32 {v(vHe)}, {v(vHe)}, {v(vA)}, vcc
            v_cndmask_b32 {v(vHo)}, {v(vHo)}, {v(vA)}, vcc
            s_lshl_b32 {t4}, {sW}, 4
            s_add_u32 {t4}, {t4}, {sCG}
            s_mul_i32 {t4}, {t4}, 1152
            v_add_u32 {v(vRA)}, {t4}, {v(vXe)}
            v_add_u32 {v(vRA+1)}, 512, {v(vRA)}
            v_lshlrev_b32 {v(vA)}, 7, {v(vG)}
            v_sub_u32 {v(vA)}, {v(vRA)}, {v(vA)}
            v_and_b32 {v(vB)}, 1, {v(vG)}
            v_lshl_add_u32 {v(vA)}, {v(vB)}, 3, {v(vA)}
            v_add_u32 {v(vRA+2)}, 1024, {v(vA)}'''
        else: x = f'v_mul_u32_u24 {v(vXe)}, 2304, {v(vI)}\nv_lshl_add_u32 {v(vXe)}, {v(vG)}, 4, {v(vXe)}'
        U += [[l.strip()] for l in x.split('\n')]
        V = (self.pfetch('p', vA) + self.gu_at('p')) if lay == 0 else []
        for k in range(90):
            kk, n = divmod(k, 5); ks = order[kk]
            if k + NS - 1 < 90: a(wread(k + NS - 1))
            a(f'v_mfma_f32_16x16x32_bf16 {v(ACC2+4*n,4)}, {v(slot(k),4)}, {v(ACC+4*ks,4)}, {v(ACC2+4*n,4)}')
            if n == 0 and kk + N0 < 16: oload(kk + N0)
            elif ks < 16 and n in (2, 3): a(f'v_max3_u32 {v(AD+3)}, {v(AD+3)}, {v(ACC+4*ks+2*n-4)}, {v(ACC+4*ks+2*n-3)}')
            elif U: self.run(U.pop(0))
            elif V and kk + N0 >= 16: self.run(V.pop(0))
        assert not U
        for u in V: self.run(u)
        a(f'v_cmp_eq_u32 vcc, -1, {v(AD+3)}'); a(f's_cbranch_vccnz {Lr}')
        def cold():
            a.label(Lr); init()
            for k in range(NS - 1): a(wread(k))
            a.wall(); a(f's_branch {Lq}')
        self.colds.append(cold)
        self.stamp(f'p2{lay}')
        XP = ACC; S = ACC + 12
        a(f's_mov_b32 {t0}, {ONES}')
        if lay == 0: a(f's_add_u32 {t1}, {sTB}, {oX1}')
        def dot(k, first=False):
            for j, x in enumerate((t0, v(XP+k), v(WRP+k))): a(f'v_dot2_f32_bf16 {v(S+j)}, {v(XP+k)}, {x}, {0 if first else v(S+j)}')
        for k in range(10):
            a(f'v_cvt_pk_bf16_f32 {v(XP+k)}, {v(ACC2+2*k)}, {v(ACC2+2*k+1)}')
            if lay == 0 and k in (3, 7): a(f'buffer_store_dwordx4 {v(XP+k-3,4)}, {v(vRA)}, {sWS}, {t1} offen offset:{128*(k-3)}{xp}')
        dot(0, True); a('s_mov_b32 exec_hi, 0'); dot(8); dot(9); self.exec(-1)
        if lay == 0:
            for h in range(2): a(f'v_permlane16_swap_b32 {v(XP+8+h)}, {v(XP+10+h)}')
            self.exec(0xffff); tk = a(f'buffer_store_dwordx4 {v(XP+8,4)}, {v(vRA)}, {sWS}, {t1} offen offset:1024{xp}'); self.exec(-1)
        for k in range(1, 8): dot(k)
        a(f'v_mov_b32 {v(S+3)}, {sTAG}')
        self.xsum([S, S+1, S+2], S + 4, full=False)
        if lay == 0 and not o['dec']: a.wait(tk)
        self.exec(0xffff); self.tk_st = a(f'buffer_store_dwordx4 {v(S,4)}, {v(vL16)}, {W}, {sSTs} offen{sp}'); self.exec(-1)
        self.stamp(f'st{lay}')

    def x1piece(self, q):
        a = self.a; off = 9216 * (q & 1) + 1024 * (q >> 1)
        a(f's_add_u32 m0, {sSW}, {off}'); a(f's_add_u32 s1, {sWB}, {off}')
        return a(f'buffer_load_dwordx4 {v(vL16)}, {sWS}, s1 offen sc1 lds')
    def gstat(self, S, n):
        a = self.a
        for k in range(n): a(f'v_add_f32 {v(S+k)}, {v(S+k)}, {v(S+4+k)}')
        self.xsum(list(range(S, S + n)), S + 4)
        a(f'''v_mul_f32 {v(S)}, {f32(-1/576)}, {v(S)}
        v_mul_f32 {v(S+1)}, {f32(1/576)}, {v(S+1)}
        v_fma_f32 {v(S+1)}, -{v(S)}, {v(S)}, {v(S+1)}
        v_max_f32 {v(S+1)}, 0, {v(S+1)}
        v_add_f32 {v(S+4)}, {f32(1e-5)}, {v(S+1)}
        v_rsq_f32 {v(S+3)}, {v(S+4)}''')
    def lnc(self, S):
        a = self.a
        a(f'''v_add_f32 {v(S+5)}, 1.0, {v(S+3)}
        v_mul_f32 {v(S+6)}, {v(S+5)}, {v(S+5)}
        v_mul_f32 {v(S+6)}, {v(S+6)}, {v(S+1)}
        v_add_f32 {v(S+6)}, {f32(1e-5)}, {v(S+6)}
        v_rsq_f32 {v(S+6)}, {v(S+6)}
        v_mul_f32 {v(S+6)}, {v(S+6)}, {v(S+5)}''')

    def router(self, lay):
        a = self.a; o = self.o; W = sWL[lay]
        S = ACC + 20; K = S + 8; ZP = ACC; ZT = ACC + 40; H = ACC + 60
        a(f'''s_lshl_b32 {t1}, {sW}, 8
        s_add_u32 {t1}, {t1}, {sTB}
        s_add_u32 {t1}, {t1}, {oST}
        s_add_u32 {t2}, {t1}, 4096''')
        def main():
            a(f'buffer_load_dwordx4 {v(S,4)}, {v(vE)}, {sWS}, {t1} offen sc1'); a(f'buffer_load_dwordx4 {v(S+4,4)}, {v(vE)}, {sWS}, {t2} offen sc1')
        def check():
            a(f'v_cmp_ne_u32 {sSV}, {sTAG}, {v(S+3)}'); a(f'v_cmp_ne_u32 vcc, {sTAG}, {v(S+7)}'); a(f's_or_b64 vcc, vcc, {sSV}')
        if lay == 0:
            a.barrier(); self.ones()
            a(f's_mul_i32 {sSW}, {sW}, 18432'); a(f's_add_u32 {sWB}, {sTB}, {oX1}'); a(f's_add_u32 {sWB}, {sWB}, {sSW}')
            idle = self.wd_units() if o['up'] == 'x' else []
        else:
            idle = [[f'ds_read_b64_tr_b16 {v(256+4*ks+2*jh,2)}, {v(vC)} offset:{1024*(2*ks+jh)}' for jh in range(2)] for ks in range(18)]
        dec = o['dec'] and lay == 0
        h = len(idle) * o['idl'][lay] // 6
        for u in idle[:h]: self.run(u)
        if dec:
            self.run(self.xfaddr(t3))
            a(f'''s_lshl_b32 s1, {sCG}, 9
            s_sub_u32 s1, {t3}, s1
            v_min_u32 {v(H+8)}, 7, v0
            v_lshl_add_u32 {v(H+8)}, {v(H+8)}, 9, s1
            v_mov_b32 {v(H+9)}, -1''')
        if not dec and o['stw'][lay]: a.wait(self.tk_st)
        main()
        for u in idle[h:]: self.run(u)
        a(f'v_mov_b32 {v(H+7)}, {SWL}'); a(f'ds_read_b32 {v(H+7)}, {v(H+7)}')
        a(f'''v_lshlrev_b32 {v(vA)}, 4, {v(vG)}
        v_mov_b32 {v(K+3)}, {sNON}
        s_lshl_b32 {t0}, {sW}, 4
        v_or_b32 {v(K+5)}, {t0}, {v(vI)}
        s_add_u32 {t0}, {t0}, {CB}
        v_mov_b32 {v(vB)}, {t0}
        v_and_b32 {v(H+5)}, 3, v0
        v_lshlrev_b32 {v(H+5)}, 4, {v(H+5)}
        v_add_u32 {v(H+5)}, {CB}, {v(H+5)}
        v_lshrrev_b32 {v(H+6)}, 2, v0
        v_lshlrev_b32 {v(H+6)}, 13, {v(H+6)}
        s_lshl_b32 {t0}, {sT}, 8
        s_add_u32 {t0}, {t0}, {CAND}
        s_mov_b32 {t4}, -64''')
        self.verify(main, check)
        self.stamp(f'gath{lay}')
        if dec:
            a.wvm(0); self.exec(1); a(f'buffer_store_dword {v(H+9)}, {v(vL16)}, {sWS}, {t3} offen offset:16{self.sp}'); self.exec(-1)
            xt = lambda: a(f'buffer_load_dword {v(H+10)}, {v(H+8)}, {sWS}, 0 offen offset:16 sc1')
        if lay == 0:
            for q in range(0 if dec else 4): tka = self.x1piece(q)
            def hx():
                a(f's_add_u32 {t1}, {sTB}, {oHX - 7*9216}')
                self.exec(0xff00ff00ff00ff00)
                for k in range(2): a(f'buffer_store_dwordx4 {v(ACC+4*k,4)}, {v(vRA)}, {sWS}, {t1} offen offset:{512*k} sc1')
                self.exec(0xff00); a(f'buffer_store_dwordx4 {v(ACC+8,4)}, {v(vRA)}, {sWS}, {t1} offen offset:1024 sc1'); self.exec(-1)
            if not o['xsc']: self.w(3, hx)
        self.gstat(S, 3)
        a(f'''v_fma_f32 {v(K)}, {v(S)}, {v(H+7)}, {v(S+2)}
        v_mul_f32 {v(K)}, {v(K)}, {v(S+3)}
        v_ashrrev_i32 {v(K+4)}, 31, {v(K)}
        v_lshrrev_b32 {v(K+4)}, 1, {v(K+4)}
        v_xor_b32 {v(K)}, {v(K)}, {v(K+4)}
        v_and_or_b32 {v(K)}, {v(K)}, {t4}, {v(K+5)}''')
        zz = [f'v_mov_b32 {v(K+6)}, {v(S+3)}', f'v_mul_f32 {v(K+7)}, {v(S)}, {v(S+3)}', f'v_mul_f32 {v(K+2)}, {v(S+4)}, {v(S+3)}', f'v_sub_f32 {v(K+1)}, 0, {v(S)}']
        for k in (8, 9, 0, 1, 2, 3, 4, 5, 6, 7):
            zz.append(f'v_pk_fma_f32 {v(ZT+2*k,2)}, {v(ACC2+2*k,2)}, {v(K+6,2)}, {v(K+6,2)} op_sel:[0,0,1] op_sel_hi:[1,0,1]')
        for j, m in enumerate(('row_ror:8', 'row_ror:4', 'row_ror:2', 'row_ror:1')):
            x = K + 4 if j else K
            a(zz.pop(0)); a(zz.pop(0)); a(f'v_max_i32_dpp {v(K+4)}, {v(x)}, {v(x)} {m} row_mask:0xf bank_mask:0xf')
        a(f'v_cmp_eq_u32 {sCM}, {v(K)}, {v(K+4)}')
        a(zz.pop(0)); a(zz.pop(0))
        a(f's_and_b64 exec, {sCM}, 0xffff'); a(f'ds_write_b128 {v(vB)}, {v(K,4)}'); self.exec(-1)
        for x in zz: a(x)
        if dec: xt()
        def cs():
            a.barrier()
            def f():
                a(f'ds_read_b128 {v(H,4)}, {v(H+5)}')
                a(f'v_max_i32_dpp {v(H+4)}, {v(H)}, {v(H)} quad_perm:[1,0,3,2] row_mask:0xf bank_mask:0xf')
                a(f'v_max_i32_dpp {v(H+4)}, {v(H+4)}, {v(H+4)} quad_perm:[2,3,0,1] row_mask:0xf bank_mask:0xf')
                a(f'v_cmp_eq_u32 vcc, {v(H)}, {v(H+4)}'); a('s_mov_b32 exec_hi, 0'); a('s_mov_b32 exec_lo, vcc_lo')
                a(f'buffer_store_dwordx4 {v(H,4)}, {v(H+6)}, {W}, {t0} offen sc1'); self.exec(-1)
            self.w(0, f)
        self.only(f's_cmp_eq_u32 {sCG}, 0', cs)
        for k in (8, 9, 0, 1, 2, 3, 4, 5, 6, 7): a(f'v_cvt_pk_bf16_f32 {v(ZP+k)}, {v(ZT+2*k)}, {v(ZT+2*k+1)}')
        for h in range(2): a(f'v_permlane16_swap_b32 {v(ZP+8+h)}, {v(ZP+10+h)}')
        a(f's_mov_b64 exec, {sCM}')
        for P in range(2): a(f'buffer_store_dwordx4 {v(ZP+4*P,4)}, {v(vA)}, {W}, {sGB} offen offset:{gCZ + 64*P} sc1')
        a(f's_and_b64 exec, {sCM}, 0xffff')
        a(f'buffer_store_dwordx4 {v(ZP+8,4)}, {v(vA)}, {W}, {sGB} offen offset:{gCZ + 128} sc1')
        self.exec(-1)
        self.stamp(f'cand{lay}')
        if lay == 0:
            if dec:
                self.verify(xt, lambda: a(f'v_cmp_ne_u32 vcc, -1, {v(H+10)}')); self.stamp('xt')
                for q in range(4): tka = self.x1piece(q)
            for q in range(4, o['xq'][0]): self.tk_x = self.x1piece(q)
            self.lnc(S)
            a(f's_lshl_b32 {t0}, {sW}, 6'); a(f's_add_u32 {t0}, {t0}, {NM + 64}'); a(f'v_lshl_add_u32 {v(vB)}, {v(vI)}, 2, {t0}')
            a(f'v_mov_b32 v60, {v(S)}'); a(f'v_mov_b32 v61, {v(S+6)}'); a(f'v_mov_b32 v62, 0'); a(f'v_mov_b32 v63, {sNON}')
            self.exec(0xffff)
            a(f'ds_write2_b32 {v(vB)}, {v(S)}, {v(S+6)} offset0:0 offset1:80')
            a(f'ds_write2_b32 {v(vB)}, {v(S+5)}, {v(K+7)} offset0:160 offset1:240')
            self.exec(-1)
            a.wait(tka); a.barrier()
            self.stamp('xa')
        else:
            OPK = ACC + 68
            a(f'v_add_f32 {v(K+6)}, 1.0, {v(K+6)}')
            for k in range(10): a(f'v_pk_fma_f32 {v(ZT+2*k,2)}, {v(ACC2+2*k,2)}, {v(K+6,2)}, {v(K+6,2)} op_sel:[0,0,1] op_sel_hi:[1,0,1]')
            for k in (8, 9, 0, 1, 2, 3, 4, 5, 6, 7): a(f'v_cvt_pk_bf16_f32 {v(OPK+k)}, {v(ZT+2*k)}, {v(ZT+2*k+1)}')
            for h in range(2): a(f'v_permlane16_swap_b32 {v(OPK+8+h)}, {v(OPK+10+h)}')
            a(f's_not_b64 {sSV}, {sCM}')
            if o['odef'] < 4: self.only(f's_cmp_ge_u32 {sW}, {o["odef"]}', lambda: self.outst(sSV))

    def outst(self, m):
        a = self.a; OPK = ACC + 68; f = self.o['osc']
        a(f's_mov_b64 exec, {m}')
        for P in range(2): a(f'buffer_store_dwordx4 {v(OPK+4*P,4)}, {v(vXe)}, {sOUT}, {sOUTo} offen offset:{64*P}{f}')
        a(f's_and_b64 exec, {m}, 0xffff')
        a(f'buffer_store_dwordx4 {v(OPK+8,4)}, {v(vXe)}, {sOUT}, {sOUTo} offen offset:128{f}')
        self.exec(-1)

    C = 28; Z = 40
    def cand_addr(self):
        a = self.a; C = self.C; Z = self.Z
        a(f'v_and_b32 {v(C+10)}, 31, v0'); a(f'v_lshlrev_b32 {v(C+10)}, 8, {v(C+10)}')
        for x in self.div9(Z + 10, 0): a(x)
        a(f'v_mul_u32_u24 {v(Z+10)}, {4096-144}, {v(Z+10)}'); a(f'v_add_u32 {v(Z+10)}, {v(Z+10)}, {v(vL16)}')
        for k in range(4): a(f'v_mov_b32 {v(Z+4+k)}, 0')
        a(f'v_mov_b32 {v(C+9)}, {WIN}')
    def cand_load(self, lay):
        a = self.a; C = self.C; a(f's_lshl_b32 s1, {sXCD}, 13'); a(f's_add_u32 s1, s1, {CAND}')
        a(f'buffer_load_dwordx4 {v(C,4)}, {v(C+10)}, {sWL[lay]}, s1 offen sc1')
    def cand_check(self): self.a(f'v_cmp_ne_u32 vcc, {sNON}, {v(self.C+3)}')
    def row_load(self, W, d, va, sa, vb, off):
        a = self.a
        a(f'buffer_load_dwordx4 {v(d,4)}, {v(va)}, {W}, {sa} offen sc1'); a(f's_add_u32 s1, {sa}, {off}')
        self.exec(0xff); a(f'buffer_load_dwordx4 {v(d+4,4)}, {v(vb)}, {W}, s1 offen sc1'); self.exec(-1)
    def z_load(self, lay): self.row_load(sWL[lay], self.Z, self.Z + 10, t1, vL16, 7*4096 + 16)
    def row_check(self, d):
        for x in self.maxu(d + 8, range(d, d + 8)): self.a(x)
        self.a(f'v_cmp_eq_u32 vcc, -1, {v(d+8)}')
    def argmax(self, lay):
        a = self.a; C = self.C
        for k, m in enumerate(('row_ror:8', 'row_ror:4', 'row_ror:2', 'row_ror:1')):
            x = C + 8 if k else C
            a(f'v_max_i32_dpp {v(C+8)}, {v(x)}, {v(x)} {m} row_mask:0xf bank_mask:0xf')
            if k == 0: a(f'v_mov_b32 {v(C+3)}, v0')
        a(f'v_readlane_b32 {t0}, {v(C+8)}, 0'); a(f'v_readlane_b32 {t1}, {v(C+8)}, 16'); a(f's_max_i32 {sKEY}, {t0}, {t1}')
        a(f'v_cmp_eq_u32 vcc, {sKEY}, {v(C)}')
        a(f'''s_bfe_u32 {t2}, {sKEY}, 0x20004
        s_lshl_b32 {t2}, {t2}, 10
        s_add_u32 {t2}, {t2}, {TB + oGB + gCZ}
        s_ff1_i32_b32 {t0}, vcc_lo
        s_mul_i32 {t1}, {t0}, {BLK}
        s_add_u32 {t1}, {t1}, {t2}''')
    def winput(self):
        a = self.a; C = self.C
        a(f's_lshl_b64 exec, 1, {t0}'); a(f'ds_write_b128 {v(C+9)}, {v(C,4)}'); self.exec(-1)
    def zput(self):
        a = self.a; Z = self.Z
        a(f'v_add_u32 {v(Z+8)}, {ZR}, {v(vL16)}'); a(f'ds_write_b128 {v(Z+8)}, {v(Z,4)}')
        self.exec(0xff); a(f'ds_write_b128 {v(Z+8)}, {v(Z+4,4)} offset:1024'); self.exec(-1)
    def winread(self):
        a = self.a; C = self.C
        a(f'v_mov_b32 {v(C+4)}, {WIN}'); a(f'ds_read_b128 {v(C,4)}, {v(C+4)}')
        for k, r in enumerate((sKEY, sM, sSTD, sCID)): a(f'v_readfirstlane_b32 {r}, {v(C+k)}')
        a(f'''s_sub_u32 {t0}, {sCID}, {sT}
        s_lshl_b32 {t0}, {t0}, 6
        s_and_b32 {t2}, {sKEY}, 63
        s_add_u32 {t0}, {t0}, 16
        s_add_u32 {sSLOT}, {t0}, {t2}''')
    def ffn_addr(self):
        return [l.strip() for l in f'''v_bfe_u32 {v(vC)}, v0, 1, 1
        v_lshlrev_b32 {v(vD)}, 1, {v(vC)}
        v_and_or_b32 {v(vD)}, {v(vG)}, 1, {v(vD)}
        v_xor_b32 {v(vD)}, {sW}, {v(vD)}
        v_mul_u32_u24 {v(vC)}, 36864, {v(vC)}
        v_lshl_add_u32 {v(vC)}, {v(vD)}, 4, {v(vC)}
        v_lshrrev_b32 {v(vD)}, 2, v0
        v_lshl_add_u32 {v(vC)}, {v(vD)}, 6, {v(vC)}
        v_and_b32 {v(vD)}, 1, v0
        v_lshl_add_u32 {v(vC)}, {v(vD)}, 3, {v(vC)}
        v_add_u32 {v(vC)}, {GATE}, {v(vC)}
        v_lshlrev_b32 {v(vD)}, 4, {v(vG)}
        v_add_u32 {v(vD)}, {ZR}, {v(vD)}'''.split('\n')]
    def ffn(self, lay):
        a = self.a
        if lay == 0:
            D = 28; B0 = 36; NB = 4
            def rd(ks):
                b = B0 + 8 * (ks % NB)
                return [f'ds_read_b128 {v(b+4,4)}, {v(vD)} offset:{64*ks}'] + [f'ds_read_b64_tr_b16 {v(b+2*jh,2)}, {v(vC)} offset:{1024*(2*ks+jh)}' for jh in range(2)]
            ab = lambda ks: (B0 + 8 * (ks % NB), B0 + 8 * (ks % NB) + 4)
        else:
            D = 28; B0 = XFB; NB = 10
            rd = lambda ks: [f'ds_read_b128 {v(B0+4*(ks%NB),4)}, {v(vD)} offset:{64*ks}']
            ab = lambda ks: (256 + 4 * ks, B0 + 4 * (ks % NB))
        for ks in range(NB - 1):
            for x in rd(ks): a(x)
        a(f'''s_lshl_b32 {t0}, {sW}, 9
        s_add_u32 {t0}, {t0}, {HW + 144}
        v_lshl_add_u32 {v(vA)}, {v(vG)}, 3, {t0}
        v_lshlrev_b32 {v(vB)}, 9, {v(vG)}
        v_lshl_add_u32 {v(vB)}, {v(vI)}, 4, {v(vB)}
        v_add_u32 {v(vB)}, {HW}, {v(vB)}
        v_lshlrev_b32 {v(vE)}, 6, {v(vI)}
        v_lshl_add_u32 {v(vE)}, {v(vG)}, 4, {v(vE)}''')
        for ks in range(18):
            if ks + NB - 1 < 18:
                for x in rd(ks + NB - 1): a(x)
            A, B = ab(ks)
            a(f'v_mfma_f32_16x16x32_bf16 {v(D,4)}, {v(A,4)}, {v(B,4)}, {v(D,4) if ks else 0}')
            if lay == 0 and ks % 2 == 0 and ks // 2 < len(self.xlate): self.xlate[ks // 2]()
        for r in range(4): a(f'v_mul_f32 {v(D+8+r)}, {f32(-LOG2E)}, {v(D+r)}')
        for r in range(4): a(f'v_exp_f32 {v(D+8+r)}, {v(D+8+r)}')
        for r in range(4): a(f'v_permlane32_swap_b32 {v(D+r)}, {v(D+4+r)}')
        for r in range(4): a(f'v_add_f32 {v(D+8+r)}, 1.0, {v(D+8+r)}')
        for r in range(4): a(f'v_rcp_f32 {v(D+8+r)}, {v(D+8+r)}')
        for h in (0, 2): a(f'v_pk_mul_f32 {v(D+h,2)}, {v(D+h,2)}, {v(D+4+h,2)}')
        for h in (0, 2): a(f'v_pk_mul_f32 {v(D+h,2)}, {v(D+h,2)}, {v(D+8+h,2)}')
        a(f'v_cvt_pk_bf16_f32 {v(D)}, {v(D)}, {v(D+1)}\nv_cvt_pk_bf16_f32 {v(D+1)}, {v(D+2)}, {v(D+3)}')
        self.exec(0x10001); a(f'ds_write_b64 {v(vA)}, {v(D,2)}'); self.exec(-1)
        if lay == 0: a.wait(self.tk_gu)
        a.barrier()
        for n in range(9): a(f'ds_read_b128 {v(32+4*n,4)}, {v(vB)} offset:{16*(9-n)}')
        for n in range(9): a(f'v_mfma_f32_16x16x32_bf16 {v(D,4)}, {v(WDF+4*n,4)}, {v(32+4*n,4)}, {v(D,4) if n else 0}')
        self.exec(0x03ff03ff03ff03ff)
        a(f'buffer_store_dwordx4 {v(D,4)}, {v(vE)}, {sWL[lay]}, {sGB} offen sc1'); self.exec(-1)

    Y = 28
    def red_addr(self):
        a = self.a
        a(f'''s_mul_i32 {t2}, {sRED}, 7282
        s_lshr_b32 {t2}, {t2}, 16
        s_mul_i32 {t2}, {t2}, 7
        s_add_u32 {t2}, {t2}, {sRED}
        s_lshl_b32 {t2}, {t2}, 6
        s_add_u32 {t2}, {t2}, {TB + oGB + gPY}
        v_lshrrev_b32 {v(vA)}, 3, v0
        v_mul_u32_u24 {v(vA)}, {4*BLK}, {v(vA)}
        v_bfe_u32 {v(vB)}, v0, 2, 1
        v_lshl_add_u32 {v(vA)}, {v(vB)}, 12, {v(vA)}
        v_and_b32 {v(vB)}, 3, v0
        v_lshl_add_u32 {v(vA)}, {v(vB)}, 4, {v(vA)}
        v_lshlrev_b32 {v(vB)}, 3, {v(vB)}
        s_lshl_b32 {t3}, {sRED}, 5
        v_add_u32 {v(vE)}, {t3}, {v(vB)}
        v_lshrrev_b32 {v(vF)}, 4, {v(vE)}''')
        for x in self.div9(vF, vF): a(x)
        a(f'''v_mul_u32_u24 {v(vF)}, {4096-144}, {v(vF)}
        v_add_u32 {v(vF)}, {v(vF)}, {v(vE)}
        s_ashr_i32 {t0}, {sKEY}, 31
        s_lshr_b32 {t0}, {t0}, 1
        s_xor_b32 {t0}, {t0}, {sKEY}
        v_mov_b32 {v(vE)}, {f32(-LOG2E)}
        v_mul_f32 {v(vE)}, {t0}, {v(vE)}
        v_exp_f32 {v(vE)}, {v(vE)}
        v_add_f32 {v(vE)}, 1.0, {v(vE)}
        v_rcp_f32 {v(vE)}, {v(vE)}''')
    def red_load(self, lay):
        a = self.a; Y = self.Y; W = sWL[lay]
        a(f'buffer_load_dwordx2 {v(Y+36,2)}, {v(vF)}, {W}, {t1} offen sc1')
        for q in range(9):
            a(f's_add_u32 s1, {t2}, {(q >> 2)*BLK + (q & 3)*8192}'); a(f'buffer_load_dwordx4 {v(Y+4*q,4)}, {v(vA)}, {W}, s1 offen sc1')
    def red_check(self):
        Y = self.Y
        for x in self.maxu(Y + 38, [Y + 36, Y + 37] + list(range(Y, Y + 36))): self.a(x)
        self.a(f'v_cmp_eq_u32 vcc, -1, {v(Y+38)}')
    def red_sum(self, lay):
        a = self.a; Y = self.Y; Z = Y + 36
        for q in range(1, 9):
            for h in (0, 2): a(f'v_pk_add_f32 {v(Y+h,2)}, {v(Y+h,2)}, {v(Y+4*q+h,2)}')
        a(f'v_lshlrev_b32 {v(Y+8)}, 16, {v(Z)}\nv_and_b32 {v(Y+9)}, 0xffff0000, {v(Z)}\nv_lshlrev_b32 {v(Y+10)}, 16, {v(Z+1)}\nv_and_b32 {v(Y+11)}, 0xffff0000, {v(Z+1)}')
        self.dpp('v_add_f32', range(Y, Y + 4), ['row_ror:8', 'row_ror:4'])
        a(f'v_mov_b32 {v(Z)}, {sSTD}'); a(f'v_add_f32 {v(Z)}, 1.0, {v(Z)}')
        for r in range(4): a(f'v_fma_f32 {v(Y+8+r)}, {v(Y+8+r)}, {v(Z)}, {sM}')
        self.xsum(list(range(Y, Y + 4)), Y + 4, full=False)
        for r in range(4): a(f'v_fma_f32 {v(Y+r)}, {v(Y+r)}, {v(vE)}, {v(Y+8+r)}')
        a(f'v_cvt_pk_bf16_f32 {v(Y)}, {v(Y)}, {v(Y+1)}\nv_cvt_pk_bf16_f32 {v(Y+1)}, {v(Y+2)}, {v(Y+3)}')
        self.exec(0xf)
        if lay == 0: a(f'buffer_store_dwordx2 {v(Y,2)}, {v(vB)}, {sWS}, {sGB} offen offset:{gNR} sc1')
        else:
            a(f'buffer_store_dwordx2 {v(Y,2)}, {v(vB)}, {sOUT}, {t4} offen{self.o["osc"]}')
            def nn():
                self.exec(1); a(f'v_mov_b32 {v(vC)}, {sNON}'); a(f'buffer_store_dword {v(vC)}, {v(vB)}, {sWS}, 0 offen sc1')
            self.only(f's_cmp_eq_u32 {sRED}, 0', nn)
        self.exec(-1)

    def hooks(self):
        a = self.a; o = self.o; Z = self.Z; h = {}
        def add(ks, f):
            g = h.get(ks)
            h[ks] = (lambda: (g(), f())) if g else f
        red = lambda f: self.only(f's_cmp_lt_u32 {sRED}, 36', f)
        add(o['h1'], lambda: self.w(0, lambda: (self.cand_addr(), self.cand_load(0))))
        def xb():
            a.wait(self.tk_x)
            def hs():
                a(f's_lshl_b32 {t0}, {sCG}, 7'); a(f's_add_u32 {t0}, {t0}, {sTB}'); a(f's_add_u32 {t0}, {t0}, {oHS - 128}')
                self.exec(0xff00); a(f'buffer_store_dwordx4 v[60:63], {v(vL16)}, {sWS}, {t0} offen sc1'); self.exec(-1)
            self.w(3, hs)
            a('s_barrier'); self.stamp('xb')
        add(3, xb)
        def h2():
            self.verify(lambda: self.cand_load(0), self.cand_check); self.argmax(0)
            self.only(f's_cmp_lt_u32 {sLI}, 18', lambda: self.z_load(0)); self.winput()
        add(o['h2'], lambda: (self.w(0, h2), self.stamp('h2')))
        def h3():
            Lf, Lj = self.L(), self.L()
            a(f's_cmp_lt_u32 {sLI}, 18'); a(f's_cbranch_scc0 {Lf}')
            self.w(0, lambda: (self.verify(lambda: self.z_load(0), lambda: self.row_check(Z)), self.zput()))
            a.wait(self.tk_gu)
            a.barrier(); self.stamp('h3'); tk = self.tk_gu; self.ffn(0); a(f's_branch {Lj}')
            a.label(Lf); self.tk_gu = tk
            for u in self.xlate: u()
            a.wait(self.tk_gu); a.barrier(); a.label(Lj)
            self.winread()
            a(f'''s_cmp_eq_u32 {sJ}, 0
            s_cselect_b32 {t0}, 16, 8
            s_sub_u32 {t2}, {sSLOT}, {t0}
            s_sub_u32 {t0}, 80, {t0}
            s_cmp_lt_u32 {t2}, {t0}
            s_cselect_b32 {sOWN}, 1, 0''')
            self.stamp('ffn0')
        add(o['h3'], h3)
        assert o['hA'] >= o['h3']
        def hl(): a(f's_add_u32 s1, {sTP}, {oHS}'); a(f'buffer_load_dwordx4 v[60:63], {v(vL16)}, {sWS}, s1 offen sc1')
        add(o['hA'], lambda: self.w(2, hl))
        def hB():
            self.verify(hl, lambda: a(f'v_cmp_ne_u32 vcc, {sNON}, v63'))
            for q in range(9):
                a(f's_mov_b32 m0, {LH + HP*q}'); a(f's_add_u32 s1, {sTP}, {(oX1 + 7*9216 if o["xsc"] else oHX) + 1024*q}')
                self.tk_h = a(f'buffer_load_dwordx4 {v(vL16)}, {sWS}, s1 offen sc1 lds')
            a(f'v_lshlrev_b32 v64, 2, v0'); a(f'v_add_u32 v64, {NM}, v64')
            self.exec(0xffff); a(f'ds_write2_b32 v64, v60, v61 offset0:0 offset1:80'); self.exec(-1)
        add(o['hB'], lambda: (self.w(2, hB), self.stamp('hB')))
        add(o['hC'], lambda: (self.w(2, lambda: (a.wait(self.tk_h), a.wlg(0))), a('s_barrier'), self.stamp('hC')))
        add(o['rp'][3], lambda: (self.rchk(), self.stamp('rchk')))
        add(o['h4'], lambda: red(lambda: (self.red_addr(), self.red_load(0))))
        add(o['h5'], lambda: (red(lambda: (self.verify(lambda: self.red_load(0), self.red_check), self.red_sum(0))), self.stamp('red0')))
        return h

    def patch(self):
        a = self.a; Rr = self.Z; sx = self.sx
        a.label(f'L_patch{sx}')
        a.raw('@PAD')
        a.wlg(0)
        for k in range(4): a(f'v_mov_b32 {v(Rr+4+k)}, 0')
        a(f'''v_lshrrev_b32 {v(vA)}, 3, v0
        v_mul_u32_u24 v51, {HP - 128}, {v(vA)}
        s_mov_b32 {t0}, {LH + 1040}
        v_add3_u32 v51, v51, {v(vL16)}, {t0}
        v_and_b32 v52, 11, v0
        v_cmp_eq_u32 vcc, 1, v52
        v_lshl_add_u32 v52, {v(vG)}, 4, {t0}
        v_add_u32 v53, 64, v52
        v_cndmask_b32 {v(vHe)}, {v(vHe)}, v52, vcc
        v_cndmask_b32 {v(vHo)}, {v(vHo)}, v53, vcc''')
        def f():
            a(f'''s_mov_b32 {t3}, {TB + 3*BLK + oGB + gNR}
            v_bfe_u32 v50, v0, 1, 3
            v_mul_u32_u24 v50, {4*BLK}, v50
            v_lshl_add_u32 v50, {v(vG)}, 12, v50
            v_and_b32 v52, 1, v0
            v_lshl_add_u32 v50, v52, 4, v50
            s_lshr_b32 {t1}, {sSLOT}, 3
            s_sub_u32 {t1}, {t1}, 2
            s_mul_i32 {t1}, {t1}, 9216
            s_cmp_lt_u32 {sSLOT}, 16
            s_cselect_b32 {t1}, {LH}, {t1}
            s_cselect_b32 {t2}, {HP - 1024}, 0
            s_and_b32 {t0}, {sSLOT}, 7
            s_lshl_b32 {t0}, {t0}, 4
            s_add_u32 {t1}, {t1}, {t0}
            v_mul_u32_u24 {v(vA)}, {t2}, {v(vA)}
            v_lshl_add_u32 {v(vA)}, v0, 7, {v(vA)}
            v_add_u32 {v(vA)}, {t1}, {v(vA)}
            s_lshl_b32 {t2}, {t2}, 3
            v_add_u32 {v(vB)}, {t2}, {v(vA)}''')
            self.poll(lambda: self.row_load(sWS, Rr, 50, t3, 50, 16384), lambda: self.row_check(Rr))
            a(f'ds_write_b128 v51, {v(Rr,4)}'); a(f'ds_write_b128 {v(vA)}, {v(Rr,4)}')
            self.exec(0xff); a(f'ds_write_b128 v51, {v(Rr+4,4)} offset:{8*HP}'); a(f'ds_write_b128 {v(vB)}, {v(Rr+4,4)} offset:8192'); self.exec(-1)
        self.w(1, f)
        a.barrier()
        self.stamp('nr')
        for k in range(5): a(self.xread(k, 0, self.HB(k)))
        a(f'ds_read_b128 {v(Rr,4)}, v51'); self.exec(0xff); a(f'ds_read_b128 {v(Rr+4,4)}, v51 offset:{8*HP}'); self.exec(-1)
        S = Rr + 8; a(f's_mov_b32 {t3}, {ONES}')
        U = [[f'v_dot2_f32_bf16 {v(S)}, {v(Rr+k)}, {t3}, {v(S) if k else 0}', f'v_dot2_f32_bf16 {v(S+1)}, {v(Rr+k)}, {v(Rr+k)}, {v(S+1) if k else 0}'] for k in range(8)]
        U += [lambda m=m: self.dpp('v_add_f32', [S, S+1], [m]) for m in ('row_ror:8', 'row_ror:4', 'row_ror:2', 'row_ror:1')]
        U += [lambda w=w: self.xsum([S, S+1], S + 4, full=False, sws=(w,)) for w in ('v_permlane32_swap_b32', 'v_permlane16_swap_b32')]
        U += [[f'v_mul_f32 {v(S)}, {f32(-1/576)}, {v(S)}', f'v_mul_f32 {v(S+1)}, {f32(1/576)}, {v(S+1)}'],
              [f'v_fma_f32 {v(S+1)}, -{v(S)}, {v(S)}, {v(S+1)}', f'v_max_f32 {v(S+1)}, 0, {v(S+1)}'],
              [f'v_add_f32 {v(S+1)}, {f32(1e-5)}, {v(S+1)}', f'v_rsq_f32 {v(S+1)}, {v(S+1)}'],
              [f's_lshl_b32 {t0}, {sSLOT}, 2', f's_add_u32 {t0}, {t0}, {NM}', f'v_mov_b32 {v(vA)}, {t0}'], [f'v_mov_b32 {v(S+4)}, 1.0', f'v_mov_b32 {v(S+5)}, 0'],
              ['s_mov_b64 exec, 1', f'ds_write2_b32 {v(vA)}, {v(S)}, {v(S+1)} offset0:0 offset1:80', f'ds_write2_b32 {v(vA)}, {v(S+4)}, {v(S+5)} offset0:160 offset1:240', 's_mov_b64 exec, -1'],
              [f's_and_b32 {t1}, {sSLOT}, 15', f's_mov_b32 s{sb(sSV)}, 0x10001', f's_mov_b32 s{sb(sSV)+1}, 0x10001', f's_lshl_b64 {sSV}, {sSV}, {t1}', f's_not_b64 vcc, {sSV}'],
              [f's_lshr_b32 {t2}, {t1}, 2', f's_lshl_b32 {t2}, {t2}, 4', f's_mov_b64 {sSV}, 0xffff', f's_lshl_b64 {sSV}, {sSV}, {t2}', f's_and_b32 {t1}, {t1}, 3', f's_lshr_b32 {t0}, {sSLOT}, 4']]
        self.phase2(U)
        a(f'v_mov_b32 v40, {v(Vb+1)}'); a(f'v_mov_b32 v41, {v(Vb+1)}'); a('v_permlane32_swap_b32 v40, v41')
        Lt = [self.L() for _ in range(5)]
        for t in (0, 2, 3, 4): a(f's_cmp_eq_u32 {t0}, {t}'); a(f's_cbranch_scc1 {Lt[t]}')
        for t in range(1, 5):
            if t > 1: a.label(Lt[t])
            for b in (Qb, Kb, Rb):
                for r in range(4): a(f'v_cndmask_b32_dpp {v(b+4*t+r)}, {v(b+r)}, {v(b+4*t+r)}, vcc row_newbcast:1 row_mask:0xf bank_mask:0xf')
            for r in range(4):
                a(f's_cmp_eq_u32 {t1}, {r}'); a(f's_cselect_b64 vcc, {sSV}, 0'); a(f'v_cndmask_b32 {v(Vb+4*t+r)}, {v(Vb+4*t+r)}, v40, vcc')
            if t < 4: a(f's_branch {Lt[0]}')
        a.label(Lt[0])
        a.wall(); a('s_nop 3'); a(f's_branch L_patched{sx}')

    def tail(self):
        a = self.a; Z = self.Z
        def w0():
            self.cand_addr()
            self.poll(lambda: self.cand_load(1), self.cand_check); self.argmax(1)
            self.only(f's_cmp_lt_u32 {sLI}, 18', lambda: self.z_load(1)); self.winput()
            self.only(f's_cmp_lt_u32 {sLI}, 18', lambda: (self.verify(lambda: self.z_load(1), lambda: self.row_check(Z)), self.zput()))
        self.w(0, w0)
        a.barrier()
        self.stamp('win1')
        self.only(f's_cmp_lt_u32 {sLI}, 18', lambda: self.ffn(1))
        self.stamp('ffn1')
        if self.o['tred']:
            a(f's_lshl_b32 {sRED}, {sLI}, 3'); a(f's_add_u32 {sRED}, {sRED}, {sXCD}'); a(f's_cmp_eq_u32 {sW}, 0'); a(f's_cselect_b32 {sRED}, {sRED}, 99')
        self.winread()
        a(f'''s_cmp_lt_u32 {sW}, {self.o["odef"]}
        s_cselect_b64 {sSV}, -1, {sCM}
        s_lshr_b32 {t0}, {sSLOT}, 4
        s_sub_u32 {t0}, {t0}, 1
        s_cmp_eq_u32 {t0}, {sW}
        s_cselect_b64 {sCM}, {sCM}, 0''')
        def red():
            self.red_addr()
            a(f'''s_and_b32 {t0}, {sCID}, 15
            s_lshl_b32 {t0}, {t0}, 6
            s_and_b32 {t4}, {sKEY}, 63
            s_add_u32 {t0}, {t0}, {t4}
            s_lshl_b32 {t0}, {t0}, 1
            s_lshr_b32 {t4}, {sCID}, 4
            s_add_u32 {t0}, {t0}, {t4}
            s_mul_i32 {t0}, {t0}, 36
            s_add_u32 {t0}, {t0}, {sRED}
            s_lshl_b32 {t4}, {t0}, 5''')
            if self.o['tred'] == 1: a.wvm(0)
            self.poll(lambda: self.red_load(1), self.red_check); self.stamp('rpoll'); self.red_sum(1)
        self.only(f's_cmp_lt_u32 {sRED}, 36', red)
        self.only(f's_andn2_b64 {sSV}, {sSV}, {sCM}', lambda: self.outst(sSV))

    def body(self):
        a = self.a; o = self.o
        self.tk_gu = None
        self.attn(0); self.p2(0); self.router(0); self.gemm1(); self.attn(1); self.p2(1); self.router(1); self.tail()
        if o['stamps']:
            self.stamp('red1'); a.wall(); self.stamp('end')
            a('s_memrealtime s[4:5]'); a.wlg(0)
            for k, r in ((62, 's100'), (63, 's4'), (61, sCNT), (60, 's96'), (59, sSLOW)): a(f'v_writelane_b32 {v(vSTAMP)}, {r}, {k}')
            a(f's_lshl_b32 {t0}, s2, 2'); a(f's_add_u32 {t0}, {t0}, {sW}'); a(f's_lshl_b32 {t0}, {t0}, 8'); a(f's_add_u32 {t0}, {t0}, {STAMP}')
            a(f'v_lshlrev_b32 {v(vB)}, 2, v0'); a(f'buffer_store_dword {v(vSTAMP)}, {v(vB)}, {sWS}, {t0} offen')
        if o['padto']:
            if o['probe']: a(f's_cmp_eq_u32 {sW}, 0'); a('s_cselect_b32 s100, s98, s100')
            L = self.L(); a.wall(); a.label(L); a('s_memrealtime s[4:5]'); a.wlg(0); a('s_sub_u32 s4, s4, s100'); a(f's_cmp_lt_u32 s4, {o["padto"]}'); a(f's_cbranch_scc1 {L}')
        a('s_endpgm')
        while self.colds: self.colds.pop(0)()
    def slow(self):
        a = self.a
        a.label('L_slow'); a.wall()
        self.sp = ' sc1'; self.sx = '_s'
        for u in self.poisonL(0, 44, ' sc1'): self.run(u)
        a.wall(); a('s_barrier')
        def f():
            a(f'''s_lshl_b32 {t1}, {sT}, 10
            s_add_u32 {t1}, {t1}, {XF2}
            s_lshl_b32 {t2}, {sCG}, 7
            s_add_u32 {t2}, {t2}, {t1}
            v_mov_b32 v44, {sNON}
            v_lshlrev_b32 v45, 7, v0''')
            self.exec(1); a(f'buffer_store_dword v44, v45, {sWS}, {t2} offen sc1'); self.exec(0xff)
            self.poll(lambda: a(f'buffer_load_dword v46, v45, {sWS}, {t1} offen sc1'), lambda: a(f'v_cmp_ne_u32 vcc, {sNON}, v46'))
            self.exec(-1)
        self.w(0, f)
        self.body()

    def wrap(self, lines):
        K = NAME + '_kernel'
        head = open('header.txt').read()
        return (f'; @launch grid=(256,1,1) block=(256,1,1) lds=163840\n' + head +
                f'.amdgcn_target "amdgcn-amd-amdhsa--gfx950"\n.text\n.globl {K}\n.p2align 8\n.type {K},@function\n{K}:\n' + '\n'.join(lines) + '\ns_endpgm\n' +
                f'''
.section .rodata,"a"
.p2align 6
.amdhsa_kernel {K}
  .amdhsa_next_free_vgpr 512
  .amdhsa_next_free_sgpr 102
  .amdhsa_accum_offset 256
  .amdhsa_group_segment_fixed_size 0
  .amdhsa_kernarg_size 88
  .amdhsa_user_sgpr_count 2
  .amdhsa_user_sgpr_kernarg_segment_ptr 1
  .amdhsa_system_sgpr_workgroup_id_x 1
.end_amdhsa_kernel
''')
    def pads(self, lines):
        i0, i1 = lines.index('L_main:'), lines.index('L_hotend:')
        if not self.o['pads']: return [l for l in lines if l != '@PAD']
        ins = [l for l in lines[i0:i1] if not l.endswith(':') and l[0] not in ';@']
        src = '\n'.join(re.sub(r'^(s_c?branch\w*) .*', r'\1 0', l) for l in ins) + '\n'
        r = subprocess.run(['llvm-mc', '-triple=amdgcn-amd-amdhsa', '-mcpu=gfx950', '-show-encoding'], input=src, capture_output=True, text=True)
        size = [l.count('0x', l.index('encoding:')) for l in r.stdout.split('\n') if 'encoding:' in l]
        assert len(size) == len(ins), (len(size), len(ins), r.stderr[:400])
        out = []; addr = 0; nxt = 0; k = 0; n = 0
        for l in lines[i0:i1]:
            real = not l.endswith(':') and l[0] not in ';@'
            if l == '@PAD' or (real and addr >= nxt):
                out.append(('P', n)); n += 1; addr += 4
                if l != '@PAD': nxt += 4096
            if l == '@PAD': continue
            out.append(l)
            if real: addr += size[k]; k += 1
        res = []
        for l in out:
            if isinstance(l, tuple): res += [f'L_pad{l[1]}:', f's_cbranch_execz ' + (f'L_pad{l[1]+3}' if l[1] + 3 < n else 'L_padret')]
            else: res.append(l)
        self.hot = addr
        return lines[:i0] + res + [l for l in lines[i1:] if l != '@PAD']
    def build(self):
        a = self.a; o = self.o
        self.start(); self.gemm0()
        a(f's_cmp_lg_u32 {sSLOW}, 0'); a('s_cbranch_scc1 ' + ('L_slow' if o['slowcopy'] else 'L_exit'))
        self.body()
        a.raw('L_hotend:')
        if o['slowcopy']: self.slow()
        a.label('L_exit')
        return self.wrap(self.pads(a.text().rstrip('\n').split('\n')))

if __name__ == '__main__':
    o = eval('dict(' + (sys.argv[2] if len(sys.argv) > 2 else '') + ')')
    g = G(**o); t = g.build(); open(sys.argv[1], 'w').write(t)
    print('lines', t.count('\n'), 'bytes', len(t), 'nops', g.a.nops, g.names)
```

```python
import re
RX = re.compile(r'\b([vas])(\d+)\b|\b([vas])\[(\d+):(\d+)\]|\b(vcc|exec|m0|vcc_lo|vcc_hi|exec_lo|exec_hi)\b')
TRANS = ('v_exp_', 'v_log_', 'v_rcp_', 'v_rsq_', 'v_sqrt_', 'v_sin_', 'v_cos_')

def regs(tok):
    out = set()
    for m in RX.finditer(tok):
        if m.group(1): out.add((m.group(1), int(m.group(2))))
        elif m.group(3): out |= {(m.group(3), i) for i in range(int(m.group(4)), int(m.group(5)) + 1)}
        else: out.add(('s', m.group(6).split('_')[0]))
    return out

def split_ops(s):
    ops, cur, d = [], '', 0
    for ch in s:
        if ch == '[': d += 1
        if ch == ']': d -= 1
        if ch == ',' and d == 0: ops.append(cur.strip()); cur = ''
        else: cur += ch
    if cur.strip(): ops.append(cur.strip())
    return ops

def R(kind, n, k=1):
    return f"{kind}{n}" if k == 1 else f"{kind}[{n}:{n+k-1}]"
def v(n, k=1):
    if n >= 256: return R('a', n - 256, k)
    assert n + k <= 256, (n, k)
    return R('v', n, k)
def s(n, k=1): return R('s', n, k)

class I:
    def __init__(self, text):
        self.text = text
        p = text.split(None, 1)
        op = self.op = p[0]
        rest = p[1] if len(p) > 1 else ''
        ops = split_ops(rest)
        mods = ''
        if ops:
            q = ops[-1].split(None, 1); ops[-1] = q[0]; mods = q[1] if len(q) > 1 else ''
        self.mods = mods
        rs = [regs(o) for o in ops]
        U = lambda l: set().union(*l) if l else set()
        self.cls = 'other'; self.w = set(); self.r = set(); self.A = self.C = set(); self.data = set()
        self.dpp = bool(re.search(r'quad_perm|row_|wave_', mods)); self.trans = op.startswith(TRANS)
        self.states = 1; self.lds_dma = False
        if op.startswith('v_mfma'):
            self.cls = 'mfma'; self.w = rs[0]; self.A = rs[1] | rs[2]; self.C = rs[3]; self.r = self.A | self.C
        elif op.startswith('v_'):
            self.cls = 'valu'
            if op == 'v_nop': pass
            elif 'swap' in op: self.w = U(rs); self.r = U(rs)
            elif re.match(r'v_(add|sub|subrev)_co_|v_addc|v_subb|v_mad_u64|v_div_scale', op): self.w = rs[0] | rs[1]; self.r = U(rs[2:])
            else:
                self.w = rs[0]; self.r = U(rs[1:])
                if re.match(r'v_fmac|v_dot2c|v_pk_fmac|v_writelane', op) or self.dpp or 'sdwa' in op: self.r = self.r | rs[0]
        elif op.startswith('buffer_') or op.startswith('global_'):
            self.cls = 'vm'
            cnt = 4 if 'x4' in op else 3 if 'x3' in op else 2 if 'x2' in op else 1
            if re.search(r'\blds\b', mods): self.lds_dma = True; self.r = U(rs) | {('s', 'm0')}
            elif 'load' in op: self.w = rs[0]; self.r = U(rs[1:])
            else:
                self.r = U(rs)
                if cnt >= 3: self.data = rs[0]
                if 'atomic' in op and 'sc0' in mods: self.w = rs[0]
        elif op.startswith('ds_'):
            self.cls = 'ds'
            if 'write' in op: self.r = U(rs)
            else: self.w = rs[0]; self.r = U(rs[1:])
        elif op.startswith('s_load') or op.startswith('s_buffer_load') or op.startswith('s_memtime') or op.startswith('s_memrealtime'):
            self.cls = 'smem'; self.w = rs[0]; self.r = U(rs[1:])
        elif op.startswith('s_atomic'):
            self.cls = 'smem'; self.r = U(rs)
        elif op == 's_nop': self.states = int(ops[0], 0) + 1
        elif re.match(r's_(cmp|bitcmp|cbranch|branch|waitcnt|barrier|endpgm|sleep|setprio|setpc)', op):
            self.cls = 'salu'; self.r = U(rs)
            if 'vcc' in op: self.r = self.r | {('s', 'vcc')}
        elif op.startswith('s_'):
            self.cls = 'salu'; self.w = rs[0]; self.r = U(rs[1:])
            if 'saveexec' in op: self.w = self.w | {('s', 'exec')}
            if re.match(r's_(addk|mulk|bitset)', op): self.r = self.r | rs[0]
        else: raise ValueError(text)

def need(p, c):
    n = 0
    isv = lambda x: {r for r in x if r[0] in 'va'}
    iss = lambda x: {r for r in x if r[0] == 's'}
    if p.cls == 'mfma':
        if c.cls == 'mfma':
            if p.w & c.A: n = 8
            if p.w & c.C and p.w != c.C: n = max(n, 6)
            if p.w & c.w and not (p.w & c.C): n = max(n, 2)
        elif c.cls in ('valu', 'vm', 'ds'):
            if p.w & (c.r | c.w): n = 8
            if c.cls == 'valu' and p.C & c.w: n = max(n, 3)
    elif p.cls == 'valu':
        wv, ws = isv(p.w), iss(p.w)
        dot = p.op.startswith('v_dot')
        if c.cls == 'mfma' and wv & c.r: n = 3 if dot else 2
        if dot and wv & (c.r | c.w) and c.cls in ('valu', 'vm', 'ds'):
            if c.op == p.op:
                srcs = split_ops(c.text.split(None, 1)[1])
                ab = regs(srcs[1]) | regs(srcs[2])
                if wv & ab: n = max(n, 3)
            else: n = max(n, 3)
        if c.cls == 'valu':
            if wv & c.r:
                if c.dpp or c.op.startswith('v_permlane'): n = max(n, 2)
                if c.op.startswith('v_readlane') or c.op.startswith('v_readfirstlane'): n = max(n, 1)
                if p.trans or 'sdwa' in p.op: n = max(n, 1)
            if ws & c.r: n = max(n, 4 if 'lane' in c.op else 2)
        elif p.trans and wv & c.r: n = max(n, 1)
        if c.cls == 'vm' and ws & c.r: n = max(n, 5)
    elif p.cls == 'salu':
        if ('s', 'm0') in p.w and c.lds_dma: n = 1
    elif p.cls == 'vm' and p.data & c.w:
        n = 2 if c.cls in ('valu', 'mfma') else 1
    return n

class Asm:
    def __init__(self):
        self.out = []; self.hist = []
        self.vm = {}; self.lg = {}
        self.nid = 0; self.snap = {}; self.dead = False; self.seen = {}; self.nops = 0; self.last = None
    def raw(self, t): self.out.append(t)
    def c(self, t): self.out.append('; ' + t)
    def _age(self, k):
        for h in self.hist: h[1] += k
        self.hist = [h for h in self.hist if h[1] < 10]
    def _wait(self, vm=None, lg=None):
        t = []
        if vm is not None:
            vm = min(vm, 63); t.append(f'vmcnt({vm})'); self.vm = {k: e for k, e in self.vm.items() if e[0] < vm}
        if lg is not None:
            if any(e[2] for e in self.lg.values()): lg = 0
            lg = min(lg, 15); t.append(f'lgkmcnt({lg})'); self.lg = {k: e for k, e in self.lg.items() if e[0] < lg}
        if t: self.out.append('s_waitcnt ' + ' '.join(t)); self._age(1)
    def wait(self, *toks):
        vm = [self.vm[t][0] for t in toks if t in self.vm]; lg = [self.lg[t][0] for t in toks if t in self.lg]
        self._wait(min(vm) if vm else None, min(lg) if lg else None)
    def wvm(self, n=0): self._wait(vm=n)
    def wlg(self, n=0): self._wait(lg=n)
    def wall(self): self._wait(0, 0)
    def barrier(self, lg=True):
        if lg and self.lg: self.wlg(0)
        self('s_barrier')
    def __call__(self, text):
        if '\n' in text:
            for l in text.strip().split('\n'):
                if l.strip(): self(l.strip())
            return self.last
        i = I(text)
        touch = i.r | i.w
        vm = [e[0] for e in self.vm.values() if e[1] & touch]; lg = [e[0] for e in self.lg.values() if e[1] & touch]
        if vm or lg: self._wait(min(vm) if vm else None, min(lg) if lg else None)
        n = max([need(p, i) - age for p, age in self.hist] + [0])
        if n > 0: self.out.append(f's_nop {n-1}'); self._age(n); self.nops += n
        self.out.append(text); self._age(i.states); self.hist.append([i, 0])
        tok = None
        if i.cls == 'vm' or i.cls in ('ds', 'smem'):
            q = self.vm if i.cls == 'vm' else self.lg
            for e in q.values(): e[0] += 1
            self.nid += 1; tok = self.nid; q[tok] = [0, i.w, i.cls == 'smem']
        if i.op.startswith('s_cbranch') or i.op == 's_branch':
            L = text.split()[1]
            if L in self.seen:
                vm0, lg0 = self.seen[L]
                assert all(k in vm0 or not e[1] for k, e in self.vm.items()), ('loop vm', L)
                assert all(k in lg0 or not e[1] for k, e in self.lg.items()), ('loop lg', L)
            else:
                self.snap.setdefault(L, []).append(([[p, a] for p, a in self.hist], {k: list(e) for k, e in self.vm.items()}, {k: list(e) for k, e in self.lg.items()}))
        if i.op in ('s_branch', 's_endpgm'): self.dead = True
        self.last = tok
        return tok
    def untracked(self, text):
        t = self(text); (self.vm if t in self.vm else self.lg)[t][1] = set(); return t
    def label(self, L, loop=False):
        st = self.snap.pop(L, [])
        if not self.dead: st.append((self.hist, self.vm, self.lg))
        hist, vm, lg = [], {}, {}
        for h, a, b in st:
            hist += [[p, x] for p, x in h]
            for dst, src in ((vm, a), (lg, b)):
                for k, e in src.items():
                    if k in dst: dst[k][0] = min(dst[k][0], e[0])
                    else: dst[k] = list(e)
        self.hist, self.vm, self.lg, self.dead = hist, vm, lg, False
        self.seen[L] = (set(vm), set(lg))
        self.out.append(L + ':')
    def text(self):
        assert not self.snap, self.snap.keys()
        return '\n'.join(self.out) + '\n'
```

```python
import sys, math, struct, subprocess, re
from asmlib import *
NAME = 'interleave_layers__sliding_local_dilated__moe_arch_mod__prompt'
FS = 0x1000; FS2 = 0x9000; XA = 0xD000; XF = 0x10000; WP = 0x30000; WOP = 0x220000; CAND = 0x2D0000; STAMP = 0x300000; FL = 0x340000; XF2 = 0x3A0000
TB = 0x400000
oOB = 0; oOR = 65536; oST = oOR + 8192; oX1 = oST + 8192; oGB = oX1 + 73728; LS = 65536
oHX = oGB + 32768; oHS = oHX + 9216; BLK = oGB + LS + 32768
gPY = 0; gCZ = 640; gNR = 896
WSN = 0x1000000; OOB = 0x40000000; MAT = 5308416
assert TB + 32 * BLK <= WSN and CAND + LS + 65536 <= STAMP
LH = 73728; HP = 1168; GATE = 84352; UP = GATE + 36864; SCR = UP + 36864
HW = SCR; NM = HW + 2048; ZR = NM + 1280; WRL = ZR + 1152; WIN = WRL + 1152; CB = WIN + 16; SWL = CB + 64
assert SWL + 4 <= 163840 and LH + 9 * HP <= GATE
sX, sWQ, sWO, sWR, sWS, sOUT, sWG, sWU, sWD, sWS1, sCD = [s(8 + 4 * i, 4) for i in range(11)]
sWL = (sWS, sWS1)
t0, t1, t2, t3, t4 = 's3', 's4', 's5', 's6', 's7'
_n = [52]
def S1():
    _n[0] += 1; return f's{_n[0]-1}'
def S2():
    _n[0] += _n[0] & 1; _n[0] += 2; return s(_n[0] - 2, 2)
sSV = S2(); sCM = S2(); sCID, sKEY, sM, sSTD, sSLOT, sOWN, sSW, sP = [S1() for _ in range(8)]
sMK = [S2() for _ in range(4)]; sBIAS = S2()
(sXCD, sLI, sCG, sW, sT, sJ, sNON, sF, sCNT, sRED, sTB, sTP, sOBs, sORs, sSTs, sGB, sGU, sGL, sWB,
 sSLOW, sOUTo, sFN) = [S1() for _ in range(22)]
sWDo = sF; sTAG = sP
assert _n[0] <= 96
vL, vXe, vXo, vHe, vHo, vL16, vI, vG = range(8)
vM = 8; vPM = 12; vSEL = 14; vSTAMP = 16; vOB = 17; vDUM = 18; vRA = 19
vA, vB, vC, vD, vE, vF = 22, 23, 24, 25, 26, 27
PAIR = 28; RSK = 38; CS = 44; RES = 58; ACC2 = 28; WRP = 48
XFB = 68; ACC = 108; WDF = 188
Qb, Kb, Vb, Rb = ACC, ACC + 20, ACC + 40, ACC + 60
def Wf(ks, n): return (256 + 16 * ks if ks < 16 else 224 + 16 * (ks - 16)) + 4 * n
BIG = 0xf149f2ca
ONES = 0x3f803f80
LOG2E = math.log2(math.e)
def f32(x): return '0x%08x' % struct.unpack('<I', struct.pack('<f', x))[0]
def sb(srd): return int(srd[2:srd.index(':')])

class G:
    def __init__(self, **o):
        self.o = dict(d0=3, kc=17, split=True, woe=8, xs=27, sflag=True, chz=True, fs=(4096, 256), pw0=True, now=False, nox=False, dbgt=False, stamps=False, padto=0, probe='', noffn=False, force=False, slowcopy=True, pads=True,
                      depth=3, osc='', wostep=12, pre=True, nt='', kf=14, kx=-3, wopf=16, pois='s', xpre=0, xlate=4, touch=1, tm=1, bar1=True, xall=False, odef=1, defer=0, msel='cg', mks=(0, 2, 4, 6, 8, 10, 12, 14), kb=6, wom=(1 << 36) - 1,
                      pf=(('s', 2, '', 0, 8), ('t', 2, '', 24, 4), ('s', 0, 'non', 0, 42), ('g', 1, 'all', 0, 9), ('p', 1, 'all', 288, 9)), gate='x', up='x', gux=3,
                      wpf=(), gst=(), wsc=' sc1', h1=2, h2=5, h3=8, h4=14, h5=17, hA=8, hB=11, hC=16, p2n=6, p2g=2, p2r=8, p2w=True, xq=(10, 10), xr=3, tred=2, inl=True, val=1, valo=False, xsc=' sc1', kg=-1, dec=False, valx=0, wo0=(0, 0), idl=(2, 2), stw=(1, 1), rp=(3, 6, 15, 17), xh3=True, ring=(19, 40))
        assert all(k in self.o for k in o), o
        self.o.update(o)
        self.a = Asm(); self.names = []; self.nl = 0; self.colds = []; self.sp = ''; self.sx = ''; self.wdn = 0
    def L(self, p='L'):
        self.nl += 1; return f'{p}_{self.nl}'
    def stamp(self, name):
        a = self.a
        if name == self.o['probe']: a.wlg(0); a('s_memrealtime s[98:99]'); a.wlg(0)
        if not self.o['stamps']: return
        a.wlg(0); a('s_memtime s[0:1]'); a.wlg(0)
        if name not in self.names: self.names.append(name)
        a(f'v_writelane_b32 {v(vSTAMP)}, s0, {self.names.index(name)}')
    def only(self, cond, fn):
        L = self.L(); self.a(cond); self.a(f's_cbranch_scc0 {L}'); fn(); self.a.label(L)
    def w(self, k, fn): self.only(f's_cmp_eq_u32 {sW}, {k}', fn)
    def exec(self, m):
        a = self.a
        if m == -1 or m < (1 << 31): a(f's_mov_b64 exec, {m}')
        else: a(f's_mov_b32 exec_lo, 0x{m & 0xffffffff:x}'); a(f's_mov_b32 exec_hi, 0x{m >> 32:x}')
    def tick(self): self.a(f's_sub_u32 {sCNT}, {sCNT}, 1'); self.a('s_cbranch_scc1 L_exit')
    def poll(self, issue, check):
        a = self.a; L = self.L('P'); a.label(L); self.tick(); issue(); check(); a(f's_cbranch_vccnz {L}')
    def verify(self, issue, check):
        a = self.a; Lc, Lr = self.L('C'), self.L('R')
        if self.o['inl']:
            a(f's_branch {Lc}'); a.label(Lr); self.tick(); a.wvm(0); issue(); a.wvm(0)
            a.label(Lc); check(); a('s_nop 0'); a.out.pop(); a.raw(f's_cbranch_vccnz {Lr}'); return
        a.label(Lc); check(); a(f's_cbranch_vccnz {Lr}')
        def cold(): a.label(Lr); self.tick(); a.wall(); issue(); a.wall(); a(f's_branch {Lc}')
        self.colds.append(cold)
    def run(self, f):
        if callable(f): return f()
        for y in f: tk = self.a(y)
        return tk
    def xsum(self, rs, tmp, op='v_add_f32', full=True, sws=('v_permlane32_swap_b32', 'v_permlane16_swap_b32')):
        a = self.a
        for sw in sws:
            if full:
                for k, r in enumerate(rs): a(f'v_mov_b32 {v(tmp+k)}, {v(r)}')
            for k, r in enumerate(rs): a(f'{sw} {v(r)}, {v(tmp+k)}')
            for k, r in enumerate(rs): a(f'{op} {v(r)}, {v(r)}, {v(tmp+k)}')
    def dpp(self, op, rs, mods):
        for m in mods:
            for r in rs: self.a(f'{op}_dpp {v(r)}, {v(r)}, {v(r)} {m} row_mask:0xf bank_mask:0xf')
    def maxu(self, d, rs, first=True):
        rs = list(rs); r = []
        if first: r.append(f'v_max3_u32 {v(d)}, {v(rs[0])}, {v(rs[1])}, {v(rs[2])}' if len(rs) % 2 else f'v_max_u32 {v(d)}, {v(rs[0])}, {v(rs[1])}'); rs = rs[3:] if len(rs) % 2 else rs[2:]
        for k in range(0, len(rs), 2): r.append(f'v_max3_u32 {v(d)}, {v(d)}, {v(rs[k])}, {v(rs[k+1])}')
        return r
    def div9(self, q, x):
        return [f'v_mul_u32_u24 {v(q)}, 7282, {v(x)}', f'v_lshrrev_b32 {v(q)}, 16, {v(q)}']

    def srd(self, lst):
        for srd, n in lst: self.a(f's_mov_b32 s{sb(srd)+2}, {n}'); self.a(f's_mov_b32 s{sb(srd)+3}, 0x20000')
    def common(self):
        a = self.a
        a(f's_load_dword {sNON}, s[{sb(sWS)}:{sb(sWS)+1}], 0')
        self.srd(((sWS, WSN), (sOUT, 2359296), (sWS1, WSN - LS)))
        a(f'''s_cmp_lt_u32 {sLI}, {0 if self.o["noffn"] else 18}
        s_cselect_b32 {sFN}, {MAT}, 0''')
        self.srd(((sWD, sFN), (sWG, sFN), (sWU, sFN)))
        a(f'''s_add_u32 s{sb(sWS1)}, s{sb(sWS)}, {LS}
        s_addc_u32 s{sb(sWS1)+1}, s{sb(sWS)+1}, 0
        s_mov_b32 {sCNT}, 20000
        s_mov_b32 {sSLOW}, {1 if self.o["force"] else 0}
        s_mul_i32 {sF}, {sXCD}, 18
        s_add_u32 {sF}, {sF}, {sLI}
        s_sub_u32 {sRED}, {sLI}, 24
        s_lshl_b32 {sRED}, {sRED}, 3
        s_add_u32 {sRED}, {sRED}, {sXCD}
        s_cmp_eq_u32 {sW}, 0
        s_cselect_b32 {sRED}, {sRED}, 99
        s_mul_i32 {sTB}, {sT}, {BLK}
        s_add_u32 {sTB}, {sTB}, {TB}
        s_cmp_eq_u32 {sJ}, 0
        s_cselect_b32 {t0}, 0, {BLK}
        s_cselect_b32 s{sb(sBIAS)}, 0x{BIG:x}, 0
        s_mov_b32 s{sb(sBIAS)+1}, s{sb(sBIAS)}
        s_sub_u32 {sTP}, {sTB}, {t0}
        s_lshl_b32 {t0}, {sCG}, 2
        s_add_u32 {t0}, {t0}, {sW}
        s_mul_i32 {sWB}, {t0}, 62208
        s_add_u32 {sWB}, {sWB}, {WP}
        s_lshl_b32 {t1}, {t0}, 9
        s_add_u32 {sOBs}, {t1}, {sTB}
        s_lshl_b32 {t1}, {t0}, 8
        s_add_u32 {t1}, {t1}, {sTB}
        s_add_u32 {sORs}, {t1}, {oOR}
        s_add_u32 {sSTs}, {t1}, {oST}
        s_lshl_b32 {t1}, {t0}, 10
        s_add_u32 {t1}, {t1}, {sTB}
        s_add_u32 {sGB}, {t1}, {oGB}
        s_lshr_b32 {t1}, {sW}, 1
        s_mul_i32 {t1}, {t1}, 294912
        s_and_b32 {t2}, {sW}, 1
        s_mul_i32 {t2}, {t2}, 36864
        s_add_u32 {t1}, {t1}, {t2}
        s_lshl_b32 {t2}, {sF}, 6
        s_add_u32 {sGU}, {t1}, {t2}
        s_lshl_b32 {sGL}, {sW}, 10
        s_mul_i32 {sWDo}, {sF}, 36864
        s_add_u32 {sWDo}, {sWDo}, {sGL}
        s_lshl_b32 {t0}, {sJ}, 2
        s_add_u32 {t0}, {t0}, {sW}
        s_lshl_b32 {t0}, {t0}, 5
        s_add_u32 {t0}, {t0}, {sP}
        s_lshl_b32 {t0}, {t0}, 3
        s_add_u32 {t0}, {t0}, {sCG}
        s_mul_i32 {sOUTo}, {t0}, 144''')
        if self.o['sflag'] and self.o['touch'] & 8:
            f0, f1 = self.o['fs']; self.run(self.xfaddr(t0))
            a(f'''s_load_dword s0, s[{sb(sWS)}:{sb(sWS)+1}], {t0} glc
            s_lshl1_add_u32 {t0}, {sCG}, {sW}
            s_mul_i32 {t0}, {t0}, {f1}
            s_mul_i32 {t1}, {sXCD}, {f0}
            s_add_u32 {t0}, {t0}, {t1}
            s_add_u32 {t0}, {t0}, {FS}''')
            self.only(f's_cmp_lt_u32 {sW}, 2', lambda: a(f's_load_dword {sOWN}, s[{sb(sWS)}:{sb(sWS)+1}], {t0} glc'))
    def nonce(self):
        self.a(f's_mul_i32 {sNON}, {sNON}, 1664525'); self.a(f's_add_u32 {sNON}, {sNON}, 1013904223'); self.a(f's_and_b32 {sNON}, {sNON}, -16')
    def wrsum(self):
        a = self.a
        a(f'v_add_u32 {v(vA)}, {WRL}, {v(vL16)}'); a(f'ds_read_b128 v[56:59], {v(vA)}'); a(f'ds_read_b128 v[60:63], {v(vA)} offset:1024')
        a(f's_mov_b32 {t0}, {ONES}')
        for k in range(8):
            if k == 4: self.exec(0xff)
            a(f'v_dot2_f32_bf16 {v(vA)}, v{56+k}, {t0}, {v(vA) if k else 0}')
        self.exec(-1)
        self.dpp('v_add_f32', [vA], ['row_ror:8', 'row_ror:4', 'row_ror:2', 'row_ror:1']); self.xsum([vA], vB)
        a(f'v_mov_b32 {v(vB)}, {SWL}'); a(f'ds_write_b32 {v(vB)}, {v(vA)}')
    def poisonL(self, lay, P, pol):
        st = lambda k: f'buffer_store_dwordx4 {v(P,4)}, {v(P+4)}, {sWL[lay]}, {sTB} offen offset:{1024*k}{pol}'
        def last(): self.a('s_mov_b32 exec_hi, 0'); self.tk_p = self.a(st(2)); self.exec(-1)
        return [[f'v_mov_b32 {v(P+k)}, -1' for k in range(4)],
                [f's_lshl_b32 s1, {sCG}, 2', f's_add_u32 s1, s1, {sW}', f's_mul_i32 s1, s1, {oX1 // 32}', f'v_add_u32 {v(P+4)}, s1, {v(vL16)}'], [st(0)], [st(1)], last]
    def poisonG(self, lay, P, n=1):
        return [[f's_cmp_lt_u32 {sRED}, 36', f's_cselect_b32 s1, {0 if lay else 0xff000000}, 0', f's_or_b32 s1, s1, 0xffff00', f's_cmp_lt_u32 {sLI}, 18', f's_cselect_b32 exec_lo, -1, 0',
                 f's_cselect_b32 exec_hi, 0xffffff, s1'] + [f'buffer_store_dwordx4 {v(P,4)}, {v(vL16)}, {sWL[lay]}, {sGB} offen offset:{1024*k} sc1' for k in range(n)] + ['s_mov_b64 exec, -1']]
    def xfsig(self):
        a = self.a; a(f's_lshl_b32 s1, {sT}, 8'); a(f's_lshl2_add_u32 s1, {sCG}, s1'); a(f's_getreg_b32 s0, hwreg(HW_REG_XCC_ID, 0, 4)'); a(f's_or_b32 {sSW}, s0, {sNON}')
        self.w(0, lambda: a(f's_atomic_swap {sSW}, s[{sb(sWS)}:{sb(sWS)+1}], s1 offset:{XA}'))
    def xfaddr(self, d):
        return [f's_lshl_b32 {d}, {sT}, 3', f's_add_u32 {d}, {d}, {sCG}', f's_lshl_b32 {d}, {d}, 2', f's_add_u32 {d}, {d}, {sW}', f's_lshl_b32 {d}, {d}, 7', f's_add_u32 {d}, {d}, {XF}']
    def x1pre(self, P):
        st = lambda k: f'buffer_store_dwordx4 {v(P,4)}, {v(P+5)}, {sWS}, {sTB} offen offset:{512*k}{self.o["xsc"]}'
        return [[f's_lshl_b32 s1, {sW}, 4', f's_add_u32 s1, s1, {sCG}', f's_mul_i32 s1, s1, 1152', f's_add_u32 s1, s1, {oX1}', f'v_bfe_u32 {v(P+5)}, v0, 3, 1', f'v_mul_u32_u24 {v(P+5)}, {9216-128}, {v(P+5)}',
                 f'v_lshl_add_u32 {v(P+5)}, {v(vI)}, 4, {v(P+5)}', f'v_lshl_add_u32 {v(P+5)}, {v(vG)}, 7, {v(P+5)}', f'v_add_u32 {v(P+5)}, s1, {v(P+5)}'],
                [st(0)], [st(1)], ['s_mov_b64 exec, 0xffff', st(2), 's_mov_b64 exec, -1']]
    def valid(self, lay, r):
        b = 0 if self.o['valo'] else oOR; n = (oX1 - b) // 4096
        return [[f's_lshl_b32 s1, {sCG}, 2', f's_add_u32 s1, s1, {sW}', f's_mul_i32 s1, s1, {n}', f's_add_u32 s1, s1, {b // 128}', f'v_min_u32 {v(r)}, {n-1}, v0', f'v_add_lshl_u32 {v(r)}, {v(r)}, s1, 7'],
                lambda: self.a.untracked(f'buffer_load_dword {v(vDUM)}, {v(r)}, {sWL[lay]}, {sTB} offen sc1')]
    def validx(self, r):
        def ld(): self.exec(0x01ff01ff); self.a.untracked(f'buffer_load_dword {v(vDUM)}, {v(r)}, {sWS}, {sTB} offen sc1'); self.exec(-1)
        return [[f's_lshl_b32 s1, {sW}, 4', f's_add_u32 s1, s1, {sCG}', f's_mul_i32 s1, s1, 1152', f's_add_u32 s1, s1, {oX1}', f'v_mul_u32_u24 {v(r)}, 9216, {v(vG)}',
                 f'v_lshl_add_u32 {v(r)}, {v(vI)}, 7, {v(r)}', f'v_add_u32 {v(r)}, s1, {v(r)}'], ld]
    def pfetch(self, pos, r0, w0=0):
        a = self.a; U = []
        if self.o['noffn']: return U
        for p, mat, who, row0, R in self.o['pf']:
            if p != pos: continue
            if mat == 2:
                for j in range(R):
                    k = 1024 * (row0 + j * (4 - w0) - w0)
                    U.append([f's_add_u32 m0, {sGL}, {UP + k}', f's_add_u32 s1, {sWDo}, 0x{k & 0xffffffff:x}', f'buffer_load_dwordx4 {v(vL16)}, {sWD}, s1 offen{self.o["nt"]} lds'])
                self.wdn += R * (4 - w0); continue
            n = -(-9 * R // (4 - w0)); srd = (sWG, sWU)[mat]
            for j in range(-(-n // 64)):
                U.append([f'v_add_u32 {v(r0)}, {64*j}, v0', f'v_min_u32 {v(r0)}, {n-1}, {v(r0)}'])
                U.append([f's_mul_i32 s1, {sW}, {n}', f's_sub_u32 s1, s1, {w0*n}', f'v_add_u32 {v(r0)}, s1, {v(r0)}', f'v_min_u32 {v(r0)}, {9*R-1}, {v(r0)}'])
                U.append(self.div9(r0 + 1, r0))
                U.append([f'v_mul_u32_u24 {v(r0+1)}, 8064, {v(r0+1)}', f'v_lshl_add_u32 {v(r0)}, {v(r0)}, 7, {v(r0+1)}'])
                def ld(srd=srd, who=who, R=R, base=(row0 - (18 * R if who == 'non' else 0)) * 8):
                    a(f's_mul_i32 s1, {sLI}, {R*8}'); a(f's_add_u32 s1, s1, {sXCD}')
                    if base: a(f's_add_u32 s1, s1, 0x{base & 0xffffffff:x}')
                    a(f's_mul_i32 s1, s1, 1152')
                    if who != 'ffn': a(f's_mov_b32 s{sb(srd)+2}, {MAT}' if who == 'all' else f's_xor_b32 s{sb(srd)+2}, {sFN}, {MAT}')
                    a.untracked(f'buffer_load_dword {v(vDUM)}, {v(r0)}, {srd}, s1 offen{self.o["nt"]}')
                    if who != 'ffn': a(f's_mov_b32 s{sb(srd)+2}, {sFN}')
                U.append(ld)
        return U

    def start(self):
        a = self.a; o = self.o; nt = o['nt']
        Lx, Lwo, Lw2, Lj, Lxt, Lwt, Lf = [self.L() for _ in range(7)]
        a('s_cmp_ge_u32 s2, 256'); a('s_cbranch_scc1 L_exit')
        if o['stamps'] or o['padto']: a('s_memrealtime s[100:101]'); a('s_memtime s[96:97]'); a(f'v_mov_b32 {v(vSTAMP)}, 0')
        if o['dbgt']:
            Ld = self.L()
            a('s_memrealtime s[100:101]'); a('s_load_dwordx2 s[96:97], s[0:1], 72'); a('s_mov_b32 s98, 256'); a('s_mov_b32 s99, 0x20000')
            a('s_lshr_b32 s3, s2, 3'); a('s_mul_i32 s4, s3, 25'); a('s_lshr_b32 s4, s4, 8'); a('s_mul_i32 s5, s4, 31'); a('s_add_u32 s5, s5, 2'); a('s_mul_i32 s5, s5, 43'); a('s_lshr_b32 s5, s5, 7')
            a('s_and_b32 s6, s2, 7'); a('s_lshl_b32 s6, s6, 2'); a('s_add_u32 s6, s6, s4'); a('s_lshl_b32 s6, s6, 1'); a('v_mov_b32 v2, s6'); a.wlg(0); a('v_mov_b32 v3, s100')
            a('s_cmp_eq_u32 s5, s3'); a(f's_cbranch_scc0 {Ld}'); a('s_mov_b64 exec, 1'); a.untracked('buffer_store_short v3, v2, s[96:99], 0 offen'); a('s_mov_b64 exec, -1'); a.label(Ld)
        def ld(l):
            for srd, off in l: a(f's_load_dwordx2 s[{sb(srd)}:{sb(srd)+1}], s[0:1], {off}')
        ld(((sWQ, 8), (sX, 0), (sWO, 16), (sWS, 80)))
        a(f's_getpc_b64 s[{sb(sCD)}:{sb(sCD)+1}]'); a.raw('L_pc:')
        a(f's_lshr_b32 {sLI}, s2, 3'); self.srd(((sCD, 'L_hotend-L_pc'),))
        a(f"""v_lshrrev_b32 v1, 4, v0
        v_lshlrev_b32 v1, 7, v1
        s_lshl_b32 {t0}, {sLI}, 11""")
        tkc = a.untracked(f'buffer_load_dword {v(vDUM)}, v1, {sCD}, {t0} offen')
        a(f"""v_lshrrev_b32 v2, 6, v0
        s_and_b32 {sXCD}, s2, 7
        v_readfirstlane_b32 {sW}, v2""")
        ld(((sWD, 56), (sWG, 40), (sWU, 48), (sWR, 32), (sOUT, 64)))
        a(f"""v_and_b32 v0, 63, v0
        s_and_b32 {sCG}, {sLI}, 7
        s_lshr_b32 {t0}, {sLI}, 3
        s_lshl_b32 {sT}, {sXCD}, 2
        s_add_u32 {sT}, {sT}, {t0}
        s_lshr_b32 {sP}, {sT}, 4
        s_and_b32 {sJ}, {sT}, 15
        v_lshlrev_b32 {v(vL16)}, 4, v0""")
        self.srd(((sX, 0 if o['nox'] else 2359296),))
        a(f's_cmp_lg_u32 {sW}, 0'); a(f's_cbranch_scc1 {Lx}')
        WOL = GATE + 9216
        for x in self.div9(vA, 0): a(x)
        self.srd(((sWO, 663552), (sWQ, 1990656)) if not o['now'] else ((sWO, 0), (sWQ, 0)))
        a(f"""s_mul_i32 {t4}, {sCG}, 144
        s_mov_b32 m0, {GATE}
        v_mul_u32_u24 v67, {1152-144}, {v(vA)}
        v_add_u32 v67, v67, {v(vL16)}
        s_cmp_ge_u32 {sT}, 27
        s_cbranch_scc1 {Lwo}""")
        a(f"""s_mul_i32 {sM}, {sT}, 43
        s_lshr_b32 {sM}, {sM}, 7
        s_mul_i32 {sKEY}, {sM}, 3
        s_sub_u32 {sKEY}, {sT}, {sKEY}
        v_mul_u32_u24 {v(vA)}, {3456-144}, {v(vA)}
        v_add_u32 {v(vA)}, {v(vA)}, {v(vL16)}
        s_mul_i32 {t3}, {sM}, {64*3456}
        s_add_u32 {t3}, {t3}, {t4}
        s_mul_i32 {t2}, {sKEY}, 1152
        s_add_u32 {t3}, {t3}, {t2}""")
        self.stamp('start')
        for q in range(10):
            if q: a(f's_add_u32 m0, m0, 1008'); a(f's_add_u32 {t3}, {t3}, {7*3456}')
            if q == 9: self.exec(0x1ff)
            tkw = a(f'buffer_load_dwordx4 {v(vA)}, {sWQ}, {t3} offen{nt} lds')
        def woload(lds, step):
            self.exec(o['wom'])
            for q in range(4):
                a(f's_mov_b32 m0, {lds + 576*q}')
                if q: a(f's_add_u32 {t3}, {t3}, {step}')
                tk = a(f'buffer_load_dwordx4 v67, {sWO}, {t3} offen{nt} lds')
            return tk
        a.label(Lw2)
        a(f"""s_and_b32 {t2}, {sT}, 1
        s_mul_i32 {t3}, {sT}, 9
        s_add_u32 {t3}, {t3}, {t2}
        s_mul_i32 {t3}, {t3}, 2304
        s_add_u32 {t3}, {t3}, {t4}""")
        def xpf0():
            self.exec(-1)
            a(f"""s_lshl_b32 {t0}, {sJ}, 7
            s_add_u32 {t0}, {t0}, {sP}
            s_mul_i32 {t1}, {sCG}, 18
            s_add_u32 {t0}, {t0}, {t1}
            s_sub_u32 {t0}, {t0}, 16
            s_mul_i32 {t0}, {t0}, 1152
            v_mul_u32_u24 {v(vB)}, 7282, v0
            v_lshrrev_b32 {v(vB)}, 16, {v(vB)}
            v_mul_u32_u24 {v(vB)}, 1152, {v(vB)}
            v_lshl_add_u32 {v(vB)}, v0, 7, {v(vB)}
            v_add_u32 {v(vB)}, {t0}, {v(vB)}
            v_add_u32 {v(vC)}, {7*2304}, {v(vB)}""")
            a.untracked(f'buffer_load_dword {v(vDUM)}, {v(vB)}, {sX}, 0 offen')
            self.exec((1 << 18) - 2); a.untracked(f'buffer_load_dword {v(vDUM)}, {v(vC)}, {sX}, 0 offen')
        if o['xlate'] == 3: xpf0()
        tko = woload(WOL, 4*1152)
        if o['xlate'] == 4: xpf0()
        self.exec(-1); a(f's_branch {Lj}')
        st = (a.vm, a.lg); a.label(Lwo)
        a(f"""s_sub_u32 {sM}, {sT}, 27
        s_min_u32 {sM}, {sM}, 3
        s_mul_i32 {t3}, {sM}, {144*1152}
        s_add_u32 {t3}, {t3}, {16*1152}
        s_add_u32 {t3}, {t3}, {t4}""")
        self.stamp('start')
        woload(GATE, 36*1152)
        a(f's_branch {Lw2}')
        a.label(Lx)
        self.srd(((sWR, 1152),))
        a(f"""s_lshl_b32 {t0}, {sJ}, 7
        s_add_u32 {t0}, {t0}, {sP}
        s_mul_i32 {t0}, {t0}, 1152
        v_min_u32 {v(vB)}, 26, v0
        s_mul_i32 {t1}, {sCG}, 3
        s_add_u32 {t1}, {t1}, {sW}
        s_mul_i32 {t1}, {t1}, {3*2304}
        s_add_u32 {t1}, {t1}, {t0}
        s_sub_u32 {t1}, {t1}, {11*2304}""")
        for x in self.div9(vA, vB): a(x)
        a(f"""v_mul_u32_u24 {v(vA)}, 1152, {v(vA)}
        v_lshl_add_u32 {v(vA)}, {v(vB)}, 7, {v(vA)}
        v_add_u32 v67, {t1}, {v(vA)}""")
        self.stamp('start')
        xpf = lambda: a.untracked(f'buffer_load_dword {v(vDUM)}, v67, {sX}, 0 offen')
        if o['pois'] == 'e':
            self.srd(((sWS, WSN),))
            for k in range(4): a(f'v_mov_b32 v{40+k}, -1')
            a(f"""s_mul_i32 {t1}, {sT}, {BLK}
            s_mul_i32 {t2}, {sCG}, 10240
            s_add_u32 {t1}, {t1}, {t2}
            s_mul_i32 {t2}, {sW}, 3072
            s_add_u32 {t2}, {t2}, {TB - 3072}
            s_add_u32 {t1}, {t1}, {t2}""")
            for k in range(3): a(f'buffer_store_dwordx4 v[40:43], {v(vL16)}, {sWS}, {t1} offen offset:{1024*k}')
            self.w(3, lambda: a(f'buffer_store_dwordx4 v[40:43], {v(vL16)}, {sWS}, {t1} offen offset:3072'))
        if o['xlate'] == 0: xpf()
        def xps(k0, k1):
            for k in range(k0, k1): a.untracked(f's_buffer_load_dword {sOWN}, {sX}, {sSW} offset:{2304*(k//9) + 128*(k%9)}')
        if o['xlate'] == 5: a(f's_max_i32 {sSW}, {t1}, 0'); xps(0, o['xs']); xpf = lambda: xps(o['xs'], 27)
        if o['touch'] & 4: self.exec(o['tm']); xpf(); self.exec(-1)
        if o['touch'] & 3:
            self.srd(((sWS, WSN),))
            def tc():
                a(f"""s_lshl_b32 {t1}, {sXCD}, 3
                s_add_u32 {t1}, {t1}, {sCG}
                s_lshl_b32 {t1}, {t1}, 2
                s_lshr_b32 {t2}, {sLI}, 3
                s_add_u32 {t1}, {t1}, {t2}
                s_lshl_b32 {t1}, {t1}, 10
                s_add_u32 {t1}, {t1}, {FL}
                v_min_u32 {v(vA)}, {7 if o['touch'] & 2 else 0}, v0
                v_lshl_add_u32 {v(vA)}, {v(vA)}, 7, {t1}
                s_mul_i32 {t1}, {sT}, {BLK}
                s_add_u32 {t1}, {t1}, {TB + oHS}
                v_writelane_b32 {v(vA)}, {t1}, 62
                v_writelane_b32 {v(vA)}, 0, 63""")
                a.untracked(f'buffer_load_dword {v(vDUM)}, {v(vA)}, {sWS}, 0 offen sc1')
            def tcs():
                a(f"""s_lshl_b32 {t1}, {sT}, 3
                s_add_u32 {t1}, {t1}, {sCG}
                s_lshl_b32 {t1}, {t1}, 9
                s_add_u32 {t1}, {t1}, {XF}
                v_min_u32 {v(vA)}, 3, v0
                v_lshl_add_u32 {v(vA)}, {v(vA)}, 7, {t1}
                s_and_b32 {t1}, {sT}, 1
                s_lshl1_add_u32 {t1}, {sCG}, {t1}
                s_mul_i32 {t1}, {t1}, {o['fs'][1]}
                s_mul_i32 {t2}, {sXCD}, {o['fs'][0]}
                s_add_u32 {t1}, {t1}, {t2}
                s_add_u32 {t1}, {t1}, {FS}
                v_writelane_b32 {v(vA)}, {t1}, 4
                s_lshl3_add_u32 {t1}, {sXCD}, {sCG}
                s_lshl_b32 {t1}, {t1}, 8
                s_add_u32 {t1}, {t1}, {FS2}
                v_writelane_b32 {v(vA)}, {t1}, 5
                s_lshl_b32 {t1}, {sT}, 8
                s_add_u32 {t1}, {t1}, {XA}
                v_writelane_b32 {v(vA)}, {t1}, 6
                s_mul_i32 {t1}, {sT}, {BLK}
                s_add_u32 {t1}, {t1}, {TB + oHS}
                v_writelane_b32 {v(vA)}, {t1}, 62""")
                a.untracked(f'buffer_load_dword {v(vDUM)}, {v(vA)}, {sWS}, 0 offen sc1')
            self.w(1, tcs if o['sflag'] else tc)
        def wr():
            a(f's_mov_b32 m0, {WRL}'); a(f'buffer_load_dwordx4 {v(vL16)}, {sWR}, 0 offen lds')
            self.exec(0xff); a(f'buffer_load_dwordx4 {v(vL16)}, {sWR}, 0 offen offset:1024 lds'); self.exec(-1)
        def wr2():
            a(f'''s_lshl_b32 {t2}, {sW}, 10
            s_add_u32 m0, {t2}, {WRL - 2048}
            s_and_b32 {t2}, {t2}, 1024
            s_cselect_b64 exec, 0xff, -1
            buffer_load_dwordx4 {v(vL16)}, {sWR}, {t2} offen lds''')
            self.exec(-1)
        self.u1 = o['chz'] and o['bar1'] and o['touch'] == 1 and o['xlate'] > 2
        if self.u1: self.only(f's_cmp_lg_u32 {sW}, 1', wr2)
        else: self.w(2, wr)
        a(f"""s_sub_u32 {t4}, {sW}, 1
        s_mul_i32 {sM}, {t4}, {3*9216}
        s_lshl_b32 {sCID}, {sM}, 1
        s_add_u32 {sCID}, {sCID}, {t0}
        s_cmp_eq_u32 {sJ}, 0
        s_cselect_b32 {t2}, 0, 18432
        s_sub_u32 {t2}, {t0}, {t2}
        s_add_u32 {sSTD}, {sCID}, 36864
        s_cmp_eq_u32 {sW}, 3
        s_cselect_b32 {sSTD}, {t2}, {sSTD}
        s_cselect_b32 {sKEY}, {HP - 1024}, 0
        s_add_u32 {sKEY}, {sKEY}, 896""")
        a.label(Lj)
        a(f'v_and_b32 {v(vI)}, 15, v0'); a(f'v_lshrrev_b32 {v(vG)}, 4, v0')
        if 'j' in o['gst']: self.stamp('lj')
        self.common(); self.consts()
        if 'c' in o['gst']: self.stamp('cst')
        a(f's_cmp_lg_u32 {sW}, 0'); a(f's_cbranch_scc1 {Lxt}')
        if o['now']:
            self.nonce()
            for u in self.poisonL(0, 40, '') + self.poisonG(0, 40): self.run(u)
            a.wvm(0); a('s_branch L_main')
        a(f"""v_bfe_u32 v30, v0, 2, 2
        v_and_b32 v31, 3, v0
        v_lshrrev_b32 v28, 3, v0
        v_mul_u32_u24 v28, {32768-128}, v28
        v_add_u32 v28, v28, {v(vL16)}
        v_lshlrev_b32 v29, 7, v0
        v_lshrrev_b32 v33, 1, {v(vG)}
        v_and_b32 v34, 1, {v(vG)}
        v_lshl_add_u32 v36, v34, 3, v30
        v_mul_u32_u24 v36, 144, v36
        v_add_u32 v36, {GATE}, v36
        v_and_b32 v35, 1, v0
        v_lshl_add_u32 v44, v31, 4, v36
        v_lshl_add_u32 v44, v33, 3, v44
        v_lshl_add_u32 v45, v35, 3, v36
        v_lshlrev_b32 v38, 7, {v(vG)}
        v_lshl_add_u32 v38, {v(vI)}, 4, v38
        v_add_u32 v38, 4096, v38
        v_lshl_add_u32 v39, v33, 9, {v(vL16)}
        s_mul_i32 {sSTD}, {sCG}, 82944
        s_add_u32 {sSTD}, {sSTD}, {WOP}""")
        def woaddr(idx, add):
            a(f"""s_lshr_b32 {t0}, {idx}, 1
            s_mul_i32 {t0}, {t0}, 4608
            s_add_u32 {sSLOT}, {sSTD}, {t0}
            s_and_b32 {t0}, {idx}, 1
            s_lshl_b32 {t0}, {t0}, 8""")
            if add: a(f's_add_u32 {sSLOT}, {sSLOT}, {add}')
            a(f's_add_u32 {sSLOT}, {sSLOT}, {t0}'); a(f's_add_u32 {sCID}, {sSLOT}, {t0}')
        def word(lds, B):
            for p in range(3):
                for jh in range(2): a(f'ds_read_b64_tr_b16 {v(B+4*p+2*jh, 2)}, v{45 if p == 2 else 44} offset:{lds - GATE + 576*jh + 64*p}')
        def wost(B):
            for p in range(2): a(f'buffer_store_dwordx4 {v(B+4*p,4)}, v39, {sWS}, {sCID} offen offset:{2048*p} sc1')
            self.exec(0x00ff00ff); a(f'buffer_store_dwordx4 {v(B+8,4)}, v38, {sWS}, {sSLOT} offen sc1'); self.exec(-1)
        a(f's_cmp_ge_u32 {sT}, 27'); a(f's_cbranch_scc1 {Lwt}')
        a(f"""v_lshl_add_u32 v32, {v(vG)}, 3, v30
        v_mul_u32_u24 v32, 144, v32
        v_lshl_add_u32 v40, v31, 3, v32
        v_add_u32 v40, {GATE}, v40
        v_lshrrev_b32 v33, 1, v31
        v_mul_u32_u24 v33, {4608-144}, v33
        v_mul_u32_u24 v34, 72, v31
        v_add3_u32 v41, v32, v33, v34
        v_add_u32 v41, {GATE+32}, v41
        v_bfe_u32 v33, v0, 1, 2
        v_mul_u32_u24 v33, 62208, v33
        v_bfe_u32 v34, v0, 3, 1
        v_mul_u32_u24 v34, 3456, v34
        v_lshlrev_b32 v35, 6, v35
        v_add3_u32 v42, v33, v34, v35
        v_lshl_add_u32 v42, {v(vG)}, 4, v42
        s_mul_i32 {t3}, {sM}, 6912
        s_add_u32 {t3}, {t3}, {sWB}
        s_lshl_b32 {t4}, {sKEY}, 10
        s_add_u32 {t1}, {t3}, {t4}
        s_lshl_b32 {t4}, {sKEY}, 7
        s_add_u32 {t2}, {t3}, {t4}""")
        a.wait(tkw)
        self.stamp('wld')
        for e in range(9):
            hd, kl = e >> 1, e & 1
            for jh in range(2):
                a(f'ds_read_b64_tr_b16 {v(ACC+4*e+2*jh, 2)}, ' + (f'v40 offset:{(32*kl + 4*jh)*144 + 72*(hd>>1) + 40*(hd&1)}' if e < 8 else f'v41 offset:{576*jh}'))
        for e in range(8):
            if e > 1 and not e & 1: a(f's_add_u32 {t1}, {t1}, 62208')
            a(f'buffer_store_dwordx4 {v(ACC+4*e,4)}, {v(vL16)}, {sWS}, {t1} offen offset:{3456*(e&1)} sc1')
            if e == o['woe']: a.wait(tko); word(WOL, XFB)
        tks = a(f'buffer_store_dwordx4 {v(ACC+32,4)}, v42, {sWS}, {t2} offen offset:3072 sc1')
        if o['woe'] > 7: a.wait(tko); word(WOL, XFB)
        a.wlg(0)
        a.label(Lf)
        woaddr(sT, 0); wost(XFB)
        if o['sflag']:
            f0, f1 = o['fs']; WSP = f's[{sb(sWS)}:{sb(sWS)+1}]'
            PL = self.poisonL(0, 40, ''); PL = PL[:1] + self.poisonG(0, 40, 4) + PL[1:]
            for u in PL[:2] + (PL[2:] if o['pw0'] else []): self.run(u)
            self.stamp('wst')
            if o['bar1']: a('s_barrier')
            self.nonce()
            a(f'''s_mul_i32 {t3}, {sCG}, {2*f1}
            s_add_u32 {t3}, {t3}, {FS}
            s_lshr_b32 {t4}, {sT}, 4
            s_mul_i32 {t4}, {t4}, {f1 - 64}
            s_lshl2_add_u32 {t4}, {sT}, {t4}
            s_add_u32 {t4}, {t4}, {t3}
            s_mul_i32 {t0}, {sXCD}, {f0}
            s_add_u32 {t3}, {t3}, {t0}
            s_mov_b32 {t1}, {sNON}
            s_mov_b32 {t2}, {sNON}''')
            a.wait(tks) if o['split'] else a.wvm(0)
            self.stamp('wfl')
            for k in range(8): a(f's_atomic_swap {t1}, {WSP}, {t4} offset:{f0*k}')
            if o['split']:
                a(f's_lshl_b32 {t0}, {sCG}, 8'); a(f's_lshl2_add_u32 {t0}, {sT}, {t0}'); a.wvm(0)
                for k in range(8): a(f's_atomic_swap {t1}, {WSP}, {t0} offset:{FS2 + 2048*k}')
            if not o['pw0']:
                for u in PL[2:]: self.run(u)
            Lp = self.L('P'); a.label(Lp); self.tick()
            a(f's_load_dwordx16 s[8:23], {WSP}, {t3} glc'); a(f's_load_dwordx16 s[48:63], {WSP}, {t3} offset:{f1} glc'); a.wlg(0)
            for k in list(range(8, 24, 2)) + list(range(48, 58 if o['split'] else 64, 2)): a(f's_cmp_eq_u64 s[{k}:{k+1}], s[4:5]'); a(f's_cbranch_scc0 {Lp}')
            if o['split']: a('s_cmp_eq_u32 s58, s4'); a(f's_cbranch_scc0 {Lp}')
            self.stamp('wpoll')
            a.wvm(0)
            a('s_branch L_main')
        else: self.vflag()
        a.label(Lwt)
        woaddr(sM, 16*4608)
        a.wait(tko)
        self.stamp('wld')
        word(GATE, ACC); word(WOL, XFB); wost(ACC)
        a.wlg(0); a(f's_branch {Lf}')
        self.start2(Lxt, xpf, tkc)
    def vflag(self):
        a = self.a; o = self.o
        self.stamp('wst')
        if o['bar1']: a('s_barrier')
        self.nonce()
        a(f"""s_lshl_b32 {t1}, {sCG}, 12
        s_add_u32 {t1}, {t1}, {FL}
        s_lshl_b32 {t2}, {sT}, 7
        s_add_u32 {t2}, {t2}, {t1}
        s_lshl_b32 {t3}, {sXCD}, 15
        s_add_u32 {t1}, {t1}, {t3}
        v_mov_b32 v32, {sNON}
        v_mov_b32 v33, {sNON}
        v_mov_b32 v34, {sNON}
        v_mov_b32 v35, {sNON}""")
        a.wvm(0)
        a(f'buffer_store_dwordx4 v[32:35], v28, {sWS}, {t2} offen sc1')
        self.stamp('wfl')
        if o['pois'] == 's':
            for u in self.poisonL(0, 40, '') + (self.poisonG(0, 40) if o['kg'] < 0 else []): self.run(u)
        a.wvm(0)
        self.stamp('wack')
        a('s_mov_b32 exec_hi, 0')
        self.poll(lambda: a(f'buffer_load_dword v30, v29, {sWS}, {t1} offen sc1'), lambda: a(f'v_cmp_ne_u32 vcc, {sNON}, v30'))
        self.exec(-1)
        self.stamp('wpoll')
        a('s_branch L_main')
    def start2(self, Lxt, xpf, tkc):
        a = self.a; o = self.o; nt = o['nt']
        a.label(Lxt)
        XV = 66
        if o['xlate'] in (1, 5): xpf()
        if o['pre']:
            def pre():
                a(f"""v_lshrrev_b32 v38, 5, v0
                v_mul_u32_u24 v38, {LS - 32*256}, v38
                v_lshl_add_u32 v38, v0, 8, v38
                s_lshl_b32 {t0}, {sXCD}, 13
                s_add_u32 {t0}, {t0}, {CAND}""")
                a.untracked(f'buffer_load_dword {v(vDUM)}, v38, {sWS}, {t0} offen sc1')
        self.ones()
        def hz():
            a(f'v_mov_b32 v36, 0\nv_mov_b32 v37, 0\nv_mov_b32 v38, 0\nv_mov_b32 v39, 0\nv_add_u32 {v(vA)}, {HW}, {v(vL16)}')
            a(f'ds_write_b128 {v(vA)}, v[36:39]'); a(f'ds_write_b128 {v(vA)}, v[36:39] offset:1024')
        self.w(1, hz)
        a(f"""v_lshrrev_b32 {v(vA)}, 3, v0
        v_and_b32 {v(vB)}, 7, v0
        v_and_b32 v{XV}, 6, {v(vA)}
        v_xor_b32 v{XV}, v{XV}, {v(vB)}
        v_mul_u32_u24 {v(vB)}, 2304, {v(vA)}
        v_lshl_add_u32 v{XV}, v{XV}, 4, {v(vB)}
        s_mul_i32 {t2}, {sW}, 96
        s_add_u32 {t2}, {t2}, {NM + 64 - 96}
        v_lshl_add_u32 v64, v0, 2, {t2}
        v_and_b32 v46, 6, v0
        v_xor_b32 v46, v46, {v(vA)}
        v_and_b32 {v(vB)}, 7, v0
        v_lshl_add_u32 {v(vB)}, {v(vB)}, 7, {sM}
        v_lshl_add_u32 v46, v46, 4, {v(vB)}
        v_lshlrev_b32 v55, 2, {v(vG)}
        v_sub_u32 v55, {v(vI)}, v55
        s_add_u32 {t2}, {sKEY}, 128""")
        for k in range(4): a(f'v_mov_b32 {v(WDF+k)}, {ONES}')
        for b in range(1, 9): a(f'v_add_u32 v{46+b}, {t2}, v{45+b}')
        if not o['chz']: self.nonce()
        if o['xlate'] == 2: xpf()
        def chain():
            if not o['pads']: return
            if 'k' in o['gst']: self.stamp('prechain')
            if self.u1: a.raw('s_waitcnt vmcnt(1)')
            else: a.wait(tkc)
            if not o['chz']: a.wlg(0)
            if 'k' in o['gst']: self.stamp('tkc')
            for l in ('s_mov_b64 exec, 0', f's_cmp_eq_u32 {sW}, 2', 's_cbranch_scc1 L_pad1', f's_cmp_eq_u32 {sW}, 3', 's_cbranch_scc1 L_pad2', 's_branch L_pad0', 'L_padret:'): a.raw(l)
            self.exec(-1)
            self.stamp('chain')
        if not o['xall'] or o['chz']: chain()
        if o['chz']: self.nonce()
        tx = {}
        def xl(k, b):
            def f():
                if k == 1 and b == 0: a(f's_add_u32 {sCID}, {sCID}, 18432')
                a(f's_add_u32 m0, {sM}, {9216*k + 896*b}' if k < 2 or not b else f's_add_u32 m0, m0, {sKEY}')
                tx[k] = a(f'buffer_load_dwordx4 v{XV}, {sX}, {sCID if k < 2 else sSTD} offen offset:{128*b}{nt} lds')
            return f
        def rd(k):
            a.wait(tx[k])
            for b in range(9): a(f'ds_read_b128 {v(ACC + 36*(k&1) + 4*b, 4)}, ' + (f'v46 offset:{9216*k + 1024*b}' if k < 2 else f'v{46+b} offset:18432'))
        def dots(k, U):
            S = WDF + 4 + 8*k
            self.weave([f'v_mfma_f32_16x16x32_bf16 {v(S+4*h,4)}, {v(ACC + 36*(k&1) + 4*b, 4) if h else v(WDF,4)}, {v(ACC + 36*(k&1) + 4*b, 4)}, {v(S+4*h,4) if b else 0}'
                        for b in range(9) for h in range(2)], U)
        a.wvm(0)
        self.stamp('prepld')
        for b in range(o['xpre']): xl(0, b)()
        if o['bar1']: a('s_barrier')
        for b in range(o['xpre'], 9): xl(0, b)()
        self.w(2, self.wrsum)
        for b in range(9): xl(1, b)()
        X2 = [xl(2, b) for b in range(9)]
        U = self.poisonL(0, 40, '') + (self.poisonG(0, 40) if o['kg'] < 0 and not o['sflag'] else []) if o['pois'] == 's' else []
        if o['pre']: U.append(lambda: (a(f's_lshl_b32 {t1}, {sLI}, 2'), a(f's_add_u32 {t1}, {t1}, {sW}'), self.only(f's_cmp_eq_u32 {t1}, {31*4+1}', pre)))
        U += self.pfetch('s', 36, 1)
        if o['xall']:
            while X2: X2.pop(0)()
            X2 = U; U = []
        self.stamp('prepst')
        if o['xall'] and not o['chz']: chain()
        rd(0); dots(0, X2)
        rd(1); dots(1, U + self.pfetch('t', 36, 1)); rd(2)
        self.stamp('xin')
        def fin(U):
            dots(2, U)
            for r in range(4):
                a(f'v_cmp_eq_u32 vcc, {r}, v55')
                if r == 0:
                    for k in range(3): a(f'v_mov_b32 v{28+2*k}, {v(WDF+4+8*k)}')
                for k in range(3): a(f'v_cndmask_b32 v{29+2*k}, {v(29+2*k) if r else 0}, {v(WDF+8+8*k+r)}, vcc')
            self.dpp('v_add_f32', range(28, 34), ['row_ror:8']); self.xsum([29, 31, 33], 34)
            a(f's_mov_b32 {t0}, {f32(1/576)}'); a(f'v_mov_b32 v40, {f32(1e-5)}')
            for op in range(5):
                for S in (28, 30, 32):
                    a([f'v_mul_f32 {v(S)}, {f32(-1/576)}, {v(S)}', f'v_fma_f32 {v(S+1)}, {v(S+1)}, {t0}, v40', f'v_fma_f32 {v(S+1)}, -{v(S)}, {v(S)}, {v(S+1)}',
                       f'v_max_f32 {v(S+1)}, v40, {v(S+1)}', f'v_rsq_f32 {v(S+1)}, {v(S+1)}'][op])
            a(f's_cmp_eq_u32 {sW}, 3'); a(f's_cselect_b32 {t2}, 288, 0'); a(f's_cselect_b32 {t4}, 320, 0'); a(f'v_subrev_u32 v41, {t2}, v64'); a(f'v_subrev_u32 v42, {t4}, v64')
            def put():
                self.exec(0xff)
                for k in range(2): a(f'ds_write2_b32 v64, v{28+2*k}, v{29+2*k} offset0:{8*k} offset1:{80+8*k}')
                for r in (41, 42): a(f'ds_write2_b32 v{r}, v32, v33 offset0:16 offset1:96')
                self.exec(-1)
            self.only(f's_cmp_lg_u32 {sW}, 0', put)
        self.fin = fin
        if not o['defer']: fin([])
        self.stamp('flag0')
        if o['sflag']: a.wait(self.tk_p)
        a('s_branch L_main')
        a.raw('L_startend:')
        a.raw('.p2align 12')
        a.label('L_main')
        a.barrier()
        self.stamp('h0')

    def ones(self):
        a = self.a
        def f():
            a(f'v_mul_u32_u24 {v(vA)}, {HP}, v0'); a(f'v_add_u32 {v(vA)}, {LH + 1024}, {v(vA)}')
            for k in range(4): a(f'v_mov_b32 {v(XFB+k)}, {ONES}')
            self.exec(0x1ff); a(f'ds_write_b128 {v(vA)}, {v(XFB,4)}'); self.exec(-1)
        self.w(2, f)

    def gu(self, mat, q):
        return [f's_add_u32 m0, {sGL}, {(UP if mat else GATE) + 4096*q}', f's_add_u32 s1, {sGU}, {589824*q}',
                f'buffer_load_dwordx4 {v(vD if mat else vC)}, {sWU if mat else sWG}, s1 offen{self.o["nt"]} lds']
    def gu_at(self, pos):
        return [self.gu(m, q) for m, k in ((0, self.o['gate']), (1, self.o['up'])) if k == pos for q in range(9)]

    def consts(self):
        a = self.a
        a(f'''v_lshrrev_b32 v28, 3, {v(vI)}
        v_mul_u32_u24 v28, 9216, v28
        v_and_b32 v29, 7, {v(vI)}
        v_and_b32 v31, 6, v29
        v_xor_b32 v32, v31, {v(vG)}
        v_lshlrev_b32 v32, 4, v32
        v_lshl_add_u32 v32, v29, 7, v32
        v_add_u32 {v(vXe)}, v32, v28
        v_xor_b32 {v(vXo)}, 64, {v(vXe)}
        v_cmp_gt_u32 vcc, 8, {v(vI)}
        v_mov_b32 v33, {LH + 1024}
        v_add_u32 v34, {LH - 9216}, {v(vXe)}
        v_add_u32 v35, {LH - 9216}, {v(vXo)}
        v_cndmask_b32 {v(vHe)}, v34, v33, vcc
        v_cndmask_b32 {v(vHo)}, v35, v33, vcc''')
        a(f's_mul_i32 {t0}, {sCG}, 9'); a(f's_mul_i32 {t1}, {sW}, 18432')
        a(f'v_lshl_add_u32 v33, v29, 7, v28'); a(f'v_add_u32 v33, {t1}, v33')
        for P in range(3):
            a(f's_add_u32 {t2}, {t0}, {4*P}')
            if P < 2: a(f'v_add_u32 v34, {t2}, {v(vG)}')
            else: a(f'v_mov_b32 v34, {t2}')
            a(f'''v_lshrrev_b32 v35, 3, v34
            v_and_b32 v34, 7, v34
            v_xor_b32 v34, v34, v31
            v_lshl_add_u32 v35, v35, 10, v33
            v_lshl_add_u32 {v(vRA+P)}, v34, 4, v35''')
        a(f'v_and_b32 v34, 1, {v(vG)}'); a(f'v_lshl_add_u32 {v(vRA+2)}, v34, 3, {v(vRA+2)}')
        a(f'''v_bfe_u32 v35, v0, 2, 2
        v_lshl_add_u32 v35, {v(vG)}, 3, v35
        v_mul_u32_u24 v35, 9216, v35
        v_xor_b32 v36, v34, v0
        v_and_b32 v36, 3, v36
        v_lshl_add_u32 {v(vC)}, v36, 4, v35
        v_xor_b32 {v(vD)}, 32, {v(vC)}
        v_lshlrev_b32 {v(vF)}, 4, {v(vG)}
        v_lshl_add_u32 {v(vF)}, {v(vI)}, 6, {v(vF)}
        v_mov_b32 v35, {OOB}
        v_cmp_gt_u32 vcc, 6, {v(vI)}
        s_lshl_b32 {t1}, {sT}, 12
        s_add_u32 {t1}, {t1}, {XF}
        v_cndmask_b32 {v(vF)}, v35, {v(vF)}, vcc
        v_min_u32 v37, 31, v0
        v_lshl_add_u32 {v(vE)}, v37, 7, {t1}''')
        if self.o['kx'] < 0:
            a(f'''s_lshl_b32 {t1}, {sT}, 8
            s_add_u32 {t1}, {t1}, {XA}
            v_min_u32 v37, 7, v0
            v_lshl_add_u32 {v(vE)}, v37, 2, {t1}''')
            if self.o['split']:
                a(f'''s_lshl3_add_u32 {t1}, {sXCD}, {sCG}
                s_lshl_b32 {t1}, {t1}, 8
                s_add_u32 {t1}, {t1}, {FS2 - 128}
                s_mov_b32 exec_lo, 0
                v_lshl_add_u32 {v(vE)}, v0, 2, {t1}
                s_mov_b32 exec_lo, -1''')
        a(f'''v_lshlrev_b32 v34, 14, v34
        v_lshrrev_b32 v35, 1, {v(vG)}
        v_lshl_add_u32 v34, v35, 8, v34
        v_lshl_add_u32 {v(vOB)}, {v(vI)}, 4, v34''')
        a(f'v_mov_b32 v36, 0x{BIG:x}'); a('v_mov_b32 v37, 0xffff'); a('v_mov_b32 v38, 0xffff0000')
        for r in range(4):
            a(f'''v_lshl_add_u32 v34, {v(vG)}, 2, {r}
            v_cmp_le_u32 {sMK[r]}, v34, {v(vI)}
            v_sub_u32 v35, {v(vI)}, v34
            v_and_b32 v35, 8, v35
            v_cmp_eq_u32 vcc, 0, v35
            v_cndmask_b32 v{40+r}, 0, v{37+(r&1)}, {sMK[r]}
            v_cndmask_b32 {v(vM+r)}, v36, 0, vcc''')
        a(f'v_or_b32 {v(vPM)}, v40, v41'); a(f'v_or_b32 {v(vPM+1)}, v42, v43')
        a(f'''v_and_b32 v34, 0x33, v0
        v_mov_b32 v35, 0x3f80
        v_mov_b32 v36, 0x3f800000
        v_cmp_eq_u32 vcc, 16, v34
        v_cndmask_b32 {v(vSEL)}, 0, v35, vcc
        v_cmp_eq_u32 vcc, 17, v34
        v_cndmask_b32 {v(vSEL)}, {v(vSEL)}, v36, vcc
        v_cmp_eq_u32 vcc, 18, v34
        v_cndmask_b32 {v(vSEL+1)}, 0, v35, vcc''')

    def xread(self, ks, t, d):
        if t == 0: return f'ds_read_b128 {v(d,4)}, {v(vHo if ks & 1 else vHe)} offset:{HP*(ks>>1)}'
        return f'ds_read_b128 {v(d,4)}, {v(vXo if ks & 1 else vXe)} offset:{18432*(t-1) + 1024*(ks>>1)}'
    def mm(self, ks, t, n, x):
        d = ACC + 20 * n + 4 * t; w = v(Wf(ks, n), 4); x = v(x, 4)
        A, B = (x, w) if n == 2 else (w, x)
        return f'v_mfma_f32_16x16x32_bf16 {v(d,4)}, {A}, {B}, {v(d,4) if ks else 0}'
    def weave(self, mms, fill):
        n = len(mms)
        for k, m in enumerate(mms):
            self.a(m)
            if fill and (k % 2 or len(fill) > (n - k) // 2): self.run(fill.pop(0))
        while fill: self.run(fill.pop(0))
    def wd_units(self):
        assert self.wdn >= 36 or self.o['noffn']
        U = [[f'v_bfe_u32 {v(vA)}, v0, 2, 2', f'v_lshl_add_u32 {v(vA)}, {v(vG)}, 3, {v(vA)}', f'v_mul_u32_u24 {v(vA)}, 1152, {v(vA)}'],
             [f'v_and_b32 {v(vB)}, 3, v0', f'v_lshl_add_u32 {v(vA)}, {v(vB)}, 3, {v(vA)}', f's_mul_i32 {t0}, {sW}, 288', f's_add_u32 {t0}, {t0}, {UP}', f'v_add_u32 {v(vA)}, {t0}, {v(vA)}']]
        for n in range(9): U.append([f'ds_read_b64_tr_b16 {v(WDF+4*n+2*jh,2)}, {v(vA)} offset:{32*n + 4608*jh}' for jh in range(2)])
        return U
    def gemm0(self):
        a = self.a; o = self.o; D = o['depth']
        def wload(ks):
            r = [[f's_add_u32 {t3}, {sWB}, {3456*ks}', f'buffer_load_dwordx4 {v(Wf(ks,0),4)}, {v(vL16)}, {sWS}, {t3} offen{o["wsc"]}']]
            for n in (1, 2): r.append([f'buffer_load_dwordx4 {v(Wf(ks,n),4)}, {v(vL16)}, {sWS}, {t3} offen offset:{1024*n}{o["wsc"]}'])
            r.append([f'buffer_load_dwordx4 {v(Wf(ks,3),4)}, {v(vF)}, {sWS}, {t3} offen offset:3072{o["wsc"]}'])
            return r
        xb = lambda ks, t: XFB + 20 * (ks & 1) + 4 * t
        extra = {ks: [] for ks in range(18)}; hook = {}
        def wpf(j):
            a(f's_add_u32 s1, {sM if j == 4 else sKEY}, {3456*4*j}')
            a.untracked(f'buffer_load_dword {v(vDUM)}, v{52 if j == 4 else 49}, {sWS}, s1 offen{o["wsc"]}')
        if o['wpf']:
            a(f'''s_and_b32 {t4}, {sT}, 3
            s_mul_i32 {sKEY}, {t4}, 3456
            s_add_u32 {sKEY}, {sKEY}, {sWB}
            s_mul_i32 {t4}, {t4}, {14*128}
            s_min_u32 {t4}, {t4}, {40*128}
            s_add_u32 {sM}, {t4}, {sWB}
            v_min_u32 v49, 26, v0
            v_lshlrev_b32 v49, 7, v49
            v_min_u32 v52, {13*128}, v49''')
        W0 = sum((wload(ks) for ks in range(min(D, o['d0']))), []); nx = min(D, o['d0'])
        if o['defer']:
            n0, n1 = o['defer']
            for x in W0[:n0]: self.run(x)
            self.fin(W0[n0:n1]); W0 = W0[n1:]; self.stamp('fin')
            hook[o['kb']] = lambda: a('s_barrier')
        for t in range(5): a(self.xread(0, t, xb(0, t)))
        if o['kx'] < -1:
            for x in W0[:4]: self.run(x)
            W0 = W0[4:]
            if o['kx'] == -3: a.wlg(0)
            self.xfsig()
        for x in W0: self.run(x)
        if o['kx'] == -1: a.wlg(0); self.xfsig()
        for j, k in enumerate(o['wpf']):
            if k >= 0: extra[k].append(lambda j=j: wpf(j + 1))
        M = self.pfetch('m', 56)
        if M:
            Md = [u for u in M if not callable(u) and 'lds' in u[-1]]; Ms = [u for u in M if callable(u)]; assert len(Ms) <= 1
            for u in M:
                if u not in Md and u not in Ms: self.run(u)
            a({'cg': f's_mov_b32 {sOWN}, {sCG}', 'q': f's_lshr_b32 {sOWN}, {sLI}, 3', 'x': f's_mov_b32 {sOWN}, {sXCD}', 'c4': f's_and_b32 {sOWN}, {sCG}, 3', 'c2': f's_and_b32 {sOWN}, {sCG}, 1'}[o['msel']])
            def burst():
                for u in Ms: self.run(u)
                if Md: self.only(f's_cmp_lt_u32 {sLI}, 18', lambda: [self.run(u) for u in Md])
            for k, ks in enumerate(o['mks']): extra[ks].append(lambda k=k: self.only(f's_cmp_eq_u32 {sOWN}, {k}', burst))
        a(f'''s_getreg_b32 {t0}, hwreg(HW_REG_XCC_ID, 0, 4)
        s_or_b32 {t0}, {t0}, {sNON}
        v_mov_b32 v46, {t0}''')
        if o['split']: a('s_mov_b32 exec_lo, 0'); a(f'v_mov_b32 v46, {sNON}'); a('s_mov_b32 exec_lo, -1')
        if o['kx'] >= 0: a(f'''s_lshl_b32 {t1}, {sT}, 3
        s_add_u32 {t1}, {t1}, {sCG}
        s_lshl_b32 {t1}, {t1}, 2
        s_add_u32 {t1}, {t1}, {sW}
        s_lshl_b32 {t1}, {t1}, 7
        s_add_u32 {t1}, {t1}, {XF}''')
        if o['pois'] == 'g':
            for k, u in enumerate(self.poisonL(0, 40, '')): extra[1 + k].append(u)
        if o['kg'] >= 0: extra[o['kg']] += [[f'v_mov_b32 v{40+k}, -1' for k in range(4)]] + self.poisonG(0, 40)
        def xf():
            if o['pois'] == 'g': a.wait(self.tk_p)
            self.exec(0xff); a(f'buffer_store_dwordx4 v[46:49], {v(vL16)}, {sWS}, {t1} offen sc1'); self.exec(-1)
        if o['kx'] >= 0: extra[o['kx']].append(xf)
        if o['up'] != 'x':
            hook[2] = lambda: a('s_barrier')
            for k, u in enumerate(self.wd_units()): extra[2 + k * 3 // 4].append(u)
        fl = lambda: a(f'buffer_load_dword v54, {v(vE)}, {sWS}, 0 offen sc1')
        extra[o['kf']].append(fl)
        def chk():
            Lr, Lk = self.L('R'), self.L('C')
            a('v_cmp_ne_u32 vcc, v54, v46'); a(f's_cbranch_vccnz {Lr}'); a.label(Lk)
            def cold():
                a.label(Lr); a.wall()
                self.poll(fl, lambda: (a('v_xor_b32 v47, v54, v46'), a('v_cmp_lt_u32 vcc, 15, v47')))
                a('v_cmp_ne_u32 vcc, 0, v47'); a(f's_cbranch_vccz {Lk}'); a(f's_mov_b32 {sSLOW}, 1'); a(f's_branch {Lk}')
            self.colds.append(cold)
        hook[o['kc']] = chk
        if o['val']: V = self.valid(0, 55); extra[o['kf']].append(V[0]); extra[o['kc']].insert(0, V[1])
        kt = 18 - D
        if o['wopf']:
            extra[o['wopf'] - 1].append([f'v_min_u32 v53, 41, v0', f'v_lshlrev_b32 v53, 7, v53'])
            def wp():
                a(f'''s_and_b32 s1, {sT}, 3
                s_lshl_b32 {t4}, {sCG}, 2
                s_add_u32 s1, s1, {t4}
                s_mul_i32 s1, s1, 20736
                s_mul_i32 {t4}, {sW}, 5120
                s_add_u32 s1, s1, {t4}
                s_add_u32 s1, s1, {WOP}''')
                a.untracked(f'buffer_load_dword {v(vDUM)}, v53, {sWS}, s1 offen sc1')
            extra[o['wopf']].append(wp)
        if o['valx']: V = self.validx(57); extra[o['valx'] - 1].append(V[0]); extra[o['valx']].append(V[1])
        extra[kt] += self.pfetch('g', 50)
        for q, u in enumerate(self.gu_at('g')): extra[kt + q * D // 18].append(u)
        for ks in range(18):
            if ks in hook: hook[ks]()
            if ks in o['gst']: self.stamp(f'g{ks}')
            fill = []
            if ks + 1 < 18: fill += [[self.xread(ks + 1, t, xb(ks + 1, t))] for t in range(5)]
            for _ in range(2):
                if nx <= ks + D and nx < 18: fill += wload(nx); nx += 1
            fill += extra[ks]
            if ks == 17: fill += [[x] for x in self.pre_attn()]
            self.weave([self.mm(ks, t, n, xb(ks, t)) for t in range(5) for n in range(4)], fill)
        self.stamp('gemm0')
    HB = staticmethod(lambda ks: XFB + 16 + 4 * (ks % 6))
    def phase2(self, extra):
        pa = [[x] for x in self.pre_attn()]; k0 = 18 - (len(pa) + 1) // 2
        assert len(extra) <= 3 * k0
        for ks in range(18):
            fill = [[self.xread(ks + 5, 0, self.HB(ks + 5))]] if ks + 5 < 18 else []
            src, n = (extra, 3) if ks < k0 else (pa, 2)
            fill += src[:n]; del src[:n]
            self.weave([self.mm(ks, 0, n, self.HB(ks)) for n in range(4)], fill)
    def gemm1(self):
        a = self.a; o = self.o; sx = self.sx
        xb = lambda ks, t: XFB + 16 * (1 - (ks & 1)) + 4 * (t - 1)
        extra = {ks: [] for ks in range(18)}
        q0, q1 = o['xq']; assert q1 >= 2 * (o['h3'] // 2 + 1)
        for k, q in enumerate(range(q0, q1)): extra[k // o['xr']].append(lambda q=q: setattr(self, 'tk_x', self.x1piece(q)))
        U1 = [(lambda q=q: setattr(self, 'tk_gu', self.x1piece(q))) for q in range(q1, 18)]
        self.xlate = []
        if o['xh3']: self.xlate, U1 = U1, []
        U = self.pfetch('x', 64)
        for u in self.gu_at('x'): U.append(lambda u=u: setattr(self, 'tk_gu', self.run(u)))
        fa = self.ffn_addr(); U += U1
        ks = 0
        while U:
            n = max(0, o['gux'] - len(extra[ks])); extra[ks] += U[:n]; del U[:n]; ks += 1
        P = XFB + 32; k0, k1, k2, k3 = o['rp']; sp = self.sp
        R = [[f'v_mov_b32 {v(P+k)}, -1' for k in range(4)], [f'buffer_store_dwordx4 {v(P,4)}, {v(vOB)}, {sWS}, {sOBs} offen{sp}'],
             [f's_add_u32 s1, {sOBs}, 32768', f'buffer_store_dwordx4 {v(P,4)}, {v(vOB)}, {sWS}, s1 offen{sp}'],
             lambda: (self.exec(0xffff), setattr(self, 'tk_p', a(f'buffer_store_dwordx4 {v(P,4)}, {v(vL16)}, {sWS}, {sORs} offen{sp}')), self.exec(-1))]
        extra[k0] += R[:2]; extra[k0 + 1] += R[2:]
        def rf():
            a(f'v_lshlrev_b32 {v(P+7)}, 2, v0'); a(f'v_mov_b32 {v(P+6)}, {sNON}')
            a.wait(self.tk_p); self.run(self.xfaddr('s1')); a('s_mov_b32 exec_hi, 0'); a(f'buffer_store_dword {v(P+6)}, {v(P+7)}, {sWS}, s1 offen{sp}'); self.exec(-1)
        def rf0():
            a.wait(self.tk_p); self.run(self.xfaddr('s1')); self.exec(0xff); a(f'buffer_store_dwordx4 {v(P,4)}, {v(vL16)}, {sWS}, s1 offen{sp}'); self.exec(-1)
        if o['kx'] >= 0: rf = rf0
        extra[k1] += [rf] + self.poisonG(1, P)
        fl = lambda: a(f'buffer_load_dword {v(P+5)}, {v(P+4)}, {sWS}, 0 offen sc1')
        extra[k2] += [[f's_lshl_b32 s1, {sT}, 12', f's_add_u32 s1, s1, {XF}', f'v_min_u32 {v(P+4)}, 31, v0', f'v_lshl_add_u32 {v(P+4)}, {v(P+4)}, 7, s1'], fl]
        self.rchk = lambda: self.verify(fl, lambda: a(f'v_cmp_ne_u32 vcc, {-1 if o["kx"] >= 0 else sNON}, {v(P+5)}'))
        extra[o['h3'] - 1] += [fa[k:k+2] for k in range(0, len(fa), 2)]
        assert ks <= o['h3'], ks
        hook = self.hooks()
        for t in range(1, 5): a(self.xread(0, t, xb(0, t)))
        for ks in range(18):
            if ks in hook: hook[ks]()
            fill = [[self.xread(ks + 1, t, xb(ks + 1, t))] for t in range(1, 5)] if ks < 17 else [[self.xread(k, 0, self.HB(k))] for k in range(5)]
            self.weave([self.mm(ks, t, n, xb(ks, t)) for t in range(1, 5) for n in range(4)], fill + extra[ks])
        if 18 in hook: hook[18]()
        self.stamp('ph1')
        a(f's_cmp_lg_u32 {sOWN}, 0'); a(f's_cbranch_scc1 L_patch{sx}')
        self.phase2([])
        a.label(f'L_patched{sx}')
        self.colds.insert(0, self.patch)
        self.stamp('gemm1')
    def pre_attn(self):
        r = [f'v_lshlrev_b32 {v(vA)}, 2, {v(vI)}', f'v_add_u32 {v(vA)}, {NM}, {v(vA)}',
             f'v_lshlrev_b32 {v(vB)}, 4, {v(vG)}', f'v_add_u32 {v(vB)}, {NM}, {v(vB)}']
        r += [f'ds_read_b128 {v(RES,4)}, {v(vRA)}', f'ds_read_b128 {v(RES+4,4)}, {v(vRA+1)}', f'ds_read_b64 {v(RES+8,2)}, {v(vRA+2)}']
        r += [f'ds_read2_b32 {v(PAIR+2*t,2)}, {v(vA)} offset0:{16*t} offset1:{80+16*t}' for t in range(5)]
        return r + self.vform(0) + self.vform(1)
    def vform(self, t):
        d = XFB + 8 * (t & 1)
        return [f'ds_read_b128 {v(d,4)}, {v(vB)} offset:{64*t}', f'ds_read_b128 {v(d+4,4)}, {v(vB)} offset:{320+64*t}']

    def attn(self, lay):
        a0 = self.a; o = self.o; W = sWS
        a0.barrier()
        self.stamp(f'abar{lay}')
        a0(f's_mul_i32 {t0}, {sW}, 20480'); a0(f's_mul_i32 {t1}, {sCG}, 82944'); a0(f's_add_u32 {t1}, {t1}, {t0}')
        wo = []
        for q in range(21):
            x = []
            if q % 4 == 0: x += [f's_add_u32 m0, {t0}, {1024*q}', f's_add_u32 {t2}, {t1}, {WOP + 1024*q}']
            x.append(f'buffer_load_dwordx4 {v(vL16)}, {sWS}, {t2} offen offset:{1024*(q%4)} sc1 lds')
            wo.append(x)
        dma = list(wo); post = []
        if lay == 0:
            dma += self.gu_at('a'); post += self.gu_at('o')
        cnt = [0]; self.tk_wo = None
        def drain(l):
            x = l.pop(0); tk = self.run(x)
            if x is wo[-1]: self.tk_wo = tk
        def a(t):
            for l in t.strip().split('\n'):
                a0(l.strip()); cnt[0] += 1
                if cnt[0] >= o['wo0'][lay] and cnt[0] % (o['wostep'][lay] if type(o['wostep']) is tuple else o['wostep']) == 0 and dma: drain(dma)
        csQ, csK, csR, csV = CS, CS + 4, CS + 8, CS + 12
        for t in range(5): a(f'v_mul_f32 {v(RSK+t)}, {f32(18**-0.5 * LOG2E)}, {v(PAIR+2*t+1)}')
        a(f'v_mov_b32 {v(csV)}, {v(Vb)}\nv_mov_b32 {v(csV+1)}, {v(Vb)}')
        for cs, b in ((csR, Rb), (csK, Kb), (csQ, Qb)):
            for r in range(4): a(f'v_mov_b32_dpp {v(cs+r)}, {v(b+r)} row_newbcast:0 row_mask:0xf bank_mask:0xf')
        a(f'v_permlane32_swap_b32 {v(csV)}, {v(csV+1)}')
        SC = XFB + 20
        def fold(t):
            P = v(PAIR + 2 * t, 2); kp = v(RSK + (t & ~1), 2); ks_ = f'op_sel:[0,{t&1}] op_sel_hi:[1,{t&1}]'
            q, k, vv, r = Qb + 4*t, Kb + 4*t, Vb + 4*t, Rb + 4*t
            for b, cs in ((r, csR), (k, csK)) + (((q, csQ),) if t else ()):
                for h in (0, 2): a(f'v_pk_fma_f32 {v(b+h,2)}, {v(cs+h,2)}, {P}, {v(b+h,2)} op_sel_hi:[1,0,1]')
            a(f'v_pk_mul_f32 {v(r,2)}, {v(r,2)}, {P} op_sel:[0,1] op_sel_hi:[1,1]')
            a(f'v_pk_mul_f32 {v(r+2,2)}, {v(r+2,2)}, {kp} {ks_}')
            for h in (0, 2): a(f'v_pk_mul_f32 {v(k+h,2)}, {v(k+h,2)}, {kp} {ks_}')
            nm = XFB + 8 * (t & 1)
            if t:
                for h in (0, 2): a(f'v_pk_mul_f32 {v(q+h,2)}, {v(q+h,2)}, {P} op_sel:[0,1] op_sel_hi:[1,1]')
            for h in (0, 2): a(f'v_pk_fma_f32 {v(vv+h,2)}, {v(nm+h,2)}, {v(csV,2)}, {v(vv+h,2)} op_sel_hi:[1,0,1]')
            for h in (0, 2): a(f'v_pk_mul_f32 {v(vv+h,2)}, {v(vv+h,2)}, {v(nm+4+h,2)}')
            if t: a(f'v_cvt_pk_bf16_f32 {v(q)}, {v(q)}, {v(q+1)}\nv_cvt_pk_bf16_f32 {v(q+1)}, {v(q+2)}, {v(q+3)}')
            a(f'v_cvt_pk_bf16_f32 {v(q+2)}, {v(r)}, {v(r+1)}\nv_mov_b32 {v(q+3)}, 0x3f80')
            a(f'v_cvt_pk_bf16_f32 {v(k)}, {v(k)}, {v(k+1)}\nv_cvt_pk_bf16_f32 {v(k+1)}, {v(k+2)}, {v(k+3)}')
            if t: a(f'v_mfma_f32_16x16x32_bf16 {v(q-4,4)}, {v(k-4,4)}, {v(q,4)}, {v(vM,4)}')
            a(f'v_cvt_pk_bf16_f32 {v(k+2)}, {v(r+2)}, {v(r+3)}\nv_mov_b32 {v(k+3)}, 0')
            a(f'v_mfma_f32_16x16x16_bf16 {v(r,4)}, {v(q+2,2)}, {v(vSEL,2)}, 0')
            a(f'v_cvt_pk_bf16_f32 {v(Vb+2*t)}, {v(vv)}, {v(vv+1)}\nv_cvt_pk_bf16_f32 {v(Vb+2*t+1)}, {v(vv+2)}, {v(vv+3)}')
            if t: a(f'v_mfma_f32_16x16x32_bf16 {v(SC+4*(t-1),4)}, {v(k,4)}, {v(q,4)}, {v(vM,4)}')
            if t + 2 < 5:
                for x in self.vform(t + 2): a(x)
        for t in range(5): fold(t)
        self.stamp(f'fold{lay}')
        MX = XFB + 16
        for h in (0, 2): a(f'v_pk_add_f32 {v(Qb+h,2)}, {v(Qb+h,2)}, {sBIAS}')
        for t in range(4):
            sc_ = SC + 4*t
            for r in range(4): a(f'v_cndmask_b32 {v(sc_+r)}, {v(Qb+4*t+r)}, {v(sc_+r)}, {sMK[r]}')
            a(f'v_max3_f32 {v(MX+t)}, {v(sc_)}, {v(sc_+1)}, {v(sc_+2)}\nv_max_f32 {v(MX+t)}, {v(MX+t)}, {v(sc_+3)}')
        vr = []
        for t in range(5):
            r = Rb + 4*t
            vr += [f'v_cvt_pk_bf16_f32 {v(Rb+2*t)}, {v(r)}, {v(r+1)}', f'v_cvt_pk_bf16_f32 {v(Rb+2*t+1)}, {v(r+2)}, {v(r+3)}']
        a(f'''v_permlane32_swap_b32 {v(MX)}, {v(MX+1)}
        {vr[0]}
        v_permlane32_swap_b32 {v(MX+2)}, {v(MX+3)}
        v_max_f32 {v(MX)}, {v(MX)}, {v(MX+1)}
        v_max_f32 {v(MX+2)}, {v(MX+2)}, {v(MX+3)}
        {vr[1]}
        {vr[2]}
        v_permlane16_swap_b32 {v(MX)}, {v(MX+2)}
        v_max_f32 {v(MX)}, {v(MX)}, {v(MX+2)}
        v_mov_b32 {v(MX+2)}, {v(MX)}
        {vr[3]}
        {vr[4]}
        v_permlane16_swap_b32 {v(MX)}, {v(MX+2)}
        v_mov_b32 {v(MX+1)}, {v(MX)}
        v_mov_b32 {v(MX+3)}, {v(MX+2)}
        {vr[5]}
        v_permlane32_swap_b32 {v(MX)}, {v(MX+1)}
        v_permlane32_swap_b32 {v(MX+2)}, {v(MX+3)}''')
        for x in vr[6:]: a(x)
        for t in range(4):
            sc_ = SC + 4*t
            for h in (0, 2): a(f'v_pk_add_f32 {v(sc_+h,2)}, {v(sc_+h,2)}, {v(MX+(t&~1),2)} op_sel:[0,{t&1}] op_sel_hi:[1,{t&1}] neg_lo:[0,1] neg_hi:[0,1]')
        def pv(t, k):
            p = Kb + 4*t
            return f'v_mfma_f32_16x16x32_bf16 {v((SC if k else XFB)+4*t,4)}, {v((Vb if k else Rb)+2*t,4)}, {v(p,4)}, 0'
        for t in range(4):
            sc_ = SC + 4*t; p = Kb + 4*t
            for r in range(4):
                a(f'v_exp_f32 {v(sc_+r)}, {v(sc_+r)}')
                if t and r in (1, 2): a(pv(t - 1, r - 1))
            a(f'v_cvt_pk_bf16_f32 {v(p+2)}, {v(sc_)}, {v(sc_+1)}\nv_cvt_pk_bf16_f32 {v(p+3)}, {v(sc_+2)}, {v(sc_+3)}')
            for h in range(2): a(f'v_bfi_b32 {v(p+h)}, {v(vPM+h)}, 0, {v(p+2+h)}')
            for h in range(2): a(f'v_and_b32 {v(p+2+h)}, {v(vPM+h)}, {v(p+2+h)}')
        OP = Qb
        a(f'v_rcp_f32 {v(XFB+2)}, {v(XFB+2)}\nv_rcp_f32 {v(XFB+6)}, {v(XFB+6)}')
        a(pv(3, 0)); a(f'v_rcp_f32 {v(XFB+10)}, {v(XFB+10)}'); a(pv(3, 1))
        a(f's_mul_i32 {t4}, {sW}, 252\ns_sub_u32 {t4}, {sORs}, {t4}\ns_add_u32 {t3}, {sOBs}, 32768')
        for t in range(4):
            d = SC + 4*t; e = XFB + 4*t
            if t == 2: a(f'v_rcp_f32 {v(XFB+14)}, {v(XFB+14)}')
            for b in (d, d + 2, e): a(f'v_pk_mul_f32 {v(b,2)}, {v(b,2)}, {v(e+2,2)} op_sel_hi:[1,0]')
            a(f'v_cvt_pk_bf16_f32 {v(OP+2*t)}, {v(d)}, {v(d+1)}\nv_cvt_pk_bf16_f32 {v(OP+2*t+1)}, {v(d+2)}, {v(d+3)}')
            a(f'v_cvt_pk_bf16_f32 {v(OP+8+t)}, {v(e)}, {v(e+1)}')
            if t == 2:
                while dma: drain(dma)
                for h in range(2): a(f'v_permlane16_swap_b32 {v(OP+h)}, {v(OP+2+h)}')
                a(f'buffer_store_dwordx4 {v(OP,4)}, {v(vOB)}, {W}, {sOBs} offen{self.sp}')
        a = a0
        for t in (1, 2): a(f'v_mov_b32_dpp {v(OP+8)}, {v(OP+8+t)} quad_perm:[0,1,2,3] row_mask:{1<<t} bank_mask:0xf')
        for h in range(2): a(f'v_permlane16_swap_b32 {v(OP+4+h)}, {v(OP+6+h)}')
        a(f'v_mov_b32_dpp {v(OP+8)}, {v(OP+11)} quad_perm:[0,1,2,3] row_mask:8 bank_mask:0xf')
        a(f'buffer_store_dwordx4 {v(OP+4,4)}, {v(vOB)}, {W}, {t3} offen{self.sp}')
        self.tk_o = a(f'buffer_store_dword {v(OP+8)}, {v(vL16)}, {W}, {t4} offen{self.sp}')
        self.stamp(f'attn{lay}')
        while post: drain(post)

    def p2(self, lay):
        a = self.a; o = self.o; W = sWS; sp = self.sp; xp = sp or o['xsc']
        a(f's_add_u32 {sTAG}, {sNON}, {lay}')
        AD = ACC + 72
        NS = o['ring'][lay] if lay or o['up'] == 'x' else 10
        slot = lambda k: (XFB + 4 * (k % NS)) if k % NS < 10 else ((224 if lay else WDF) + 4 * (k % NS - 10))
        if lay:
            a(f's_lshl_b32 {t0}, {sW}, 6'); a(f's_add_u32 {t0}, {t0}, {NM + 640 + 64}'); a(f'v_lshl_add_u32 {v(vA)}, {v(vI)}, 2, {t0}')
            a(f'ds_read2_b32 {v(AD+4,2)}, {v(vA)} offset0:0 offset1:80')
        a(f'''v_lshlrev_b32 {v(vE)}, 10, {v(vG)}
        v_lshl_add_u32 {v(vE)}, {v(vI)}, 4, {v(vE)}
        s_lshl_b32 {t0}, {sW}, 14
        s_add_u32 {t0}, {t0}, {sTB}
        s_lshl_b32 {t2}, {sW}, 8
        s_add_u32 {t2}, {t2}, {sTB}
        s_add_u32 {t2}, {t2}, {oOR}
        s_add_u32 {t3}, {t2}, 4096
        v_add_u32 {v(AD)}, {9*4608}, {v(vL16)}
        v_and_b32 {v(AD+1)}, 7, v0
        v_lshlrev_b32 {v(AD+1)}, 4, {v(AD+1)}
        v_lshl_add_u32 {v(AD+1)}, {v(vG)}, 7, {v(AD+1)}
        v_add_u32 {v(AD+2)}, {9*4608}, {v(AD+1)}''')
        def init():
            for k in range(10):
                a(f'v_lshlrev_b32 {v(ACC2+2*k)}, 16, {v(RES+k)}'); a(f'v_and_b32 {v(ACC2+2*k+1)}, 0xffff0000, {v(RES+k)}')
                if lay: a(f'v_pk_fma_f32 {v(ACC2+2*k,2)}, {v(ACC2+2*k,2)}, {v(AD+4,2)}, {v(AD+4,2)} op_sel:[0,0,1] op_sel_hi:[1,0,1]')
        init()
        order = [16, 17] + list(range(16))
        def wread(k):
            ks, n = order[k // 5], k % 5; hi = ks >= 9
            ad = (AD + 2 if hi else AD + 1) if n == 4 else (AD if hi else vL16)
            return f'ds_read_b128 {v(slot(k), 4)}, {v(ad)} offset:{4608*(ks - 9*hi) + 1024*n}'
        def oload(ks):
            if ks % 4 == 0: a(f's_add_u32 {t1}, {t0}, {1024*ks}')
            a(f'buffer_load_dwordx4 {v(ACC+4*ks,4)}, {v(vL16)}, {W}, {t1} offen offset:{1024*(ks%4)} sc1')
        N0 = o['p2n']; G0 = o['p2g']
        def first():
            for ks in range(2): a(f'buffer_load_dwordx4 {v(ACC+64+4*ks,4)}, {v(vE)}, {W}, {t3 if ks else t2} offen sc1')
            for ks in range(G0): oload(ks)
        Lp, Lr, Lq, Lg = [self.L() for _ in range(4)]
        a.wait(self.tk_wo); a.barrier()
        self.stamp(f'oack{lay}')
        n1 = min(o['p2r'], NS - 1)
        for k in range(n1): a(wread(k))
        if sp or o['p2w']: a.wait(self.tk_o)
        first()
        for k in range(n1, NS - 1): a(wread(k))
        a.label(Lp)
        for x in self.maxu(AD + 3, range(ACC + 64, ACC + 72)): a(x)
        a(f'v_cmp_eq_u32 vcc, -1, {v(AD+3)}'); a(f's_cbranch_vccz {Lg}')
        a.label(Lq); self.tick(); a.wvm(0); first(); a.wvm(0); a(f's_branch {Lp}')
        a.label(Lg)
        for ks in range(G0, N0): oload(ks)
        self.stamp(f'ogate{lay}')
        U = [[f's_mul_i32 {t4}, {sCG}, 144', f's_add_u32 {t4}, {t4}, {WRL}', f'v_lshl_add_u32 {v(vA)}, {v(vG)}, 4, {t4}'],
             [f'v_and_b32 {v(vB)}, 1, {v(vG)}', f'v_lshl_add_u32 {v(vB)}, {v(vB)}, 3, {t4}'],
             [f'ds_read_b128 {v(WRP,4)}, {v(vA)}'], [f'ds_read_b128 {v(WRP+4,4)}, {v(vA)} offset:64'], [f'ds_read_b64 {v(WRP+8,2)}, {v(vB)} offset:128']]
        if lay == 0:
            x = f'''v_lshrrev_b32 {v(vA)}, 3, {v(vI)}
            v_mul_u32_u24 {v(vA)}, 9216, {v(vA)}
            v_add_u32 {v(vXe)}, {v(vA)}, {v(AD+1)}
            v_add_u32 {v(vXo)}, 512, {v(vXe)}
            v_cmp_gt_u32 vcc, 8, {v(vI)}
            v_mov_b32 {v(vA)}, {LH + 1024}
            v_add_u32 {v(vHe)}, {LH - 9216}, {v(vXe)}
            v_add_u32 {v(vHo)}, {LH - 9216}, {v(vXo)}
            v_cndmask_b32 {v(vHe)}, {v(vHe)}, {v(vA)}, vcc
            v_cndmask_b32 {v(vHo)}, {v(vHo)}, {v(vA)}, vcc
            s_lshl_b32 {t4}, {sW}, 4
            s_add_u32 {t4}, {t4}, {sCG}
            s_mul_i32 {t4}, {t4}, 1152
            v_add_u32 {v(vRA)}, {t4}, {v(vXe)}
            v_add_u32 {v(vRA+1)}, 512, {v(vRA)}
            v_lshlrev_b32 {v(vA)}, 7, {v(vG)}
            v_sub_u32 {v(vA)}, {v(vRA)}, {v(vA)}
            v_and_b32 {v(vB)}, 1, {v(vG)}
            v_lshl_add_u32 {v(vA)}, {v(vB)}, 3, {v(vA)}
            v_add_u32 {v(vRA+2)}, 1024, {v(vA)}'''
        else: x = f'v_mul_u32_u24 {v(vXe)}, 2304, {v(vI)}\nv_lshl_add_u32 {v(vXe)}, {v(vG)}, 4, {v(vXe)}'
        U += [[l.strip()] for l in x.split('\n')]
        V = (self.pfetch('p', vA) + self.gu_at('p')) if lay == 0 else []
        for k in range(90):
            kk, n = divmod(k, 5); ks = order[kk]
            if k + NS - 1 < 90: a(wread(k + NS - 1))
            a(f'v_mfma_f32_16x16x32_bf16 {v(ACC2+4*n,4)}, {v(slot(k),4)}, {v(ACC+4*ks,4)}, {v(ACC2+4*n,4)}')
            if n == 0 and kk + N0 < 16: oload(kk + N0)
            elif ks < 16 and n in (2, 3): a(f'v_max3_u32 {v(AD+3)}, {v(AD+3)}, {v(ACC+4*ks+2*n-4)}, {v(ACC+4*ks+2*n-3)}')
            elif U: self.run(U.pop(0))
            elif V and kk + N0 >= 16: self.run(V.pop(0))
        assert not U
        for u in V: self.run(u)
        a(f'v_cmp_eq_u32 vcc, -1, {v(AD+3)}'); a(f's_cbranch_vccnz {Lr}')
        def cold():
            a.label(Lr); init()
            for k in range(NS - 1): a(wread(k))
            a.wall(); a(f's_branch {Lq}')
        self.colds.append(cold)
        self.stamp(f'p2{lay}')
        XP = ACC; S = ACC + 12
        a(f's_mov_b32 {t0}, {ONES}')
        if lay == 0: a(f's_add_u32 {t1}, {sTB}, {oX1}')
        def dot(k, first=False):
            for j, x in enumerate((t0, v(XP+k), v(WRP+k))): a(f'v_dot2_f32_bf16 {v(S+j)}, {v(XP+k)}, {x}, {0 if first else v(S+j)}')
        for k in range(10):
            a(f'v_cvt_pk_bf16_f32 {v(XP+k)}, {v(ACC2+2*k)}, {v(ACC2+2*k+1)}')
            if lay == 0 and k in (3, 7): a(f'buffer_store_dwordx4 {v(XP+k-3,4)}, {v(vRA)}, {sWS}, {t1} offen offset:{128*(k-3)}{xp}')
        dot(0, True); a('s_mov_b32 exec_hi, 0'); dot(8); dot(9); self.exec(-1)
        if lay == 0:
            for h in range(2): a(f'v_permlane16_swap_b32 {v(XP+8+h)}, {v(XP+10+h)}')
            self.exec(0xffff); tk = a(f'buffer_store_dwordx4 {v(XP+8,4)}, {v(vRA)}, {sWS}, {t1} offen offset:1024{xp}'); self.exec(-1)
        for k in range(1, 8): dot(k)
        a(f'v_mov_b32 {v(S+3)}, {sTAG}')
        self.xsum([S, S+1, S+2], S + 4, full=False)
        if lay == 0 and not o['dec']: a.wait(tk)
        self.exec(0xffff); self.tk_st = a(f'buffer_store_dwordx4 {v(S,4)}, {v(vL16)}, {W}, {sSTs} offen{sp}'); self.exec(-1)
        self.stamp(f'st{lay}')

    def x1piece(self, q):
        a = self.a; off = 9216 * (q & 1) + 1024 * (q >> 1)
        a(f's_add_u32 m0, {sSW}, {off}'); a(f's_add_u32 s1, {sWB}, {off}')
        return a(f'buffer_load_dwordx4 {v(vL16)}, {sWS}, s1 offen sc1 lds')
    def gstat(self, S, n):
        a = self.a
        for k in range(n): a(f'v_add_f32 {v(S+k)}, {v(S+k)}, {v(S+4+k)}')
        self.xsum(list(range(S, S + n)), S + 4)
        a(f'''v_mul_f32 {v(S)}, {f32(-1/576)}, {v(S)}
        v_mul_f32 {v(S+1)}, {f32(1/576)}, {v(S+1)}
        v_fma_f32 {v(S+1)}, -{v(S)}, {v(S)}, {v(S+1)}
        v_max_f32 {v(S+1)}, 0, {v(S+1)}
        v_add_f32 {v(S+4)}, {f32(1e-5)}, {v(S+1)}
        v_rsq_f32 {v(S+3)}, {v(S+4)}''')
    def lnc(self, S):
        a = self.a
        a(f'''v_add_f32 {v(S+5)}, 1.0, {v(S+3)}
        v_mul_f32 {v(S+6)}, {v(S+5)}, {v(S+5)}
        v_mul_f32 {v(S+6)}, {v(S+6)}, {v(S+1)}
        v_add_f32 {v(S+6)}, {f32(1e-5)}, {v(S+6)}
        v_rsq_f32 {v(S+6)}, {v(S+6)}
        v_mul_f32 {v(S+6)}, {v(S+6)}, {v(S+5)}''')

    def router(self, lay):
        a = self.a; o = self.o; W = sWL[lay]
        S = ACC + 20; K = S + 8; ZP = ACC; ZT = ACC + 40; H = ACC + 60
        a(f'''s_lshl_b32 {t1}, {sW}, 8
        s_add_u32 {t1}, {t1}, {sTB}
        s_add_u32 {t1}, {t1}, {oST}
        s_add_u32 {t2}, {t1}, 4096''')
        def main():
            a(f'buffer_load_dwordx4 {v(S,4)}, {v(vE)}, {sWS}, {t1} offen sc1'); a(f'buffer_load_dwordx4 {v(S+4,4)}, {v(vE)}, {sWS}, {t2} offen sc1')
        def check():
            a(f'v_cmp_ne_u32 {sSV}, {sTAG}, {v(S+3)}'); a(f'v_cmp_ne_u32 vcc, {sTAG}, {v(S+7)}'); a(f's_or_b64 vcc, vcc, {sSV}')
        if lay == 0:
            a.barrier(); self.ones()
            a(f's_mul_i32 {sSW}, {sW}, 18432'); a(f's_add_u32 {sWB}, {sTB}, {oX1}'); a(f's_add_u32 {sWB}, {sWB}, {sSW}')
            idle = self.wd_units() if o['up'] == 'x' else []
        else:
            idle = [[f'ds_read_b64_tr_b16 {v(256+4*ks+2*jh,2)}, {v(vC)} offset:{1024*(2*ks+jh)}' for jh in range(2)] for ks in range(18)]
        dec = o['dec'] and lay == 0
        h = len(idle) * o['idl'][lay] // 6
        for u in idle[:h]: self.run(u)
        if dec:
            self.run(self.xfaddr(t3))
            a(f'''s_lshl_b32 s1, {sCG}, 9
            s_sub_u32 s1, {t3}, s1
            v_min_u32 {v(H+8)}, 7, v0
            v_lshl_add_u32 {v(H+8)}, {v(H+8)}, 9, s1
            v_mov_b32 {v(H+9)}, -1''')
        if not dec and o['stw'][lay]: a.wait(self.tk_st)
        main()
        for u in idle[h:]: self.run(u)
        a(f'v_mov_b32 {v(H+7)}, {SWL}'); a(f'ds_read_b32 {v(H+7)}, {v(H+7)}')
        a(f'''v_lshlrev_b32 {v(vA)}, 4, {v(vG)}
        v_mov_b32 {v(K+3)}, {sNON}
        s_lshl_b32 {t0}, {sW}, 4
        v_or_b32 {v(K+5)}, {t0}, {v(vI)}
        s_add_u32 {t0}, {t0}, {CB}
        v_mov_b32 {v(vB)}, {t0}
        v_and_b32 {v(H+5)}, 3, v0
        v_lshlrev_b32 {v(H+5)}, 4, {v(H+5)}
        v_add_u32 {v(H+5)}, {CB}, {v(H+5)}
        v_lshrrev_b32 {v(H+6)}, 2, v0
        v_lshlrev_b32 {v(H+6)}, 13, {v(H+6)}
        s_lshl_b32 {t0}, {sT}, 8
        s_add_u32 {t0}, {t0}, {CAND}
        s_mov_b32 {t4}, -64''')
        self.verify(main, check)
        self.stamp(f'gath{lay}')
        if dec:
            a.wvm(0); self.exec(1); a(f'buffer_store_dword {v(H+9)}, {v(vL16)}, {sWS}, {t3} offen offset:16{self.sp}'); self.exec(-1)
            xt = lambda: a(f'buffer_load_dword {v(H+10)}, {v(H+8)}, {sWS}, 0 offen offset:16 sc1')
        if lay == 0:
            for q in range(0 if dec else 4): tka = self.x1piece(q)
            def hx():
                a(f's_add_u32 {t1}, {sTB}, {oHX - 7*9216}')
                self.exec(0xff00ff00ff00ff00)
                for k in range(2): a(f'buffer_store_dwordx4 {v(ACC+4*k,4)}, {v(vRA)}, {sWS}, {t1} offen offset:{512*k} sc1')
                self.exec(0xff00); a(f'buffer_store_dwordx4 {v(ACC+8,4)}, {v(vRA)}, {sWS}, {t1} offen offset:1024 sc1'); self.exec(-1)
            if not o['xsc']: self.w(3, hx)
        self.gstat(S, 3)
        a(f'''v_fma_f32 {v(K)}, {v(S)}, {v(H+7)}, {v(S+2)}
        v_mul_f32 {v(K)}, {v(K)}, {v(S+3)}
        v_ashrrev_i32 {v(K+4)}, 31, {v(K)}
        v_lshrrev_b32 {v(K+4)}, 1, {v(K+4)}
        v_xor_b32 {v(K)}, {v(K)}, {v(K+4)}
        v_and_or_b32 {v(K)}, {v(K)}, {t4}, {v(K+5)}''')
        zz = [f'v_mov_b32 {v(K+6)}, {v(S+3)}', f'v_mul_f32 {v(K+7)}, {v(S)}, {v(S+3)}', f'v_mul_f32 {v(K+2)}, {v(S+4)}, {v(S+3)}', f'v_sub_f32 {v(K+1)}, 0, {v(S)}']
        for k in (8, 9, 0, 1, 2, 3, 4, 5, 6, 7):
            zz.append(f'v_pk_fma_f32 {v(ZT+2*k,2)}, {v(ACC2+2*k,2)}, {v(K+6,2)}, {v(K+6,2)} op_sel:[0,0,1] op_sel_hi:[1,0,1]')
        for j, m in enumerate(('row_ror:8', 'row_ror:4', 'row_ror:2', 'row_ror:1')):
            x = K + 4 if j else K
            a(zz.pop(0)); a(zz.pop(0)); a(f'v_max_i32_dpp {v(K+4)}, {v(x)}, {v(x)} {m} row_mask:0xf bank_mask:0xf')
        a(f'v_cmp_eq_u32 {sCM}, {v(K)}, {v(K+4)}')
        a(zz.pop(0)); a(zz.pop(0))
        a(f's_and_b64 exec, {sCM}, 0xffff'); a(f'ds_write_b128 {v(vB)}, {v(K,4)}'); self.exec(-1)
        for x in zz: a(x)
        if dec: xt()
        def cs():
            a.barrier()
            def f():
                a(f'ds_read_b128 {v(H,4)}, {v(H+5)}')
                a(f'v_max_i32_dpp {v(H+4)}, {v(H)}, {v(H)} quad_perm:[1,0,3,2] row_mask:0xf bank_mask:0xf')
                a(f'v_max_i32_dpp {v(H+4)}, {v(H+4)}, {v(H+4)} quad_perm:[2,3,0,1] row_mask:0xf bank_mask:0xf')
                a(f'v_cmp_eq_u32 vcc, {v(H)}, {v(H+4)}'); a('s_mov_b32 exec_hi, 0'); a('s_mov_b32 exec_lo, vcc_lo')
                a(f'buffer_store_dwordx4 {v(H,4)}, {v(H+6)}, {W}, {t0} offen sc1'); self.exec(-1)
            self.w(0, f)
        self.only(f's_cmp_eq_u32 {sCG}, 0', cs)
        for k in (8, 9, 0, 1, 2, 3, 4, 5, 6, 7): a(f'v_cvt_pk_bf16_f32 {v(ZP+k)}, {v(ZT+2*k)}, {v(ZT+2*k+1)}')
        for h in range(2): a(f'v_permlane16_swap_b32 {v(ZP+8+h)}, {v(ZP+10+h)}')
        a(f's_mov_b64 exec, {sCM}')
        for P in range(2): a(f'buffer_store_dwordx4 {v(ZP+4*P,4)}, {v(vA)}, {W}, {sGB} offen offset:{gCZ + 64*P} sc1')
        a(f's_and_b64 exec, {sCM}, 0xffff')
        a(f'buffer_store_dwordx4 {v(ZP+8,4)}, {v(vA)}, {W}, {sGB} offen offset:{gCZ + 128} sc1')
        self.exec(-1)
        self.stamp(f'cand{lay}')
        if lay == 0:
            if dec:
                self.verify(xt, lambda: a(f'v_cmp_ne_u32 vcc, -1, {v(H+10)}')); self.stamp('xt')
                for q in range(4): tka = self.x1piece(q)
            for q in range(4, o['xq'][0]): self.tk_x = self.x1piece(q)
            self.lnc(S)
            a(f's_lshl_b32 {t0}, {sW}, 6'); a(f's_add_u32 {t0}, {t0}, {NM + 64}'); a(f'v_lshl_add_u32 {v(vB)}, {v(vI)}, 2, {t0}')
            a(f'v_mov_b32 v60, {v(S)}'); a(f'v_mov_b32 v61, {v(S+6)}'); a(f'v_mov_b32 v62, 0'); a(f'v_mov_b32 v63, {sNON}')
            self.exec(0xffff)
            a(f'ds_write2_b32 {v(vB)}, {v(S)}, {v(S+6)} offset0:0 offset1:80')
            a(f'ds_write2_b32 {v(vB)}, {v(S+5)}, {v(K+7)} offset0:160 offset1:240')
            self.exec(-1)
            a.wait(tka); a.barrier()
            self.stamp('xa')
        else:
            OPK = ACC + 68
            a(f'v_add_f32 {v(K+6)}, 1.0, {v(K+6)}')
            for k in range(10): a(f'v_pk_fma_f32 {v(ZT+2*k,2)}, {v(ACC2+2*k,2)}, {v(K+6,2)}, {v(K+6,2)} op_sel:[0,0,1] op_sel_hi:[1,0,1]')
            for k in (8, 9, 0, 1, 2, 3, 4, 5, 6, 7): a(f'v_cvt_pk_bf16_f32 {v(OPK+k)}, {v(ZT+2*k)}, {v(ZT+2*k+1)}')
            for h in range(2): a(f'v_permlane16_swap_b32 {v(OPK+8+h)}, {v(OPK+10+h)}')
            a(f's_not_b64 {sSV}, {sCM}')
            if o['odef'] < 4: self.only(f's_cmp_ge_u32 {sW}, {o["odef"]}', lambda: self.outst(sSV))

    def outst(self, m):
        a = self.a; OPK = ACC + 68; f = self.o['osc']
        a(f's_mov_b64 exec, {m}')
        for P in range(2): a(f'buffer_store_dwordx4 {v(OPK+4*P,4)}, {v(vXe)}, {sOUT}, {sOUTo} offen offset:{64*P}{f}')
        a(f's_and_b64 exec, {m}, 0xffff')
        a(f'buffer_store_dwordx4 {v(OPK+8,4)}, {v(vXe)}, {sOUT}, {sOUTo} offen offset:128{f}')
        self.exec(-1)

    C = 28; Z = 40
    def cand_addr(self):
        a = self.a; C = self.C; Z = self.Z
        a(f'v_and_b32 {v(C+10)}, 31, v0'); a(f'v_lshlrev_b32 {v(C+10)}, 8, {v(C+10)}')
        for x in self.div9(Z + 10, 0): a(x)
        a(f'v_mul_u32_u24 {v(Z+10)}, {4096-144}, {v(Z+10)}'); a(f'v_add_u32 {v(Z+10)}, {v(Z+10)}, {v(vL16)}')
        for k in range(4): a(f'v_mov_b32 {v(Z+4+k)}, 0')
        a(f'v_mov_b32 {v(C+9)}, {WIN}')
    def cand_load(self, lay):
        a = self.a; C = self.C; a(f's_lshl_b32 s1, {sXCD}, 13'); a(f's_add_u32 s1, s1, {CAND}')
        a(f'buffer_load_dwordx4 {v(C,4)}, {v(C+10)}, {sWL[lay]}, s1 offen sc1')
    def cand_check(self): self.a(f'v_cmp_ne_u32 vcc, {sNON}, {v(self.C+3)}')
    def row_load(self, W, d, va, sa, vb, off):
        a = self.a
        a(f'buffer_load_dwordx4 {v(d,4)}, {v(va)}, {W}, {sa} offen sc1'); a(f's_add_u32 s1, {sa}, {off}')
        self.exec(0xff); a(f'buffer_load_dwordx4 {v(d+4,4)}, {v(vb)}, {W}, s1 offen sc1'); self.exec(-1)
    def z_load(self, lay): self.row_load(sWL[lay], self.Z, self.Z + 10, t1, vL16, 7*4096 + 16)
    def row_check(self, d):
        for x in self.maxu(d + 8, range(d, d + 8)): self.a(x)
        self.a(f'v_cmp_eq_u32 vcc, -1, {v(d+8)}')
    def argmax(self, lay):
        a = self.a; C = self.C
        for k, m in enumerate(('row_ror:8', 'row_ror:4', 'row_ror:2', 'row_ror:1')):
            x = C + 8 if k else C
            a(f'v_max_i32_dpp {v(C+8)}, {v(x)}, {v(x)} {m} row_mask:0xf bank_mask:0xf')
            if k == 0: a(f'v_mov_b32 {v(C+3)}, v0')
        a(f'v_readlane_b32 {t0}, {v(C+8)}, 0'); a(f'v_readlane_b32 {t1}, {v(C+8)}, 16'); a(f's_max_i32 {sKEY}, {t0}, {t1}')
        a(f'v_cmp_eq_u32 vcc, {sKEY}, {v(C)}')
        a(f'''s_bfe_u32 {t2}, {sKEY}, 0x20004
        s_lshl_b32 {t2}, {t2}, 10
        s_add_u32 {t2}, {t2}, {TB + oGB + gCZ}
        s_ff1_i32_b32 {t0}, vcc_lo
        s_mul_i32 {t1}, {t0}, {BLK}
        s_add_u32 {t1}, {t1}, {t2}''')
    def winput(self):
        a = self.a; C = self.C
        a(f's_lshl_b64 exec, 1, {t0}'); a(f'ds_write_b128 {v(C+9)}, {v(C,4)}'); self.exec(-1)
    def zput(self):
        a = self.a; Z = self.Z
        a(f'v_add_u32 {v(Z+8)}, {ZR}, {v(vL16)}'); a(f'ds_write_b128 {v(Z+8)}, {v(Z,4)}')
        self.exec(0xff); a(f'ds_write_b128 {v(Z+8)}, {v(Z+4,4)} offset:1024'); self.exec(-1)
    def winread(self):
        a = self.a; C = self.C
        a(f'v_mov_b32 {v(C+4)}, {WIN}'); a(f'ds_read_b128 {v(C,4)}, {v(C+4)}')
        for k, r in enumerate((sKEY, sM, sSTD, sCID)): a(f'v_readfirstlane_b32 {r}, {v(C+k)}')
        a(f'''s_sub_u32 {t0}, {sCID}, {sT}
        s_lshl_b32 {t0}, {t0}, 6
        s_and_b32 {t2}, {sKEY}, 63
        s_add_u32 {t0}, {t0}, 16
        s_add_u32 {sSLOT}, {t0}, {t2}''')
    def ffn_addr(self):
        return [l.strip() for l in f'''v_bfe_u32 {v(vC)}, v0, 1, 1
        v_lshlrev_b32 {v(vD)}, 1, {v(vC)}
        v_and_or_b32 {v(vD)}, {v(vG)}, 1, {v(vD)}
        v_xor_b32 {v(vD)}, {sW}, {v(vD)}
        v_mul_u32_u24 {v(vC)}, 36864, {v(vC)}
        v_lshl_add_u32 {v(vC)}, {v(vD)}, 4, {v(vC)}
        v_lshrrev_b32 {v(vD)}, 2, v0
        v_lshl_add_u32 {v(vC)}, {v(vD)}, 6, {v(vC)}
        v_and_b32 {v(vD)}, 1, v0
        v_lshl_add_u32 {v(vC)}, {v(vD)}, 3, {v(vC)}
        v_add_u32 {v(vC)}, {GATE}, {v(vC)}
        v_lshlrev_b32 {v(vD)}, 4, {v(vG)}
        v_add_u32 {v(vD)}, {ZR}, {v(vD)}'''.split('\n')]
    def ffn(self, lay):
        a = self.a
        if lay == 0:
            D = 28; B0 = 36; NB = 4
            def rd(ks):
                b = B0 + 8 * (ks % NB)
                return [f'ds_read_b128 {v(b+4,4)}, {v(vD)} offset:{64*ks}'] + [f'ds_read_b64_tr_b16 {v(b+2*jh,2)}, {v(vC)} offset:{1024*(2*ks+jh)}' for jh in range(2)]
            ab = lambda ks: (B0 + 8 * (ks % NB), B0 + 8 * (ks % NB) + 4)
        else:
            D = 28; B0 = XFB; NB = 10
            rd = lambda ks: [f'ds_read_b128 {v(B0+4*(ks%NB),4)}, {v(vD)} offset:{64*ks}']
            ab = lambda ks: (256 + 4 * ks, B0 + 4 * (ks % NB))
        for ks in range(NB - 1):
            for x in rd(ks): a(x)
        a(f'''s_lshl_b32 {t0}, {sW}, 9
        s_add_u32 {t0}, {t0}, {HW + 144}
        v_lshl_add_u32 {v(vA)}, {v(vG)}, 3, {t0}
        v_lshlrev_b32 {v(vB)}, 9, {v(vG)}
        v_lshl_add_u32 {v(vB)}, {v(vI)}, 4, {v(vB)}
        v_add_u32 {v(vB)}, {HW}, {v(vB)}
        v_lshlrev_b32 {v(vE)}, 6, {v(vI)}
        v_lshl_add_u32 {v(vE)}, {v(vG)}, 4, {v(vE)}''')
        for ks in range(18):
            if ks + NB - 1 < 18:
                for x in rd(ks + NB - 1): a(x)
            A, B = ab(ks)
            a(f'v_mfma_f32_16x16x32_bf16 {v(D,4)}, {v(A,4)}, {v(B,4)}, {v(D,4) if ks else 0}')
            if lay == 0 and ks % 2 == 0 and ks // 2 < len(self.xlate): self.xlate[ks // 2]()
        for r in range(4): a(f'v_mul_f32 {v(D+8+r)}, {f32(-LOG2E)}, {v(D+r)}')
        for r in range(4): a(f'v_exp_f32 {v(D+8+r)}, {v(D+8+r)}')
        for r in range(4): a(f'v_permlane32_swap_b32 {v(D+r)}, {v(D+4+r)}')
        for r in range(4): a(f'v_add_f32 {v(D+8+r)}, 1.0, {v(D+8+r)}')
        for r in range(4): a(f'v_rcp_f32 {v(D+8+r)}, {v(D+8+r)}')
        for h in (0, 2): a(f'v_pk_mul_f32 {v(D+h,2)}, {v(D+h,2)}, {v(D+4+h,2)}')
        for h in (0, 2): a(f'v_pk_mul_f32 {v(D+h,2)}, {v(D+h,2)}, {v(D+8+h,2)}')
        a(f'v_cvt_pk_bf16_f32 {v(D)}, {v(D)}, {v(D+1)}\nv_cvt_pk_bf16_f32 {v(D+1)}, {v(D+2)}, {v(D+3)}')
        self.exec(0x10001); a(f'ds_write_b64 {v(vA)}, {v(D,2)}'); self.exec(-1)
        if lay == 0: a.wait(self.tk_gu)
        a.barrier()
        for n in range(9): a(f'ds_read_b128 {v(32+4*n,4)}, {v(vB)} offset:{16*(9-n)}')
        for n in range(9): a(f'v_mfma_f32_16x16x32_bf16 {v(D,4)}, {v(WDF+4*n,4)}, {v(32+4*n,4)}, {v(D,4) if n else 0}')
        self.exec(0x03ff03ff03ff03ff)
        a(f'buffer_store_dwordx4 {v(D,4)}, {v(vE)}, {sWL[lay]}, {sGB} offen sc1'); self.exec(-1)

    Y = 28
    def red_addr(self):
        a = self.a
        a(f'''s_mul_i32 {t2}, {sRED}, 7282
        s_lshr_b32 {t2}, {t2}, 16
        s_mul_i32 {t2}, {t2}, 7
        s_add_u32 {t2}, {t2}, {sRED}
        s_lshl_b32 {t2}, {t2}, 6
        s_add_u32 {t2}, {t2}, {TB + oGB + gPY}
        v_lshrrev_b32 {v(vA)}, 3, v0
        v_mul_u32_u24 {v(vA)}, {4*BLK}, {v(vA)}
        v_bfe_u32 {v(vB)}, v0, 2, 1
        v_lshl_add_u32 {v(vA)}, {v(vB)}, 12, {v(vA)}
        v_and_b32 {v(vB)}, 3, v0
        v_lshl_add_u32 {v(vA)}, {v(vB)}, 4, {v(vA)}
        v_lshlrev_b32 {v(vB)}, 3, {v(vB)}
        s_lshl_b32 {t3}, {sRED}, 5
        v_add_u32 {v(vE)}, {t3}, {v(vB)}
        v_lshrrev_b32 {v(vF)}, 4, {v(vE)}''')
        for x in self.div9(vF, vF): a(x)
        a(f'''v_mul_u32_u24 {v(vF)}, {4096-144}, {v(vF)}
        v_add_u32 {v(vF)}, {v(vF)}, {v(vE)}
        s_ashr_i32 {t0}, {sKEY}, 31
        s_lshr_b32 {t0}, {t0}, 1
        s_xor_b32 {t0}, {t0}, {sKEY}
        v_mov_b32 {v(vE)}, {f32(-LOG2E)}
        v_mul_f32 {v(vE)}, {t0}, {v(vE)}
        v_exp_f32 {v(vE)}, {v(vE)}
        v_add_f32 {v(vE)}, 1.0, {v(vE)}
        v_rcp_f32 {v(vE)}, {v(vE)}''')
    def red_load(self, lay):
        a = self.a; Y = self.Y; W = sWL[lay]
        a(f'buffer_load_dwordx2 {v(Y+36,2)}, {v(vF)}, {W}, {t1} offen sc1')
        for q in range(9):
            a(f's_add_u32 s1, {t2}, {(q >> 2)*BLK + (q & 3)*8192}'); a(f'buffer_load_dwordx4 {v(Y+4*q,4)}, {v(vA)}, {W}, s1 offen sc1')
    def red_check(self):
        Y = self.Y
        for x in self.maxu(Y + 38, [Y + 36, Y + 37] + list(range(Y, Y + 36))): self.a(x)
        self.a(f'v_cmp_eq_u32 vcc, -1, {v(Y+38)}')
    def red_sum(self, lay):
        a = self.a; Y = self.Y; Z = Y + 36
        for q in range(1, 9):
            for h in (0, 2): a(f'v_pk_add_f32 {v(Y+h,2)}, {v(Y+h,2)}, {v(Y+4*q+h,2)}')
        a(f'v_lshlrev_b32 {v(Y+8)}, 16, {v(Z)}\nv_and_b32 {v(Y+9)}, 0xffff0000, {v(Z)}\nv_lshlrev_b32 {v(Y+10)}, 16, {v(Z+1)}\nv_and_b32 {v(Y+11)}, 0xffff0000, {v(Z+1)}')
        self.dpp('v_add_f32', range(Y, Y + 4), ['row_ror:8', 'row_ror:4'])
        a(f'v_mov_b32 {v(Z)}, {sSTD}'); a(f'v_add_f32 {v(Z)}, 1.0, {v(Z)}')
        for r in range(4): a(f'v_fma_f32 {v(Y+8+r)}, {v(Y+8+r)}, {v(Z)}, {sM}')
        self.xsum(list(range(Y, Y + 4)), Y + 4, full=False)
        for r in range(4): a(f'v_fma_f32 {v(Y+r)}, {v(Y+r)}, {v(vE)}, {v(Y+8+r)}')
        a(f'v_cvt_pk_bf16_f32 {v(Y)}, {v(Y)}, {v(Y+1)}\nv_cvt_pk_bf16_f32 {v(Y+1)}, {v(Y+2)}, {v(Y+3)}')
        self.exec(0xf)
        if lay == 0: a(f'buffer_store_dwordx2 {v(Y,2)}, {v(vB)}, {sWS}, {sGB} offen offset:{gNR} sc1')
        else:
            a(f'buffer_store_dwordx2 {v(Y,2)}, {v(vB)}, {sOUT}, {t4} offen{self.o["osc"]}')
            def nn():
                self.exec(1); a(f'v_mov_b32 {v(vC)}, {sNON}'); a(f'buffer_store_dword {v(vC)}, {v(vB)}, {sWS}, 0 offen sc1')
            self.only(f's_cmp_eq_u32 {sRED}, 0', nn)
        self.exec(-1)

    def hooks(self):
        a = self.a; o = self.o; Z = self.Z; h = {}
        def add(ks, f):
            g = h.get(ks)
            h[ks] = (lambda: (g(), f())) if g else f
        red = lambda f: self.only(f's_cmp_lt_u32 {sRED}, 36', f)
        add(o['h1'], lambda: self.w(0, lambda: (self.cand_addr(), self.cand_load(0))))
        def xb():
            a.wait(self.tk_x)
            def hs():
                a(f's_lshl_b32 {t0}, {sCG}, 7'); a(f's_add_u32 {t0}, {t0}, {sTB}'); a(f's_add_u32 {t0}, {t0}, {oHS - 128}')
                self.exec(0xff00); a(f'buffer_store_dwordx4 v[60:63], {v(vL16)}, {sWS}, {t0} offen sc1'); self.exec(-1)
            self.w(3, hs)
            a('s_barrier'); self.stamp('xb')
        add(3, xb)
        def h2():
            self.verify(lambda: self.cand_load(0), self.cand_check); self.argmax(0)
            self.only(f's_cmp_lt_u32 {sLI}, 18', lambda: self.z_load(0)); self.winput()
        add(o['h2'], lambda: (self.w(0, h2), self.stamp('h2')))
        def h3():
            Lf, Lj = self.L(), self.L()
            a(f's_cmp_lt_u32 {sLI}, 18'); a(f's_cbranch_scc0 {Lf}')
            self.w(0, lambda: (self.verify(lambda: self.z_load(0), lambda: self.row_check(Z)), self.zput()))
            a.wait(self.tk_gu)
            a.barrier(); self.stamp('h3'); tk = self.tk_gu; self.ffn(0); a(f's_branch {Lj}')
            a.label(Lf); self.tk_gu = tk
            for u in self.xlate: u()
            a.wait(self.tk_gu); a.barrier(); a.label(Lj)
            self.winread()
            a(f'''s_cmp_eq_u32 {sJ}, 0
            s_cselect_b32 {t0}, 16, 8
            s_sub_u32 {t2}, {sSLOT}, {t0}
            s_sub_u32 {t0}, 80, {t0}
            s_cmp_lt_u32 {t2}, {t0}
            s_cselect_b32 {sOWN}, 1, 0''')
            self.stamp('ffn0')
        add(o['h3'], h3)
        assert o['hA'] >= o['h3']
        def hl(): a(f's_add_u32 s1, {sTP}, {oHS}'); a(f'buffer_load_dwordx4 v[60:63], {v(vL16)}, {sWS}, s1 offen sc1')
        add(o['hA'], lambda: self.w(2, hl))
        def hB():
            self.verify(hl, lambda: a(f'v_cmp_ne_u32 vcc, {sNON}, v63'))
            for q in range(9):
                a(f's_mov_b32 m0, {LH + HP*q}'); a(f's_add_u32 s1, {sTP}, {(oX1 + 7*9216 if o["xsc"] else oHX) + 1024*q}')
                self.tk_h = a(f'buffer_load_dwordx4 {v(vL16)}, {sWS}, s1 offen sc1 lds')
            a(f'v_lshlrev_b32 v64, 2, v0'); a(f'v_add_u32 v64, {NM}, v64')
            self.exec(0xffff); a(f'ds_write2_b32 v64, v60, v61 offset0:0 offset1:80'); self.exec(-1)
        add(o['hB'], lambda: (self.w(2, hB), self.stamp('hB')))
        add(o['hC'], lambda: (self.w(2, lambda: (a.wait(self.tk_h), a.wlg(0))), a('s_barrier'), self.stamp('hC')))
        add(o['rp'][3], lambda: (self.rchk(), self.stamp('rchk')))
        add(o['h4'], lambda: red(lambda: (self.red_addr(), self.red_load(0))))
        add(o['h5'], lambda: (red(lambda: (self.verify(lambda: self.red_load(0), self.red_check), self.red_sum(0))), self.stamp('red0')))
        return h

    def patch(self):
        a = self.a; Rr = self.Z; sx = self.sx
        a.label(f'L_patch{sx}')
        a.raw('@PAD')
        a.wlg(0)
        for k in range(4): a(f'v_mov_b32 {v(Rr+4+k)}, 0')
        a(f'''v_lshrrev_b32 {v(vA)}, 3, v0
        v_mul_u32_u24 v51, {HP - 128}, {v(vA)}
        s_mov_b32 {t0}, {LH + 1040}
        v_add3_u32 v51, v51, {v(vL16)}, {t0}
        v_and_b32 v52, 11, v0
        v_cmp_eq_u32 vcc, 1, v52
        v_lshl_add_u32 v52, {v(vG)}, 4, {t0}
        v_add_u32 v53, 64, v52
        v_cndmask_b32 {v(vHe)}, {v(vHe)}, v52, vcc
        v_cndmask_b32 {v(vHo)}, {v(vHo)}, v53, vcc''')
        def f():
            a(f'''s_mov_b32 {t3}, {TB + 3*BLK + oGB + gNR}
            v_bfe_u32 v50, v0, 1, 3
            v_mul_u32_u24 v50, {4*BLK}, v50
            v_lshl_add_u32 v50, {v(vG)}, 12, v50
            v_and_b32 v52, 1, v0
            v_lshl_add_u32 v50, v52, 4, v50
            s_lshr_b32 {t1}, {sSLOT}, 3
            s_sub_u32 {t1}, {t1}, 2
            s_mul_i32 {t1}, {t1}, 9216
            s_cmp_lt_u32 {sSLOT}, 16
            s_cselect_b32 {t1}, {LH}, {t1}
            s_cselect_b32 {t2}, {HP - 1024}, 0
            s_and_b32 {t0}, {sSLOT}, 7
            s_lshl_b32 {t0}, {t0}, 4
            s_add_u32 {t1}, {t1}, {t0}
            v_mul_u32_u24 {v(vA)}, {t2}, {v(vA)}
            v_lshl_add_u32 {v(vA)}, v0, 7, {v(vA)}
            v_add_u32 {v(vA)}, {t1}, {v(vA)}
            s_lshl_b32 {t2}, {t2}, 3
            v_add_u32 {v(vB)}, {t2}, {v(vA)}''')
            self.poll(lambda: self.row_load(sWS, Rr, 50, t3, 50, 16384), lambda: self.row_check(Rr))
            a(f'ds_write_b128 v51, {v(Rr,4)}'); a(f'ds_write_b128 {v(vA)}, {v(Rr,4)}')
            self.exec(0xff); a(f'ds_write_b128 v51, {v(Rr+4,4)} offset:{8*HP}'); a(f'ds_write_b128 {v(vB)}, {v(Rr+4,4)} offset:8192'); self.exec(-1)
        self.w(1, f)
        a.barrier()
        self.stamp('nr')
        for k in range(5): a(self.xread(k, 0, self.HB(k)))
        a(f'ds_read_b128 {v(Rr,4)}, v51'); self.exec(0xff); a(f'ds_read_b128 {v(Rr+4,4)}, v51 offset:{8*HP}'); self.exec(-1)
        S = Rr + 8; a(f's_mov_b32 {t3}, {ONES}')
        U = [[f'v_dot2_f32_bf16 {v(S)}, {v(Rr+k)}, {t3}, {v(S) if k else 0}', f'v_dot2_f32_bf16 {v(S+1)}, {v(Rr+k)}, {v(Rr+k)}, {v(S+1) if k else 0}'] for k in range(8)]
        U += [lambda m=m: self.dpp('v_add_f32', [S, S+1], [m]) for m in ('row_ror:8', 'row_ror:4', 'row_ror:2', 'row_ror:1')]
        U += [lambda w=w: self.xsum([S, S+1], S + 4, full=False, sws=(w,)) for w in ('v_permlane32_swap_b32', 'v_permlane16_swap_b32')]
        U += [[f'v_mul_f32 {v(S)}, {f32(-1/576)}, {v(S)}', f'v_mul_f32 {v(S+1)}, {f32(1/576)}, {v(S+1)}'],
              [f'v_fma_f32 {v(S+1)}, -{v(S)}, {v(S)}, {v(S+1)}', f'v_max_f32 {v(S+1)}, 0, {v(S+1)}'],
              [f'v_add_f32 {v(S+1)}, {f32(1e-5)}, {v(S+1)}', f'v_rsq_f32 {v(S+1)}, {v(S+1)}'],
              [f's_lshl_b32 {t0}, {sSLOT}, 2', f's_add_u32 {t0}, {t0}, {NM}', f'v_mov_b32 {v(vA)}, {t0}'], [f'v_mov_b32 {v(S+4)}, 1.0', f'v_mov_b32 {v(S+5)}, 0'],
              ['s_mov_b64 exec, 1', f'ds_write2_b32 {v(vA)}, {v(S)}, {v(S+1)} offset0:0 offset1:80', f'ds_write2_b32 {v(vA)}, {v(S+4)}, {v(S+5)} offset0:160 offset1:240', 's_mov_b64 exec, -1'],
              [f's_and_b32 {t1}, {sSLOT}, 15', f's_mov_b32 s{sb(sSV)}, 0x10001', f's_mov_b32 s{sb(sSV)+1}, 0x10001', f's_lshl_b64 {sSV}, {sSV}, {t1}', f's_not_b64 vcc, {sSV}'],
              [f's_lshr_b32 {t2}, {t1}, 2', f's_lshl_b32 {t2}, {t2}, 4', f's_mov_b64 {sSV}, 0xffff', f's_lshl_b64 {sSV}, {sSV}, {t2}', f's_and_b32 {t1}, {t1}, 3', f's_lshr_b32 {t0}, {sSLOT}, 4']]
        self.phase2(U)
        a(f'v_mov_b32 v40, {v(Vb+1)}'); a(f'v_mov_b32 v41, {v(Vb+1)}'); a('v_permlane32_swap_b32 v40, v41')
        Lt = [self.L() for _ in range(5)]
        for t in (0, 2, 3, 4): a(f's_cmp_eq_u32 {t0}, {t}'); a(f's_cbranch_scc1 {Lt[t]}')
        for t in range(1, 5):
            if t > 1: a.label(Lt[t])
            for b in (Qb, Kb, Rb):
                for r in range(4): a(f'v_cndmask_b32_dpp {v(b+4*t+r)}, {v(b+r)}, {v(b+4*t+r)}, vcc row_newbcast:1 row_mask:0xf bank_mask:0xf')
            for r in range(4):
                a(f's_cmp_eq_u32 {t1}, {r}'); a(f's_cselect_b64 vcc, {sSV}, 0'); a(f'v_cndmask_b32 {v(Vb+4*t+r)}, {v(Vb+4*t+r)}, v40, vcc')
            if t < 4: a(f's_branch {Lt[0]}')
        a.label(Lt[0])
        a.wall(); a('s_nop 3'); a(f's_branch L_patched{sx}')

    def tail(self):
        a = self.a; Z = self.Z
        def w0():
            self.cand_addr()
            self.poll(lambda: self.cand_load(1), self.cand_check); self.argmax(1)
            self.only(f's_cmp_lt_u32 {sLI}, 18', lambda: self.z_load(1)); self.winput()
            self.only(f's_cmp_lt_u32 {sLI}, 18', lambda: (self.verify(lambda: self.z_load(1), lambda: self.row_check(Z)), self.zput()))
        self.w(0, w0)
        a.barrier()
        self.stamp('win1')
        self.only(f's_cmp_lt_u32 {sLI}, 18', lambda: self.ffn(1))
        self.stamp('ffn1')
        if self.o['tred']:
            a(f's_lshl_b32 {sRED}, {sLI}, 3'); a(f's_add_u32 {sRED}, {sRED}, {sXCD}'); a(f's_cmp_eq_u32 {sW}, 0'); a(f's_cselect_b32 {sRED}, {sRED}, 99')
        self.winread()
        a(f'''s_cmp_lt_u32 {sW}, {self.o["odef"]}
        s_cselect_b64 {sSV}, -1, {sCM}
        s_lshr_b32 {t0}, {sSLOT}, 4
        s_sub_u32 {t0}, {t0}, 1
        s_cmp_eq_u32 {t0}, {sW}
        s_cselect_b64 {sCM}, {sCM}, 0''')
        def red():
            self.red_addr()
            a(f'''s_and_b32 {t0}, {sCID}, 15
            s_lshl_b32 {t0}, {t0}, 6
            s_and_b32 {t4}, {sKEY}, 63
            s_add_u32 {t0}, {t0}, {t4}
            s_lshl_b32 {t0}, {t0}, 1
            s_lshr_b32 {t4}, {sCID}, 4
            s_add_u32 {t0}, {t0}, {t4}
            s_mul_i32 {t0}, {t0}, 36
            s_add_u32 {t0}, {t0}, {sRED}
            s_lshl_b32 {t4}, {t0}, 5''')
            if self.o['tred'] == 1: a.wvm(0)
            self.poll(lambda: self.red_load(1), self.red_check); self.stamp('rpoll'); self.red_sum(1)
        self.only(f's_cmp_lt_u32 {sRED}, 36', red)
        self.only(f's_andn2_b64 {sSV}, {sSV}, {sCM}', lambda: self.outst(sSV))

    def body(self):
        a = self.a; o = self.o
        self.tk_gu = None
        self.attn(0); self.p2(0); self.router(0); self.gemm1(); self.attn(1); self.p2(1); self.router(1); self.tail()
        if o['stamps']:
            self.stamp('red1'); a.wall(); self.stamp('end')
            a('s_memrealtime s[4:5]'); a.wlg(0)
            for k, r in ((62, 's100'), (63, 's4'), (61, sCNT), (60, 's96'), (59, sSLOW)): a(f'v_writelane_b32 {v(vSTAMP)}, {r}, {k}')
            a(f's_lshl_b32 {t0}, s2, 2'); a(f's_add_u32 {t0}, {t0}, {sW}'); a(f's_lshl_b32 {t0}, {t0}, 8'); a(f's_add_u32 {t0}, {t0}, {STAMP}')
            a(f'v_lshlrev_b32 {v(vB)}, 2, v0'); a(f'buffer_store_dword {v(vSTAMP)}, {v(vB)}, {sWS}, {t0} offen')
        if o['padto']:
            if o['probe']: a(f's_cmp_eq_u32 {sW}, 0'); a('s_cselect_b32 s100, s98, s100')
            L = self.L(); a.wall(); a.label(L); a('s_memrealtime s[4:5]'); a.wlg(0); a('s_sub_u32 s4, s4, s100'); a(f's_cmp_lt_u32 s4, {o["padto"]}'); a(f's_cbranch_scc1 {L}')
        a('s_endpgm')
        while self.colds: self.colds.pop(0)()
    def slow(self):
        a = self.a
        a.label('L_slow'); a.wall()
        self.sp = ' sc1'; self.sx = '_s'
        for u in self.poisonL(0, 44, ' sc1'): self.run(u)
        a.wall(); a('s_barrier')
        def f():
            a(f'''s_lshl_b32 {t1}, {sT}, 10
            s_add_u32 {t1}, {t1}, {XF2}
            s_lshl_b32 {t2}, {sCG}, 7
            s_add_u32 {t2}, {t2}, {t1}
            v_mov_b32 v44, {sNON}
            v_lshlrev_b32 v45, 7, v0''')
            self.exec(1); a(f'buffer_store_dword v44, v45, {sWS}, {t2} offen sc1'); self.exec(0xff)
            self.poll(lambda: a(f'buffer_load_dword v46, v45, {sWS}, {t1} offen sc1'), lambda: a(f'v_cmp_ne_u32 vcc, {sNON}, v46'))
            self.exec(-1)
        self.w(0, f)
        self.body()

    def wrap(self, lines):
        K = NAME + '_kernel'
        head = open('header.txt').read()
        return (f'; @launch grid=(256,1,1) block=(256,1,1) lds=163840\n' + head +
                f'.amdgcn_target "amdgcn-amd-amdhsa--gfx950"\n.text\n.globl {K}\n.p2align 8\n.type {K},@function\n{K}:\n' + '\n'.join(lines) + '\ns_endpgm\n' +
                f'''
.section .rodata,"a"
.p2align 6
.amdhsa_kernel {K}
  .amdhsa_next_free_vgpr 512
  .amdhsa_next_free_sgpr 102
  .amdhsa_accum_offset 256
  .amdhsa_group_segment_fixed_size 0
  .amdhsa_kernarg_size 88
  .amdhsa_user_sgpr_count 2
  .amdhsa_user_sgpr_kernarg_segment_ptr 1
  .amdhsa_system_sgpr_workgroup_id_x 1
.end_amdhsa_kernel
''')
    def pads(self, lines):
        i0, i1 = lines.index('L_main:'), lines.index('L_hotend:')
        if not self.o['pads']: return [l for l in lines if l != '@PAD']
        ins = [l for l in lines[i0:i1] if not l.endswith(':') and l[0] not in ';@']
        src = '\n'.join(re.sub(r'^(s_c?branch\w*) .*', r'\1 0', l) for l in ins) + '\n'
        r = subprocess.run(['llvm-mc', '-triple=amdgcn-amd-amdhsa', '-mcpu=gfx950', '-show-encoding'], input=src, capture_output=True, text=True)
        size = [l.count('0x', l.index('encoding:')) for l in r.stdout.split('\n') if 'encoding:' in l]
        assert len(size) == len(ins), (len(size), len(ins), r.stderr[:400])
        out = []; addr = 0; nxt = 0; k = 0; n = 0
        for l in lines[i0:i1]:
            real = not l.endswith(':') and l[0] not in ';@'
            if l == '@PAD' or (real and addr >= nxt):
                out.append(('P', n)); n += 1; addr += 4
                if l != '@PAD': nxt += 4096
            if l == '@PAD': continue
            out.append(l)
            if real: addr += size[k]; k += 1
        res = []
        for l in out:
            if isinstance(l, tuple): res += [f'L_pad{l[1]}:', f's_cbranch_execz ' + (f'L_pad{l[1]+3}' if l[1] + 3 < n else 'L_padret')]
            else: res.append(l)
        self.hot = addr
        return lines[:i0] + res + [l for l in lines[i1:] if l != '@PAD']
    def build(self):
        a = self.a; o = self.o
        self.start(); self.gemm0()
        a(f's_cmp_lg_u32 {sSLOW}, 0'); a('s_cbranch_scc1 ' + ('L_slow' if o['slowcopy'] else 'L_exit'))
        self.body()
        a.raw('L_hotend:')
        if o['slowcopy']: self.slow()
        a.label('L_exit')
        return self.wrap(self.pads(a.text().rstrip('\n').split('\n')))

if __name__ == '__main__':
    o = eval('dict(' + (sys.argv[2] if len(sys.argv) > 2 else '') + ')')
    g = G(**o); t = g.build(); open(sys.argv[1], 'w').write(t)
    print('lines', t.count('\n'), 'bytes', len(t), 'nops', g.a.nops, g.names)
```
